```python
import torch

def _softmax(x, axis=-1):
    return torch.softmax(x, dim=axis)
def _gelu(x):
    return torch.nn.functional.gelu(x, approximate="tanh")
def _silu(x):
    return torch.nn.functional.silu(x)
def _sigmoid(x):
    return torch.sigmoid(x)
def _layernorm(x, axis=-1, eps=1e-5):
    m = x.mean(dim=axis, keepdim=True)
    v = x.var(dim=axis, keepdim=True, unbiased=False)
    return (x - m) / torch.sqrt(v + eps)
def _scatter_add(tgt, idx, src, axis=0):
    return tgt.clone().index_add_(axis, idx, src)
def _segment_sum(src, seg, n):
    out = torch.zeros((n,) + src.shape[1:], dtype=src.dtype)
    return out.index_add_(0, seg, src)
def _pad(x, pw):
    flat = tuple(v for pair in reversed(pw) for v in pair)
    return torch.nn.functional.pad(x, flat)

kernel_name = 'gated_mix__gqa_block_cached__dense_activation_squared_relu__decode'

def setup_inputs():

    _w = (lambda a: (lambda t: t.to(torch.bfloat16) if t.is_floating_point() else t)(torch.as_tensor(a)))
    def _A_setup():
        B, Sq, D = 8, 1, 512
        Hq, Hkv, Sk, Dh = 32, 8, 4096, 128
        assert Hq % Hkv == 0, (Hq, Hkv)
        return {
            "x": _w((lambda *s: torch.randn(*s, dtype=torch.bfloat16) * 0.05)(B, Sq, D)),
            "k_cache": _w((lambda *s: torch.randn(*s, dtype=torch.bfloat16) * 6.4)(B, Hkv, Sk, Dh)),
            "v_cache": _w((lambda *s: torch.randn(*s, dtype=torch.bfloat16) * 0.4)(B, Hkv, Sk, Dh)),
            "wq": _w((lambda *s: torch.randn(*s, dtype=torch.bfloat16) * 6.4)(D, Hq * Dh) * (D ** -0.5)),
            "wo": _w((lambda *s: torch.randn(*s, dtype=torch.bfloat16) * 0.4)(Hq * Dh, D) * ((Hq * Dh) ** -0.5)),
        }
    _A_in = _A_setup()

    def _B_setup():
        B, S, D, F = 8, 1, 512, 1792
        return {
            "x": _w((lambda *s: torch.randn(*s, dtype=torch.bfloat16) * 0.05)(B, S, D)),
            "w1": _w((lambda *s: torch.randn(*s, dtype=torch.bfloat16) * 0.05)(D, F)),
            "b1": _w((lambda *s: torch.randn(*s, dtype=torch.bfloat16) * 0.05)(F)),
            "w2": _w((lambda *s: torch.randn(*s, dtype=torch.bfloat16) * 0.05)(F, D)),
            "b2": _w((lambda *s: torch.randn(*s, dtype=torch.bfloat16) * 0.05)(D)),
        }
    _B_in = _B_setup()

    return {
        "A_x": _A_in["x"],
        "A_k_cache": _A_in["k_cache"],
        "A_v_cache": _A_in["v_cache"],
        "A_wq": _A_in["wq"],
        "A_wo": _A_in["wo"],
        "B_x": _B_in["x"],
        "B_w1": _B_in["w1"],
        "B_b1": _B_in["b1"],
        "B_w2": _B_in["w2"],
        "B_b2": _B_in["b2"],
        "gate_w": _w((lambda *s: torch.randn(*s, dtype=torch.bfloat16) * 0.05)(512) * 16.0),
    }

def reference(A_x, A_k_cache, A_v_cache, A_wq, A_wo, B_x, B_w1, B_b1, B_w2, B_b2, gate_w):
    def _A_ref(x, k_cache, v_cache, wq, wo):
        B, Sq, D = x.shape
        Hq, Dh = 32, 128
        Hkv = k_cache.shape[1]
        rep = Hq // Hkv
        q = (lambda x, *d: x.permute(*d))((x @ wq).reshape(B, Sq, Hq, Dh), 0, 2, 1, 3)
        k = (lambda x, n, axis: torch.repeat_interleave(x, n, dim=axis))(k_cache, rep, axis=1)
        v = (lambda x, n, axis: torch.repeat_interleave(x, n, dim=axis))(v_cache, rep, axis=1)
        scores = torch.einsum("bhqd,bhkd->bhqk", q, k) * (Dh ** -0.5)
        p = _softmax(scores, axis=-1)
        o = torch.einsum("bhqk,bhkd->bhqd", p, v)
        return (lambda x, *d: x.permute(*d))(o, 0, 2, 1, 3).reshape(B, Sq, Hq * Dh) @ wo

    def _B_ref(x, w1, b1, w2, b2):
        h = torch.einsum("bsd,df->bsf", x, w1) + b1
        zero = torch.zeros_like(h)
        r = torch.where(h > zero, h, zero)
        h = r * r
        out = torch.einsum("bsf,fd->bsd", h, w2) + b2
        return out

    x = A_x
    g = _sigmoid((x * gate_w).sum(-1, keepdims=True))
    a = _A_ref(x, A_k_cache, A_v_cache, A_wq, A_wo)
    b = _B_ref(x, B_w1, B_b1, B_w2, B_b2)
    return g * a + (1 - g) * b
```

```python
import re

TRANS = ("v_exp_", "v_log_", "v_rcp_", "v_rsq_", "v_sqrt_", "v_sin_", "v_cos_")
SPECIAL = {"vcc": [106, 107], "vcc_lo": [106], "vcc_hi": [107], "exec": [126, 127], "exec_lo": [126], "exec_hi": [127], "m0": [124]}

def split_ops(s):
    ops, depth, cur = [], 0, ""
    for ch in s:
        if ch in "[(":
            depth += 1
        if ch in "])":
            depth -= 1
        if ch == "," and depth == 0:
            ops.append(cur.strip()); cur = ""
        else:
            cur += ch
    if cur.strip():
        ops.append(cur.strip())
    return ops

def regs_of(op):
    tok = op.split()[0] if op.split() else ""
    tok = tok.lstrip("-")
    if tok.startswith("abs(") or tok.startswith("|"):
        tok = tok.replace("abs(", "").replace(")", "").replace("|", "")
    m = re.fullmatch(r"([vsa])(\d+)", tok)
    if m:
        return m.group(1), {int(m.group(2))}
    m = re.fullmatch(r"([vsa])\[(\d+):(\d+)\]", tok)
    if m:
        return m.group(1), set(range(int(m.group(2)), int(m.group(3)) + 1))
    if tok in SPECIAL:
        return "s", set(SPECIAL[tok])
    return None, set()

class Ins:
    def __init__(self, text):
        self.text = text
        t = text.split(";")[0].strip()
        parts = t.split(None, 1)
        self.mn = parts[0]
        self.ops = split_ops(parts[1]) if len(parts) > 1 else []
        mn = self.mn
        self.vw, self.vr, self.sw, self.sr = set(), set(), set(), set()
        self.is_mfma = mn.startswith("v_mfma")
        self.is_valu = mn.startswith("v_") and not self.is_mfma
        self.is_trans = mn.startswith(TRANS)
        self.is_dpp = "_dpp" in mn
        self.is_vmem = mn.startswith(("buffer_", "global_", "flat_"))
        self.is_ds = mn.startswith("ds_")
        self.is_salu = mn.startswith("s_")
        self.is_dot = mn.startswith("v_dot")
        self.is_permlane = mn.startswith("v_permlane")
        self.is_readlane = mn.startswith(("v_readlane", "v_readfirstlane"))
        self.is_ldsdma = self.is_vmem and (re.search(r"\blds\b", t) is not None or "load_lds" in mn)
        self.states = 1
        self.srcc = set(); self.srcab = set()
        self.store_wide = set()
        self.lanesel = set()
        def add(op, w):
            k, s = regs_of(op)
            if k == "v" or k == "a":
                if k == "a": s = {x + 1000 for x in s}
                (self.vw if w else self.vr).update(s)
            elif k == "s":
                (self.sw if w else self.sr).update(s)
        ops = self.ops
        if mn == "s_nop":
            self.states = int(ops[0], 0) + 1
        elif self.is_mfma:
            add(ops[0], True)
            for o in ops[1:4]: add(o, False)
            self.srcab = regs_of(ops[1])[1] | regs_of(ops[2])[1]
            self.srcc = regs_of(ops[3])[1] if regs_of(ops[3])[0] == "v" else set()
            self.passes = 8 if "32x32" in mn else (2 if "4x4" in mn else 4)
        elif self.is_valu:
            if self.is_permlane:
                for o in ops[:2]:
                    add(o, True); add(o, False)
            else:
                add(ops[0], True)
                nd = 1
                if mn.startswith(("v_add_co", "v_sub_co", "v_addc_co", "v_subb_co", "v_subrev_co", "v_mad_u64", "v_div_scale")):
                    add(ops[1], True); nd = 2
                for o in ops[nd:]: add(o, False)
                if mn.startswith(("v_fmac", "v_dot2c", "v_writelane")) or self.is_dpp:
                    add(ops[0], False)
                if mn.startswith(("v_readlane", "v_writelane")):
                    k, s = regs_of(ops[2])
                    if k == "s": self.lanesel = s
                if mn.startswith("v_cmpx"):
                    self.sw.update(SPECIAL["exec"])
        elif self.is_vmem:
            if mn in ("buffer_wbl2", "buffer_inv"):
                pass
            elif "store" in mn or ("atomic" in mn):
                for o in ops: add(o, False)
                if mn.startswith("buffer_") :
                    d = regs_of(ops[0])[1]
                else:
                    d = regs_of(ops[1])[1]
                if len(d) >= 3: self.store_wide = d
                if "atomic" in mn and re.search(r"\bsc0\b", t):
                    add(ops[0], True)
            elif self.is_ldsdma:
                for o in ops: add(o, False)
                self.sr.add(124)
            else:
                add(ops[0], True)
                for o in ops[1:]: add(o, False)
        elif self.is_ds:
            if mn.startswith(("ds_read", "ds_bpermute", "ds_permute", "ds_swizzle")) or "_rtn" in mn:
                add(ops[0], True)
                for o in ops[1:]: add(o, False)
            else:
                for o in ops: add(o, False)
        elif self.is_salu:
            if mn.startswith(("s_cmp", "s_cbranch", "s_branch", "s_waitcnt", "s_barrier", "s_sleep", "s_setprio", "s_endpgm", "s_bitcmp")):
                for o in ops: add(o, False)
            else:
                if ops:
                    add(ops[0], True)
                for o in ops[1:]: add(o, False)
                if "saveexec" in mn:
                    self.sw.update(SPECIAL["exec"])

def need(p, c):
    n = 0
    if p.is_valu:
        if c.is_mfma and (p.vw & c.vr): n = max(n, 2)
        if c.is_dpp and (p.vw & c.vr): n = max(n, 2)
        if c.is_permlane and (p.vw & c.vr): n = max(n, 2)
        if c.is_readlane and (p.vw & c.vr): n = max(n, 1)
        if p.is_trans and c.is_valu and not c.is_trans and (p.vw & c.vr): n = max(n, 1)
        if p.is_trans and (c.is_vmem or c.is_ds) and (p.vw & c.vr): n = max(n, 1)
        if p.sw:
            if c.is_vmem and (p.sw & c.sr): n = max(n, 5)
            if (c.is_valu or c.is_mfma) and (p.sw & c.sr): n = max(n, 2)
            if c.lanesel & p.sw: n = max(n, 4)
            if c.is_salu and (p.sw & c.sr): n = max(n, 1)
            if c.mn.startswith("s_cbranch_vcc") and (p.sw & {106, 107}): n = max(n, 1)
        if p.is_dot:
            if (p.vw & (c.vr | c.vw)) and not (c.mn == p.mn and c.is_dot and not (p.vw & (regs_of(c.ops[1])[1] | regs_of(c.ops[2])[1]))):
                n = max(n, 3)
    if p.is_mfma:
        big = {2: 5, 4: 8, 8: 12, 16: 20}[p.passes]
        ovl = {2: 4, 4: 6, 8: 10, 16: 18}[p.passes]
        if c.is_mfma:
            if p.vw & c.srcab: n = max(n, big)
            if p.vw & c.srcc:
                if c.srcc == p.vw and c.mn == p.mn:
                    n = max(n, 2 if p.passes == 2 else 0)
                else:
                    n = max(n, ovl)
            elif p.vw & c.vw:
                n = max(n, ovl)
        else:
            if p.vw & (c.vr | c.vw): n = max(n, big)
            if c.is_valu and (p.srcc & c.vw): n = max(n, {2: 1, 4: 3, 8: 7, 16: 15}[p.passes])
    if p.is_salu and 124 in p.sw and c.is_ldsdma: n = max(n, 1)
    if p.store_wide and (p.store_wide & c.vw): n = max(n, 2)
    return n

class Asm:
    def __init__(self):
        self.out = []
        self.hist = []
        self.nnops = 0
    def raw(self, text):
        self.out.append(text)
    def label(self, name):
        self.out.append(name + ":")
    def __call__(self, text):
        for line in text.strip().split("\n"):
            line = line.strip()
            if not line or line.startswith(";"):
                if line: self.out.append("    " + line)
                continue
            if line.endswith(":"):
                self.label(line[:-1]); continue
            ins = Ins(line)
            dist = 0
            req = 0
            for p in reversed(self.hist):
                r = need(p, ins) - dist
                if r > req: req = r
                dist += p.states
                if dist >= 24: break
            while req > 0:
                k = min(req, 16)
                nop = Ins(f"s_nop {k-1}")
                self.out.append(f"    s_nop {k-1}")
                self.hist.append(nop)
                self.nnops += 1
                req -= k
            self.out.append("    " + line)
            self.hist.append(ins)
            if len(self.hist) > 40: self.hist = self.hist[-40:]
    def text(self):
        return "\n".join(self.out) + "\n"
```

```python
import sys, json, math
from asmdsl import Asm
NAME = "gated_mix__gqa_block_cached__dense_activation_squared_relu__decode"

QG, HG, OG, LG, PG = 0x10000, 0x40000, 0x80000, 0x100000, 0x200000
STAMP = 0x8000000
WQ_L, OP_L, W1_L, Q_L, M_L, L_L, G_L = 0x20000, 0x20000, 0x24000, 0x26000, 0x26400, 0x26440, 0x26480
LDS_TOTAL = 0x26500
import struct
def f32(x): return "0x%08x" % struct.unpack("<I", struct.pack("<f", x))[0]
CSC = math.log2(math.e) / math.sqrt(128.0)
LOG2E = math.log2(math.e)

HEADER = open("cdna_kernels/" + NAME + ".s.ref").read().split("; Override launch geometry")[0]

def gen(stamps=False, kvpol="nt", wqpol="", wopol="", look=16, spin_max=400000):
    a = Asm()
    NST = 8
    a.raw(HEADER.rstrip())
    a.raw(f"; @launch grid=(256,1,1) block=(512,1,1) lds={LDS_TOTAL}")
    a.raw('.amdgcn_target "amdgcn-amd-amdhsa--gfx950"')
    a.raw(".text")
    a.raw(f".globl {NAME}_kernel")
    a.raw(".p2align 8")
    a.raw(f".type {NAME}_kernel,@function")
    a.label(f"{NAME}_kernel")

    def srd(d, base, size):
        a(f"s_mov_b32 s{d}, s{base}")
        a(f"s_mov_b32 s{d+1}, s{base+1}")
        a(f"s_mov_b32 s{d+2}, {size:#x}")
        a(f"s_mov_b32 s{d+3}, 0x00020000")
    def stamp(i):
        if stamps:
            a(f"s_memrealtime s[{72+2*i}:{73+2*i}]")
            a("s_waitcnt lgkmcnt(0)")
    def stamp_store(slot):
        if not stamps: return
        a(f"s_lshl_b32 s6, s2, 1")
        a(f"s_add_u32 s6, s6, {slot}")
        a(f"s_mul_i32 s6, s6, {NST*8}")
        a(f"s_add_u32 s6, s6, {STAMP:#x}")
        a("s_mov_b64 exec, 1")
        a("v_mov_b32 v1, 0")
        for i in range(0, NST, 2):
            for k in range(4):
                a(f"v_mov_b32 v{4+k}, s{72+2*i+k}")
            a(f"buffer_store_dwordx4 v[4:7], v1, s[44:47], s6 offen offset:{i*8}")
            a("s_nop 1")
        a("s_mov_b64 exec, -1")

    a("s_cmp_ge_u32 s2, 256")
    a("s_cbranch_scc1 L_end")
    if stamps:
        for i in range(NST):
            a(f"s_mov_b64 s[{72+2*i}:{73+2*i}], 0")
        a("s_memrealtime s[72:73]")
    a("s_load_dwordx16 s[16:31], s[0:1], 0")
    a("s_load_dwordx8 s[32:39], s[0:1], 64")
    a("s_load_dwordx4 s[40:43], s[0:1], 96")
    a("v_lshrrev_b32 v1, 6, v0")
    a("v_and_b32 v0, 63, v0")
    a("v_readfirstlane_b32 s3, v1")
    a("s_waitcnt lgkmcnt(0)")
    a("s_load_dword s4, s[42:43], 0")
    srd(44, 42, 0x10000000)
    a("s_cmp_ge_u32 s3, 4")
    a("s_cbranch_scc1 L_helper")

    srd(48, 18, 0x4000000)
    srd(52, 20, 0x4000000)
    srd(56, 34, 1024)
    a("s_and_b32 s6, s2, 31")
    a("s_lshr_b32 s6, s6, 1")
    a("s_lshl_b32 s6, s6, 5")
    a("s_and_b32 s7, s2, 1")
    a("s_lshl_b32 s7, s7, 3")
    a("s_add_u32 s69, s6, s7")
    a("s_lshl_b32 s6, s69, 1")
    a("v_and_b32 v1, 7, v0")
    a("v_lshlrev_b32 v1, 1, v1")
    a("buffer_load_ushort v10, v1, s[56:59], s6 offen")
    a("buffer_load_ushort v11, v1, s[56:59], s6 offen offset:32")
    a("v_lshrrev_b32 v6, 4, v0")
    a("v_and_b32 v7, 15, v0")
    a("v_lshlrev_b32 v1, 2, v6")
    a("v_xor_b32 v1, v1, v7")
    a("v_xor_b32 v2, 1, v1")
    a("v_xor_b32 v3, 2, v1")
    a("v_xor_b32 v4, 3, v1")
    a("v_lshlrev_b32 v8, 8, v6")
    for i in range(4):
        a(f"v_lshl_add_u32 v{1+i}, v{1+i}, 4, v8")
    a("v_lshlrev_b32 v5, 4, v0")
    a("s_lshl_b32 s60, s2, 18")
    a("s_lshl_b32 s6, s3, 12")
    a("s_add_u32 s60, s60, s6")
    a("s_mov_b32 s61, s60")
    a("s_lshl_b32 s62, s3, 15")

    nissued = [2]
    pos = {}
    def issueK(tt):
        a(f"s_add_u32 m0, s62, {(tt & 7) * 4096}")
        for i in range(4):
            a(f"buffer_load_dwordx4 v{1+i}, s[48:51], s60 offen offset:{i*1024} {kvpol} lds")
            nissued[0] += 1
        pos[("k", tt)] = nissued[0]
        a("s_add_u32 s60, s60, 16384")
    def vreg(tt, i):
        return 64 + 4 * (4 * (tt % 12) + i)
    def issueV(tt):
        for i in range(4):
            r = vreg(tt, i)
            a(f"buffer_load_dwordx4 v[{r}:{r+3}], v5, s[52:55], s61 offen offset:{i*1024} {kvpol}")
            nissued[0] += 1
            pos[("v", tt, i)] = nissued[0]
        pos[("v", tt)] = nissued[0]
        a("s_add_u32 s61, s61, 16384")
    last_wait = [10**9, 0]
    def waitfor(key):
        n = nissued[0] - pos[key]
        n = min(n, 63)
        covered = last_wait[1] - last_wait[0]
        if pos[key] <= covered: return
        a(f"s_waitcnt vmcnt({n})")
        last_wait[0], last_wait[1] = n, nissued[0]

    issueK(0); issueK(1)
    a("v_and_b32 v8, 3, v7")
    a("v_lshlrev_b32 v8, 10, v8")
    a("v_lshrrev_b32 v9, 2, v7")
    a("v_lshl_add_u32 v8, v9, 8, v8")
    a("v_add_u32 v8, s62, v8")
    a("v_xor_b32 v9, v6, v7")
    a("v_and_b32 v44, 3, v7")
    a("v_lshlrev_b32 v44, 8, v44")
    a("v_lshl_add_u32 v44, v6, 4, v44")
    a(f"v_add_u32 v44, {Q_L:#x}, v44")
    a("v_xor_b32 v45, 4, v9")
    a("v_xor_b32 v46, 8, v9")
    a("v_xor_b32 v47, 12, v9")
    a("v_lshl_add_u32 v6, v9, 4, v8")
    a("v_lshl_add_u32 v7, v45, 4, v8")
    a("v_lshl_add_u32 v9, v47, 4, v8")
    a("v_lshl_add_u32 v8, v46, 4, v8")
    a("s_mov_b32 s64, 0x00f000f0"); a("s_mov_b32 s65, 0x00f000f0")
    a("s_mov_b32 s66, 0x0f000f00"); a("s_mov_b32 s67, 0x0f000f00")
    a("s_mov_b32 s70, 0xf000f000"); a("s_mov_b32 s71, 0xf000f000")
    MASK = {1: "s[64:65]", 2: "s[66:67]", 3: "s[70:71]"}
    a("s_mov_b32 s56, 0x05040100")
    a("s_mov_b32 s57, 0x07060302")
    a(f"s_mov_b32 s58, {f32(CSC)}")
    a("s_waitcnt lgkmcnt(0)")
    a("s_mul_i32 s5, s4, 1664525")
    a("s_add_u32 s5, s5, 1013904223")
    for tt in range(2, 8): issueK(tt)
    for tt in range(0, 4): issueV(tt)
    stamp(1)
    a("s_barrier")
    stamp(2)
    QF, KT, DT, SD = 12, 28, 44, 48
    for j in range(4):
        a(f"ds_read_b128 v[{QF+4*j}:{QF+4*j+3}], v44 offset:{64*j}")
    a("s_waitcnt lgkmcnt(0)")
    def S(tt):
        waitfor(("k", tt))
        slot = tt & 7
        G = tt >> 1; t = G & 3; st = 2 * (G >> 2) + (tt & 1)
        dst = SD + 4 * st if t == 0 else DT
        for j in range(4):
            a(f"ds_read_b128 v[{KT+4*j}:{KT+4*j+3}], v{6+j} offset:{slot*4096}")
        for j in range(4):
            a(f"s_waitcnt lgkmcnt({3-j})")
            c = "0" if j == 0 else f"v[{dst}:{dst+3}]"
            a(f"v_mfma_f32_16x16x32_bf16 v[{dst}:{dst+3}], v[{KT+4*j}:{KT+4*j+3}], v[{QF+4*j}:{QF+4*j+3}], {c}")
        return (t, st)
    def Ssel(ts):
        t, st = ts
        if t != 0:
            for r in range(4):
                a(f"v_cndmask_b32 v{SD+4*st+r}, v{SD+4*st+r}, v{DT+r}, {MASK[t]}")
    for tt in range(8):
        ts = S(tt)
        issueK(tt + 8)
        Ssel(ts)
    issueV(4)
    for tt in range(8, 13):
        Ssel(S(tt))
    for k, tt in enumerate(range(13, 16)):
        issueV(5 + k)
        Ssel(S(tt))
    a(f"v_max3_f32 v44, v{SD}, v{SD+1}, v{SD+2}")
    a(f"v_max3_f32 v45, v{SD+3}, v{SD+4}, v{SD+5}")
    a(f"v_max3_f32 v46, v{SD+6}, v{SD+7}, v{SD+8}")
    a(f"v_max3_f32 v47, v{SD+9}, v{SD+10}, v{SD+11}")
    a(f"v_max3_f32 v44, v44, v{SD+12}, v{SD+13}")
    a(f"v_max3_f32 v45, v45, v{SD+14}, v{SD+15}")
    a(f"v_max3_f32 v44, v44, v46, v47")
    a(f"v_max_f32 v44, v44, v45")
    def xlane(op, r, tmp):
        a(f"{op}_dpp v{r}, v{r}, v{r} row_ror:4 row_mask:0xf bank_mask:0xf")
        a(f"{op}_dpp v{r}, v{r}, v{r} row_ror:8 row_mask:0xf bank_mask:0xf")
        a(f"v_mov_b32 v{tmp}, v{r}")
        a(f"v_permlane16_swap_b32 v{r}, v{tmp}")
        a(f"{op} v{r}, v{r}, v{tmp}")
        a(f"v_mov_b32 v{tmp}, v{r}")
        a(f"v_permlane32_swap_b32 v{r}, v{tmp}")
        a(f"{op} v{r}, v{r}, v{tmp}")
    xlane("v_max_f32", 44, 45)
    a("v_and_b32 v46, 3, v0")
    a("v_lshlrev_b32 v46, 4, v46")
    a(f"v_add_u32 v46, {M_L:#x}, v46")
    a("s_lshl_b32 s6, s3, 2")
    a("v_add_u32 v47, s6, v46")
    a("s_mov_b64 exec, 15")
    a("ds_write_b32 v47, v44")
    a("s_mov_b64 exec, -1")
    issueV(8)
    a("s_waitcnt lgkmcnt(0)")
    a("s_barrier")
    a("ds_read_b128 v[28:31], v46")
    a("s_waitcnt lgkmcnt(0)")
    a("v_max3_f32 v44, v28, v29, v30")
    a("v_max_f32 v44, v44, v31")
    a("v_mul_f32 v44, s58, v44")
    for i in range(16):
        a(f"v_fma_f32 v{SD+i}, v{SD+i}, s58, -v44")
    for i in range(16):
        a(f"v_exp_f32 v{SD+i}, v{SD+i}")
    a(f"v_add_f32 v28, v{SD}, v{SD+1}")
    a(f"v_add_f32 v29, v{SD+2}, v{SD+3}")
    a(f"v_add_f32 v30, v{SD+4}, v{SD+5}")
    a(f"v_add_f32 v31, v{SD+6}, v{SD+7}")
    for k in range(2):
        for q in range(4):
            a(f"v_add_f32 v{28+q}, v{28+q}, v{SD+8+4*k+q}")
    a("v_add_f32 v28, v28, v29")
    a("v_add_f32 v30, v30, v31")
    a("v_add_f32 v28, v28, v30")
    xlane("v_add_f32", 28, 29)
    a("s_mov_b64 exec, 15")
    a(f"ds_write_b32 v47, v28 offset:{L_L-M_L}")
    a("s_mov_b64 exec, -1")
    for i in range(8):
        a(f"v_cvt_pk_bf16_f32 v{SD+i}, v{SD+2*i}, v{SD+2*i+1}")
    issueV(9)
    a("s_waitcnt lgkmcnt(0)")
    a("s_barrier")
    stamp(3)
    OA, AT, PT = 12, 44, 56
    def PV(G, last=False):
        t = G & 3; aa = G >> 2
        src = SD + 4 * aa
        if t != 0:
            for i in range(4):
                a(f"v_mov_b32_dpp v{AT+i}, v{src+i} row_shl:{4*t} row_mask:0xf bank_mask:0xf bound_ctrl:0")
            src = AT
        X, Y = 2 * G, 2 * G + 1
        def V(e, p):
            return vreg(X if e < 4 else Y, e & 3) + p
        if not last:
            waitfor(("v", Y))
            def perms(dd):
                p, sel = dd >> 1, ("s56" if (dd & 1) == 0 else "s57")
                tb = PT + 4 * (dd & 1)
                for q in range(4):
                    a(f"v_perm_b32 v{tb+q}, v{V(2*q+1, p)}, v{V(2*q, p)}, {sel}")
            def mf(dd):
                tb = PT + 4 * (dd & 1)
                c = "0" if G == 0 else f"v[{OA+4*dd}:{OA+4*dd+3}]"
                a(f"v_mfma_f32_16x16x32_bf16 v[{OA+4*dd}:{OA+4*dd+3}], v[{src}:{src+3}], v[{tb}:{tb+3}], {c}")
            perms(0)
            for dd in range(8):
                if dd + 1 < 8: perms(dd + 1)
                mf(dd)
        else:
            TB = vreg(4, 0)
            for q in range(4):
                key = ("v", X if q < 2 else Y, (2 * q + 1) & 3)
                waitfor(key)
                for dd in range(8):
                    p, sel = dd >> 1, ("s56" if (dd & 1) == 0 else "s57")
                    a(f"v_perm_b32 v{TB+4*dd+q}, v{V(2*q+1, p)}, v{V(2*q, p)}, {sel}")
            for dd in range(8):
                a(f"v_mfma_f32_16x16x32_bf16 v[{OA+4*dd}:{OA+4*dd+3}], v[{src}:{src+3}], v[{TB+4*dd}:{TB+4*dd+3}], v[{OA+4*dd}:{OA+4*dd+3}]")
    PV(0); issueV(10)
    PV(1); issueV(11)
    PV(2); issueV(12)
    PV(3); issueV(13)
    PV(4); issueV(14); issueV(15)
    stamp(4)
    a("s_lshl_b32 s6, s3, 4")
    a(f"s_add_u32 s6, s6, {L_L:#x}")
    a("v_mov_b32 v1, s6")
    a("ds_read_b128 v[6:9], v1")
    a("v_and_b32 v2, 3, v0")
    a("v_lshlrev_b32 v2, 9, v2")
    a("v_lshrrev_b32 v3, 2, v0")
    a("v_lshl_add_u32 v2, v3, 4, v2")
    a("s_lshl_b32 s6, s3, 2")
    a(f"s_add_u32 s6, s6, {OP_L:#x}")
    a("v_add_u32 v2, s6, v2")
    a("s_lshl_b32 s6, s3, 11")
    a(f"s_add_u32 s6, s6, {OP_L:#x}")
    a("v_add_u32 v3, s6, v5")
    a("v_lshlrev_b32 v4, 3, v0")
    a("s_and_b32 s6, s2, 0xfc")
    a("s_add_u32 s6, s6, s3")
    a("s_lshl_b32 s6, s6, 2")
    a("s_and_b32 s7, s2, 3")
    a("s_add_u32 s6, s6, s7")
    a("s_lshl_b32 s63, s6, 9")
    a(f"s_add_u32 s63, s63, {OG:#x}")
    a("s_waitcnt lgkmcnt(0)")
    a("v_add_f32 v6, v6, v7")
    a("v_add_f32 v8, v8, v9")
    a("v_add_f32 v6, v6, v8")
    a("v_rcp_f32 v1, v6")
    PV(5); PV(6); PV(7, last=True)
    a("s_mov_b64 exec, 0xffff")
    for dd in range(8):
        a(f"ds_write_b128 v3, v[{OA+4*dd}:{OA+4*dd+3}] offset:{dd*256}")
    a("s_mov_b64 exec, -1")
    a("s_waitcnt lgkmcnt(0)")
    a("s_barrier")
    for w in range(4):
        a(f"ds_read2st64_b32 v[{12+2*w}:{13+2*w}], v2 offset0:{8*w} offset1:{8*w+1}")
    a("v_mov_b32 v21, s5")
    a("s_waitcnt lgkmcnt(2)")
    a("v_add_f32 v12, v12, v14")
    a("v_add_f32 v13, v13, v15")
    a("s_waitcnt lgkmcnt(0)")
    a("v_add_f32 v16, v16, v18")
    a("v_add_f32 v17, v17, v19")
    a("v_add_f32 v12, v12, v16")
    a("v_add_f32 v13, v13, v17")
    a("v_mul_f32 v12, v12, v1")
    a("v_mul_f32 v13, v13, v1")
    a("v_cvt_pk_bf16_f32 v20, v12, v13")
    a("buffer_store_dwordx2 v[20:21], v4, s[44:47], s63 offen sc1")
    stamp(5)
    a("s_cmp_lg_u32 s3, 0")
    a("s_cbranch_scc1 L_end")
    srd(48, 38, 8192)
    a("s_lshr_b32 s6, s2, 5")
    a("s_lshl_b32 s7, s6, 2")
    a(f"s_add_u32 s7, s7, {G_L:#x}")
    a("v_mov_b32 v1, s7")
    a("ds_read_b32 v1, v1")
    a("s_lshl_b32 s60, s2, 12")
    a(f"s_add_u32 s60, s60, {PG:#x}")
    a("s_lshl_b32 s6, s6, 9")
    a("s_add_u32 s6, s6, s69")
    a("s_lshl_b32 s61, s6, 1")
    a("v_lshlrev_b32 v2, 1, v0")
    a("v_lshlrev_b32 v10, 16, v10")
    a("v_lshlrev_b32 v11, 16, v11")
    a("s_waitcnt lgkmcnt(0)")
    a("v_sub_f32 v1, 1.0, v1")
    a("v_mul_f32 v10, v10, v1")
    a("v_mul_f32 v11, v11, v1")
    a(f"s_mov_b32 s62, {spin_max}")
    a("L_fin_poll:")
    for t in range(4):
        a(f"buffer_load_dwordx4 v[{12+4*t}:{15+4*t}], v5, s[44:47], s60 offen offset:{t*1024} sc1")
    a("s_waitcnt vmcnt(2)")
    a("v_xor_b32 v28, s5, v13")
    a("v_xor_b32 v29, s5, v15")
    a("v_xor_b32 v30, s5, v17")
    a("v_xor_b32 v31, s5, v19")
    a("v_add_f32 v12, v12, v16")
    a("v_add_f32 v14, v14, v18")
    a("v_or3_b32 v28, v28, v29, v30")
    a("s_waitcnt vmcnt(0)")
    a("v_xor_b32 v29, s5, v21")
    a("v_xor_b32 v30, s5, v23")
    a("v_xor_b32 v32, s5, v25")
    a("v_xor_b32 v33, s5, v27")
    a("v_add_f32 v20, v20, v24")
    a("v_add_f32 v22, v22, v26")
    a("v_or3_b32 v28, v28, v31, v29")
    a("v_or3_b32 v30, v30, v32, v33")
    a("v_add_f32 v12, v12, v20")
    a("v_add_f32 v14, v14, v22")
    a("v_or_b32 v28, v28, v30")
    a("v_cmp_ne_u32 vcc, 0, v28")
    a("s_sub_u32 s62, s62, 1")
    a("s_cbranch_scc1 L_fin_go")
    a("s_cbranch_vccz L_fin_go")
    a("s_sleep 1")
    a("s_branch L_fin_poll")
    a("L_fin_go:")
    for r, tmp in ((12, 13), (14, 15)):
        a(f"v_add_f32_dpp v{r}, v{r}, v{r} row_ror:8 row_mask:0xf bank_mask:0xf")
    for r, tmp in ((12, 13), (14, 15)):
        a(f"v_mov_b32 v{tmp}, v{r}")
    for r, tmp in ((12, 13), (14, 15)):
        a(f"v_permlane16_swap_b32 v{r}, v{tmp}")
    for r, tmp in ((12, 13), (14, 15)):
        a(f"v_add_f32 v{r}, v{r}, v{tmp}")
    for r, tmp in ((12, 13), (14, 15)):
        a(f"v_mov_b32 v{tmp}, v{r}")
    for r, tmp in ((12, 13), (14, 15)):
        a(f"v_permlane32_swap_b32 v{r}, v{tmp}")
    a("v_add3_f32 v12, v12, v13, v10") if False else None
    a("v_add_f32 v12, v12, v13")
    a("v_add_f32 v14, v14, v15")
    a("v_add_f32 v12, v12, v10")
    a("v_add_f32 v14, v14, v11")
    a("v_cvt_pk_bf16_f32 v12, v12, v14")
    a("s_mov_b64 exec, 0xff")
    a("buffer_store_short v12, v2, s[48:51], s61 offen")
    a("buffer_store_short_d16_hi v12, v2, s[48:51], s61 offen offset:32")
    a("s_cmp_lg_u32 s2, 0")
    a("s_cbranch_scc1 L_fin_done")
    a("s_mov_b64 exec, 1")
    a("v_mov_b32 v3, s5")
    a("v_mov_b32 v4, 0")
    a("buffer_store_dword v3, v4, s[44:47], 0 offen sc1")
    a("L_fin_done:")
    a("s_mov_b64 exec, -1")
    stamp(6)
    stamp_store(0)
    a("s_endpgm")

    a("L_helper:")
    a("s_setprio 3")
    a("s_sub_u32 s3, s3, 4")
    srd(52, 16, 8192)
    a("v_lshrrev_b32 v6, 4, v0")
    a("v_and_b32 v7, 15, v0")
    a("v_lshrrev_b32 v8, 2, v7")
    a("v_lshl_add_u32 v8, v6, 3, v8")
    a("v_and_b32 v9, 3, v0")
    a("v_and_b32 v2, 7, v0")
    a("v_lshlrev_b32 v2, 10, v2")
    a("v_lshl_add_u32 v2, v6, 4, v2")
    a("s_and_b32 s60, s2, 7")
    a("s_lshr_b32 s61, s2, 3")
    a("s_cmp_eq_u32 s3, 1")
    a("s_cbranch_scc1 L_h1")
    a("s_cmp_eq_u32 s3, 2")
    a("s_cbranch_scc1 L_h2")
    a("s_cmp_eq_u32 s3, 3")
    a("s_cbranch_scc1 L_h3")
    def tagcalc():
        a("s_waitcnt lgkmcnt(0)")
        a("s_mul_i32 s5, s4, 1664525")
        a("s_add_u32 s5, s5, 1013904223")
    XF, BF = 64, 128
    def xfrags():
        for j in range(16):
            a(f"buffer_load_dwordx4 v[{XF+4*j}:{XF+4*j+3}], v2, s[52:55], 0 offen offset:{j*64}")
    def gemm16(vaddr, jstride, ehstride, acc):
        def rd(j):
            a(f"ds_read_b64_tr_b16 v[{BF+4*j}:{BF+4*j+1}], v{vaddr} offset:{j*jstride}")
            a(f"ds_read_b64_tr_b16 v[{BF+4*j+2}:{BF+4*j+3}], v{vaddr} offset:{j*jstride+ehstride}")
        for j in range(6): rd(j)
        for j in range(0, 16, 2):
            outstanding_after = 2 * (min(j + 6, 16) - (j + 2))
            a(f"s_waitcnt lgkmcnt({outstanding_after})")
            for jj in (j, j + 1):
                c = "0" if jj == 0 else f"v[{acc}:{acc+3}]"
                a(f"v_mfma_f32_16x16x32_bf16 v[{acc}:{acc+3}], v[{XF+4*jj}:{XF+4*jj+3}], v[{BF+4*jj}:{BF+4*jj+3}], {c}")
            for jj in (j + 6, j + 7):
                if jj < 16: rd(jj)
    def packstore(acc, vaddr, sbase, rstride, mask):
        for r in range(4):
            a(f"v_mov_b32_dpp v{20+2*r}, v{acc+r} quad_perm:[1,0,3,2] row_mask:0xf bank_mask:0xf")
            a(f"v_mov_b32 v{21+2*r}, s5")
        for r in range(4):
            a(f"v_cvt_pk_bf16_f32 v{20+2*r}, v{acc+r}, v{20+2*r}")
        a(f"s_mov_b64 exec, {mask:#x}")
        for r in range(4):
            a(f"s_add_u32 s6, s{sbase}, {r*rstride}")
            a(f"buffer_store_dwordx2 v[{20+2*r}:{21+2*r}], v{vaddr}, s[44:47], s6 offen sc1")
        a("s_mov_b64 exec, -1")

    srd(48, 22, 0x400000)
    a("s_lshr_b32 s6, s61, 2")
    a("s_lshl_b32 s6, s6, 3")
    a("s_add_u32 s6, s6, s60")
    a("s_lshl_b32 s62, s6, 6")
    a("s_and_b32 s7, s61, 3")
    a("s_lshl_b32 s7, s7, 4")
    a("s_add_u32 s62, s62, s7")
    a("s_lshl_b32 s63, s62, 1")
    a("v_lshrrev_b32 v1, 1, v0")
    a("v_lshlrev_b32 v1, 13, v1")
    a("v_and_b32 v3, 1, v0")
    a("v_lshl_add_u32 v1, v3, 4, v1")
    for i in range(16):
        a(f"s_mov_b32 m0, {WQ_L + i*1024:#x}")
        a(f"buffer_load_dwordx4 v1, s[48:51], s63 offen {wqpol} lds")
        a(f"s_add_u32 s63, s63, {32*8192}")
    xfrags()
    a("v_lshlrev_b32 v3, 5, v8")
    a("v_lshl_add_u32 v3, v9, 3, v3")
    a(f"v_add_u32 v3, {WQ_L:#x}, v3")
    a("v_lshlrev_b32 v4, 16, v6")
    a("v_lshl_add_u32 v4, v7, 2, v4")
    a("s_lshl_b32 s63, s62, 2")
    a(f"s_add_u32 s63, s63, {QG:#x}")
    tagcalc()
    a("s_waitcnt vmcnt(0)")
    stamp(1)
    gemm16(3, 1024, 128, 12)
    packstore(12, 4, 63, 16384, 0x55555555)
    stamp(2)
    a("s_branch L_hjoin")

    a("L_h1:")
    a("s_lshr_b32 s6, s2, 5")
    a("s_lshl_b32 s62, s6, 14")
    a("s_lshr_b32 s6, s2, 2")
    a("s_and_b32 s6, s6, 7")
    a("s_lshl_b32 s6, s6, 11")
    a("s_add_u32 s62, s62, s6")
    a(f"s_add_u32 s62, s62, {QG:#x}")
    a("v_lshlrev_b32 v1, 5, v0")
    a("v_lshlrev_b32 v3, 4, v0")
    a(f"v_add_u32 v3, {Q_L:#x}, v3")
    tagcalc()
    a(f"s_mov_b32 s63, {spin_max}")
    a("s_sleep 40")
    a("L_h1_poll:")
    a("buffer_load_dwordx4 v[12:15], v1, s[44:47], s62 offen sc1")
    a("buffer_load_dwordx4 v[16:19], v1, s[44:47], s62 offen offset:16 sc1")
    a("s_waitcnt vmcnt(0)")
    a("v_xor_b32 v20, s5, v13")
    a("v_xor_b32 v21, s5, v15")
    a("v_xor_b32 v22, s5, v17")
    a("v_xor_b32 v23, s5, v19")
    a("v_or3_b32 v20, v20, v21, v22")
    a("v_or_b32 v20, v20, v23")
    a("v_cmp_ne_u32 vcc, 0, v20")
    a("s_sub_u32 s63, s63, 1")
    a("s_cbranch_scc1 L_h1_go")
    a("s_cbranch_vccz L_h1_go")
    a("s_sleep 4")
    a("s_branch L_h1_poll")
    a("L_h1_go:")
    a("v_mov_b32 v13, v14")
    a("v_mov_b32 v14, v16")
    a("v_mov_b32 v15, v18")
    a("ds_write_b128 v3, v[12:15]")
    a("s_branch L_hjoin")

    a("L_h2:")
    tagcalc()
    a("s_lshr_b32 s6, s61, 3")
    a("s_lshl_b32 s6, s6, 3")
    a("s_add_u32 s6, s6, s60")
    a("s_cmp_ge_u32 s6, 28")
    a("s_cbranch_scc1 L_hjoin")
    srd(48, 28, 512 * 3584)
    srd(56, 30, 3584)
    a("s_lshl_b32 s62, s6, 6")
    a("s_and_b32 s7, s61, 7")
    a("s_lshl_b32 s7, s7, 3")
    a("s_add_u32 s62, s62, s7")
    a("s_lshl_b32 s63, s62, 1")
    a("v_and_b32 v5, 7, v0")
    a("v_lshlrev_b32 v5, 1, v5")
    a("buffer_load_ushort v5, v5, s[56:59], s63 offen")
    a("v_mul_u32_u24 v1, 3584, v0")
    for i in range(8):
        a(f"s_mov_b32 m0, {W1_L + i*1024:#x}")
        a(f"buffer_load_dwordx4 v1, s[48:51], s63 offen {wqpol} lds")
        a(f"s_add_u32 s63, s63, {64*3584}")
    xfrags()
    a("v_lshlrev_b32 v3, 4, v8")
    a("v_and_b32 v4, 1, v0")
    a("v_lshl_add_u32 v3, v4, 3, v3")
    a(f"v_add_u32 v3, {W1_L:#x}, v3")
    a("v_mul_u32_u24 v4, 28672, v6")
    a("v_lshl_add_u32 v4, v7, 2, v4")
    a("s_lshl_b32 s63, s62, 2")
    a(f"s_add_u32 s63, s63, {HG:#x}")
    a("s_waitcnt vmcnt(0)")
    a("v_lshlrev_b32 v5, 16, v5")
    gemm16(3, 512, 64, 12)
    for r in range(4):
        a(f"v_add_f32 v{12+r}, v{12+r}, v5")
    for r in range(4):
        a(f"v_max_f32 v{12+r}, 0, v{12+r}")
    for r in range(4):
        a(f"v_mul_f32 v{12+r}, v{12+r}, v{12+r}")
    packstore(12, 4, 63, 7168, 0x00550055)
    a("s_branch L_hjoin")

    a("L_h3:")
    srd(48, 36, 1024)
    a("v_lshlrev_b32 v1, 7, v0")
    a("v_and_b32 v3, 7, v0")
    a("v_lshlrev_b32 v3, 7, v3")
    for t in range(8):
        a(f"buffer_load_dwordx4 v[{64+4*t}:{67+4*t}], v1, s[52:55], 0 offen offset:{t*16}")
        a(f"buffer_load_dwordx4 v[{128+4*t}:{131+4*t}], v3, s[48:51], 0 offen offset:{t*16}")
    a("v_mov_b32 v12, 0")
    a("v_mov_b32 v13, 0")
    a("v_lshrrev_b32 v4, 3, v0")
    a("v_lshlrev_b32 v4, 2, v4")
    a(f"v_add_u32 v4, {G_L:#x}, v4")
    tagcalc()
    a("s_waitcnt vmcnt(0)")
    for i in range(32):
        a(f"v_dot2_f32_bf16 v{12+(i&1)}, v{64+i}, v{128+i}, v{12+(i&1)}")
    a("v_add_f32 v12, v12, v13")
    a("v_add_f32_dpp v12, v12, v12 quad_perm:[1,0,3,2] row_mask:0xf bank_mask:0xf")
    a("v_add_f32_dpp v12, v12, v12 quad_perm:[2,3,0,1] row_mask:0xf bank_mask:0xf")
    a("v_add_f32_dpp v12, v12, v12 row_half_mirror row_mask:0xf bank_mask:0xf")
    a(f"v_mul_f32 v12, {f32(-LOG2E)}, v12")
    a("v_exp_f32 v12, v12")
    a("v_add_f32 v12, 1.0, v12")
    a("v_rcp_f32 v12, v12")
    a("ds_write_b32 v4, v12")

    a("L_hjoin:")
    a("s_waitcnt lgkmcnt(0)")
    a("s_barrier")
    srd(48, 24, 0x400000)
    srd(56, 32, 1792 * 1024)
    a("s_and_b32 s62, s3, 1")
    a("s_lshr_b32 s63, s3, 1")
    a("s_lshl_b32 s64, s60, 7")
    a("s_lshl_b32 s6, s63, 6")
    a("s_add_u32 s64, s64, s6")
    a("s_lshl_b32 s65, s61, 17")
    a("s_add_u32 s65, s65, s64")
    a("s_mul_i32 s66, s61, 57344")
    a("s_add_u32 s66, s66, s64")
    a("s_lshl_b32 s67, s3, 15")
    a("v_lshrrev_b32 v1, 2, v0")
    a("v_lshlrev_b32 v1, 10, v1")
    a("v_lshl_add_u32 v1, v9, 4, v1")
    a("v_lshlrev_b32 v3, 6, v8")
    a("v_lshl_add_u32 v3, v9, 3, v3")
    a("v_add_u32 v3, s67, v3")
    a("v_lshrrev_b32 v10, 2, v7")
    a("v_mul_u32_u24 v4, 7168, v10")
    a("v_min_u32 v5, 2, v6")
    a("v_lshl_add_u32 v5, v5, 5, v4")
    a("v_lshl_add_u32 v4, v6, 5, v4")
    a("s_mul_i32 s68, s62, 28672")
    a("s_mul_i32 s6, s61, 224")
    a("s_add_u32 s68, s68, s6")
    a(f"s_add_u32 s68, s68, {HG:#x}")
    a("v_lshlrev_b32 v11, 10, v6")
    a("s_lshl_b32 s69, s62, 12")
    a("s_lshl_b32 s6, s61, 5")
    a("s_add_u32 s69, s69, s6")
    a(f"s_add_u32 s69, s69, {LG:#x}")
    a("v_lshlrev_b32 v2, 16, v10")
    a("v_lshl_add_u32 v2, v9, 9, v2")
    a("v_lshl_add_u32 v2, v6, 5, v2")
    a("s_lshl_b32 s70, s62, 18")
    a("s_lshl_b32 s6, s61, 11")
    a("s_add_u32 s70, s70, s6")
    a(f"s_add_u32 s70, s70, {OG:#x}")
    a("v_lshlrev_b32 v10, 17, v6")
    a("v_lshrrev_b32 v12, 3, v7")
    a("v_lshl_add_u32 v10, v12, 12, v10")
    a("v_and_b32 v12, 7, v7")
    a("v_lshl_add_u32 v10, v12, 4, v10")
    a("s_lshl_b32 s71, s62, 19")
    a("s_lshl_b32 s6, s60, 14")
    a("s_add_u32 s71, s71, s6")
    a("s_lshl_b32 s6, s63, 13")
    a("s_add_u32 s71, s71, s6")
    a("s_lshl_b32 s6, s61, 7")
    a("s_add_u32 s71, s71, s6")
    a(f"s_add_u32 s71, s71, {PG:#x}")
    a("s_lshl_b32 s6, s62, 4")
    a(f"s_add_u32 s6, s6, {G_L:#x}")
    a("v_lshl_add_u32 v12, v6, 2, s6")
    a("ds_read_b32 v60, v12")
    a("s_waitcnt lgkmcnt(0)")
    a("s_barrier")
    a("s_barrier")
    a("s_cmp_lg_u32 s3, 0")
    a("s_cbranch_scc1 L_nolse")
    a("v_lshlrev_b32 v12, 4, v9")
    a(f"v_add_u32 v12, {M_L:#x}, v12")
    a("ds_read_b128 v[16:19], v12")
    a(f"ds_read_b128 v[20:23], v12 offset:{L_L-M_L}")
    a("s_and_b32 s6, s2, 0xfc")
    a("s_lshl_b32 s6, s6, 5")
    a("s_and_b32 s7, s2, 3")
    a("s_lshl_b32 s7, s7, 3")
    a("s_add_u32 s6, s6, s7")
    a(f"s_add_u32 s6, s6, {LG:#x}")
    a("v_lshlrev_b32 v13, 5, v9")
    a("s_waitcnt lgkmcnt(0)")
    a("v_max3_f32 v16, v16, v17, v18")
    a("v_max_f32 v16, v16, v19")
    a("v_add_f32 v20, v20, v21")
    a("v_add_f32 v22, v22, v23")
    a("v_add_f32 v20, v20, v22")
    a("v_log_f32 v20, v20")
    a(f"v_mov_b32 v21, {f32(CSC)}")
    a("v_fma_f32 v14, v16, v21, v20")
    a("v_mov_b32 v15, s5")
    a("s_mov_b64 exec, 15")
    a("buffer_store_dwordx2 v[14:15], v13, s[44:47], s6 offen sc1")
    a("s_mov_b64 exec, -1")
    a("L_nolse:")
    for i in range(8):
        a(f"s_add_u32 m0, s67, {i*1024}")
        a(f"buffer_load_dwordx4 v1, s[48:51], s65 offen {wopol} lds")
        a("s_add_u32 s65, s65, 16384")
    for i in range(4):
        a(f"s_add_u32 m0, s67, {8192 + i*1024}")
        a(f"buffer_load_dwordx4 v1, s[56:59], s66 offen {wopol} lds")
        a("s_add_u32 s66, s66, 16384")
    a(f"s_mov_b32 s64, {spin_max}")
    a("L_p1_poll:")
    a("buffer_load_dwordx4 v[12:15], v4, s[44:47], s68 offen sc1")
    a("buffer_load_dwordx4 v[16:19], v4, s[44:47], s68 offen offset:16 sc1")
    a("buffer_load_dwordx4 v[20:23], v5, s[44:47], s68 offen offset:128 sc1")
    a("buffer_load_dwordx4 v[24:27], v5, s[44:47], s68 offen offset:144 sc1")
    a("buffer_load_dwordx4 v[28:31], v11, s[44:47], s69 offen sc1")
    a("buffer_load_dwordx4 v[32:35], v11, s[44:47], s69 offen offset:16 sc1")
    a("s_waitcnt vmcnt(0)")
    for k in range(12):
        a(f"v_xor_b32 v{36+k}, s5, v{13+2*k}")
    a("v_or3_b32 v36, v36, v37, v38")
    a("v_or3_b32 v39, v39, v40, v41")
    a("v_or3_b32 v42, v42, v43, v44")
    a("v_or3_b32 v45, v45, v46, v47")
    a("v_or3_b32 v36, v36, v39, v42")
    a("v_or_b32 v36, v36, v45")
    a("v_cmp_ne_u32 vcc, 0, v36")
    a("s_sub_u32 s64, s64, 1")
    a("s_cbranch_scc1 L_p1_go")
    a("s_cbranch_vccz L_p1_go")
    a("s_sleep 16")
    a("s_branch L_p1_poll")
    a("L_p1_go:")
    WOF, W2F = 128, 160
    cnt = 0
    for j in range(2):
        for aa in range(2):
            for eh in range(2):
                r = W2F + 8 * j + 4 * aa + 2 * eh
                a(f"ds_read_b64_tr_b16 v[{r}:{r+1}], v3 offset:{8192 + j*2048 + eh*256 + aa*32}")
    a("s_mov_b32 s6, 0")
    a("s_mov_b32 s7, 0xffff0000")
    for k in range(4):
        a(f"v_mov_b32 v{36+k}, v{12+2*k}")
    for k in range(4):
        a(f"v_cndmask_b32 v{40+k}, v{20+2*k}, 0, s[6:7]")
    a("v_max3_f32 v44, v28, v30, v32")
    a("v_max_f32 v44, v44, v34")
    for k in range(4):
        a(f"v_sub_f32 v{48+k}, v{28+2*k}, v44")
    for k in range(4):
        a(f"v_exp_f32 v{48+k}, v{48+k}")
    a("s_waitcnt lgkmcnt(0)")
    for aa in range(2):
        for j in range(2):
            c = "0" if j == 0 else f"v[{52+4*aa}:{55+4*aa}]"
            a(f"v_mfma_f32_16x16x32_bf16 v[{52+4*aa}:{55+4*aa}], v[{36+4*j}:{39+4*j}], v[{W2F+8*j+4*aa}:{W2F+8*j+4*aa+3}], {c}")
    for j in range(4):
        for aa in range(2):
            for eh in range(2):
                r = WOF + 8 * j + 4 * aa + 2 * eh
                a(f"ds_read_b64_tr_b16 v[{r}:{r+1}], v3 offset:{j*2048 + eh*256 + aa*32}")
        if j == 1: a("s_waitcnt lgkmcnt(4)")
    a("v_add_f32 v44, v48, v49")
    a("v_add_f32 v45, v50, v51")
    a("v_add_f32 v44, v44, v45")
    a("v_rcp_f32 v44, v44")
    a("v_sub_f32 v45, 1.0, v60")
    a("v_mul_f32 v44, v44, v60")
    for k in range(4):
        a(f"v_mul_f32 v{48+k}, v{48+k}, v44")
    a("v_mul_f32 v61, v52, v45")
    a("v_mul_f32 v62, v56, v45")
    a("v_mov_b32 v65, s5")
    a("v_mov_b32 v67, s5")
    a(f"s_mov_b32 s64, {spin_max}")
    a("s_waitcnt lgkmcnt(0)")
    stamp(3)
    a("s_barrier")
    stamp(4)
    a("L_p2_poll:")
    for j in range(4):
        a(f"buffer_load_dwordx4 v[{12+8*j}:{15+8*j}], v2, s[44:47], s70 offen offset:{j*128} sc1")
        a(f"buffer_load_dwordx4 v[{16+8*j}:{19+8*j}], v2, s[44:47], s70 offen offset:{j*128+16} sc1")
    AF = 68
    for j in range(4):
        a(f"s_waitcnt vmcnt({6-2*j})")
        for k in range(4):
            a(f"v_mov_b32 v{AF+4*j+k}, v{12+8*j+2*k}")
        for k in range(4):
            a(f"v_xor_b32 v{13+8*j+2*k}, s5, v{13+8*j+2*k}")
        for aa in range(2):
            c = "0" if j == 0 else f"v[{52+4*aa}:{55+4*aa}]"
            a(f"v_mfma_f32_16x16x32_bf16 v[{52+4*aa}:{55+4*aa}], v[{AF+4*j}:{AF+4*j+3}], v[{WOF+8*j+4*aa}:{WOF+8*j+4*aa+3}], {c}")
        a(f"v_or3_b32 v{13+8*j}, v{13+8*j}, v{15+8*j}, v{17+8*j}")
        if j == 0:
            a("v_or_b32 v84, v13, v19")
        else:
            a(f"v_or3_b32 v84, v84, v{13+8*j}, v{19+8*j}")
    a("v_cmp_ne_u32 vcc, 0, v84")
    a("s_sub_u32 s64, s64, 1")
    a("s_cbranch_scc1 L_p2_go")
    a("s_cbranch_vccz L_p2_go")
    a("s_sleep 1")
    a("s_branch L_p2_poll")
    a("L_p2_go:")
    a("s_nop 2")
    a("v_fma_f32 v64, v52, v48, v61")
    a("v_fma_f32 v66, v56, v48, v62")
    for r in range(1, 4):
        a(f"v_fma_f32 v64, v{52+r}, v{48+r}, v64")
        a(f"v_fma_f32 v66, v{56+r}, v{48+r}, v66")
    a("buffer_store_dwordx4 v[64:67], v10, s[44:47], s71 offen sc1")
    stamp(5)
    if stamps:
        a("s_cmp_lg_u32 s3, 0")
        a("s_cbranch_scc1 L_end")
        stamp_store(1)
    a("L_end:")
    a("s_endpgm")
    a.raw('.section .rodata,"a"')
    a.raw(".p2align 6")
    a.raw(f".amdhsa_kernel {NAME}_kernel")
    a.raw("  .amdhsa_next_free_vgpr 256")
    a.raw("  .amdhsa_next_free_sgpr 96")
    a.raw("  .amdhsa_accum_offset 256")
    a.raw("  .amdhsa_group_segment_fixed_size 0")
    a.raw("  .amdhsa_kernarg_size 112")
    a.raw("  .amdhsa_user_sgpr_count 2")
    a.raw("  .amdhsa_user_sgpr_kernarg_segment_ptr 1")
    a.raw("  .amdhsa_system_sgpr_workgroup_id_x 1")
    a.raw(".end_amdhsa_kernel")
    return a.text()

if __name__ == "__main__":
    out = sys.argv[1]
    kw = json.loads(sys.argv[2]) if len(sys.argv) > 2 else {}
    open(out, "w").write(gen(**kw))
```

```python
import sys, json, math, struct
from asmdsl import Asm
NAME = "gated_mix__gqa_block_cached__dense_activation_squared_relu__decode"

QF, HF, GG = 0x1000, 0x2000, 0x3000
QP, HP, OG, LG, PG = 0x80000, 0x100000, 0x180000, 0x10000, 0x200000
STAMP = 0x8000000
WQ_L, OP_L, W1_L = 0x20000, 0x20000, 0x0
LDS_TOTAL = 0x28000
def f32(x): return "0x%08x" % struct.unpack("<I", struct.pack("<f", x))[0]
CSC = math.log2(math.e) / math.sqrt(128.0)
LOG2E = math.log2(math.e)
HEADER = open("cdna_kernels/" + NAME + ".s.ref").read().split("; Override launch geometry")[0]

def gen(stamps=False, kvpol="nt", wpol="nt", spin_max=400000, sched=2, D1=8, D2=63, xcdkb=True, p2sleep=0):
    a = Asm()
    NST = 8
    W1_L = 0x24000
    Q_L, M_L, L_L, G_L, HA_L = 0x26000, 0x26400, 0x26440, 0x26480, 0x26500
    LDS_TOTAL = 0x26500 + 8 * 144
    WO_L, W2_L, AS_L = 0x0, 0x4000, 0x8000
    a.raw(HEADER.rstrip())
    a.raw(f"; @launch grid=(256,1,1) block=(512,1,1) lds={LDS_TOTAL}")
    a.raw('.amdgcn_target "amdgcn-amd-amdhsa--gfx950"')
    a.raw(".text")
    a.raw(f".globl {NAME}_kernel")
    a.raw(".p2align 8")
    a.raw(f".type {NAME}_kernel,@function")
    a.label(f"{NAME}_kernel")

    def srd(d, base, size):
        a(f"s_mov_b32 s{d}, s{base}")
        a(f"s_mov_b32 s{d+1}, s{base+1}")
        a(f"s_mov_b32 s{d+2}, {size:#x}")
        a(f"s_mov_b32 s{d+3}, 0x00020000")
    def stamp(i):
        if stamps:
            a(f"s_memrealtime s[{72+2*i}:{73+2*i}]")
            a("s_waitcnt lgkmcnt(0)")
    def stamp_store(slot_sreg_or_imm):
        if not stamps: return
        a(f"s_lshl_b32 s6, s2, 3")
        a(f"s_add_u32 s6, s6, {slot_sreg_or_imm}")
        a(f"s_mul_i32 s6, s6, {NST*8}")
        a(f"s_add_u32 s6, s6, {STAMP:#x}")
        a("s_mov_b64 exec, 1")
        a("v_mov_b32 v1, 0")
        for i in range(0, NST, 2):
            for k in range(4):
                a(f"v_mov_b32 v{4+k}, s{72+2*i+k}")
            a(f"buffer_store_dwordx4 v[4:7], v1, s[44:47], s6 offen offset:{i*8}")
            a("s_nop 1")
        a("s_mov_b64 exec, -1")
    def tagcalc():
        a("s_waitcnt lgkmcnt(0)")
        a("s_mul_i32 s5, s4, 1664525")
        a("s_add_u32 s5, s5, 1013904223")

    a("s_cmp_ge_u32 s2, 256")
    a("s_cbranch_scc1 L_end")
    if stamps:
        for i in range(NST):
            a(f"s_mov_b64 s[{72+2*i}:{73+2*i}], 0")
        a("s_memrealtime s[72:73]")
    a("s_load_dwordx16 s[16:31], s[0:1], 0")
    a("s_load_dwordx8 s[32:39], s[0:1], 64")
    a("s_load_dwordx4 s[40:43], s[0:1], 96")
    a("v_lshrrev_b32 v1, 6, v0")
    a("v_and_b32 v0, 63, v0")
    a("v_readfirstlane_b32 s3, v1")
    a("v_lshrrev_b32 v6, 4, v0")
    a("v_and_b32 v7, 15, v0")
    a("v_lshrrev_b32 v1, 3, v0")
    a("v_lshlrev_b32 v1, 13, v1")
    a("v_and_b32 v3, 7, v0")
    a("v_lshl_add_u32 v1, v3, 4, v1")
    a(f"v_add_u32 v2, {65536-1024}, v1")
    a("s_waitcnt lgkmcnt(0)")
    a("s_load_dword s4, s[42:43], 0")
    srd(48, 22, 0x400000)
    a("s_and_b32 s6, s2, 3")
    a("s_lshl_b32 s62, s6, 20")
    a("s_lshr_b32 s6, s2, 2")
    a("s_lshl_b32 s6, s6, 7")
    a("s_add_u32 s62, s62, s6")
    a("s_lshl_b32 s6, s3, 17")
    a("s_add_u32 s62, s62, s6")
    a("s_lshl_b32 s6, s3, 11")
    a(f"s_add_u32 m0, s6, {WQ_L:#x}")
    a(f"buffer_load_dwordx4 v1, s[48:51], s62 offen {wpol} lds")
    a(f"buffer_load_dwordx4 v2, s[48:51], s62 offen offset:1024 {wpol} lds")
    srd(44, 42, 0x10000000)
    a("s_cmp_ge_u32 s3, 4")
    a("s_cbranch_scc1 L_helper")

    srd(48, 18, 0x4000000)
    srd(52, 20, 0x4000000)
    a("v_lshlrev_b32 v1, 2, v6")
    a("v_xor_b32 v1, v1, v7")
    a("v_xor_b32 v2, 1, v1")
    a("v_xor_b32 v3, 2, v1")
    a("v_xor_b32 v4, 3, v1")
    a("v_lshlrev_b32 v8, 8, v6")
    for i in range(4):
        a(f"v_lshl_add_u32 v{1+i}, v{1+i}, 4, v8")
    a("v_lshlrev_b32 v5, 4, v0")
    a("s_lshl_b32 s60, s2, 18")
    a("s_lshl_b32 s6, s3, 12")
    a("s_add_u32 s60, s60, s6")
    a("s_mov_b32 s61, s60")
    a("s_lshl_b32 s62, s3, 15")

    nissued = [2]
    pos = {}
    covered = [0]
    Dcur = [D1]
    def throttle():
        D = Dcur[0]
        if D >= 63: return
        if nissued[0] - covered[0] > D - 1:
            a(f"s_waitcnt vmcnt({D-1})")
            covered[0] = nissued[0] - (D - 1)
    def issueK(tt):
        a(f"s_add_u32 m0, s62, {(tt & 7) * 4096}")
        for i in range(4):
            throttle()
            a(f"buffer_load_dwordx4 v{1+i}, s[48:51], s60 offen offset:{i*1024} {kvpol} lds")
            nissued[0] += 1
        pos[("k", tt)] = nissued[0]
        a("s_add_u32 s60, s60, 16384")
    def vreg(tt, i):
        return 64 + 4 * (4 * (tt % 12) + i)
    def issueV(tt):
        for i in range(4):
            r = vreg(tt, i)
            throttle()
            a(f"buffer_load_dwordx4 v[{r}:{r+3}], v5, s[52:55], s61 offen offset:{i*1024} {kvpol}")
            nissued[0] += 1
            pos[("v", tt, i)] = nissued[0]
        pos[("v", tt)] = nissued[0]
        a("s_add_u32 s61, s61, 16384")
    def waitfor(key):
        if pos[key] <= covered[0]: return
        n = min(nissued[0] - pos[key], 63)
        a(f"s_waitcnt vmcnt({n})")
        covered[0] = nissued[0] - n

    Dcur[0] = 63
    issueK(0); issueK(1)
    Dcur[0] = D1
    srd(56, 34, 1024)
    a("s_and_b32 s6, s2, 31")
    a("s_lshr_b32 s6, s6, 1")
    a("s_lshl_b32 s6, s6, 5")
    a("s_and_b32 s7, s2, 1")
    a("s_lshl_b32 s7, s7, 3")
    a("s_add_u32 s69, s6, s7")
    a("s_lshl_b32 s6, s69, 1")
    a("v_and_b32 v12, 7, v0")
    a("v_lshlrev_b32 v12, 1, v12")
    a("buffer_load_ushort v10, v12, s[56:59], s6 offen")
    a("buffer_load_ushort v11, v12, s[56:59], s6 offen offset:32")
    nissued[0] += 2
    a("v_and_b32 v8, 3, v7")
    a("v_lshlrev_b32 v8, 10, v8")
    a("v_lshrrev_b32 v9, 2, v7")
    a("v_lshl_add_u32 v8, v9, 8, v8")
    a("v_add_u32 v8, s62, v8")
    a("v_xor_b32 v9, v6, v7")
    a("v_and_b32 v44, 3, v7")
    a("v_lshlrev_b32 v44, 8, v44")
    a("v_lshl_add_u32 v44, v6, 4, v44")
    a(f"v_add_u32 v44, {Q_L:#x}, v44")
    a("v_xor_b32 v45, 4, v9")
    a("v_xor_b32 v46, 8, v9")
    a("v_xor_b32 v47, 12, v9")
    a("v_lshl_add_u32 v6, v9, 4, v8")
    a("v_lshl_add_u32 v7, v45, 4, v8")
    a("v_lshl_add_u32 v9, v47, 4, v8")
    a("v_lshl_add_u32 v8, v46, 4, v8")
    a("s_mov_b32 s64, 0x00f000f0"); a("s_mov_b32 s65, 0x00f000f0")
    a("s_mov_b32 s66, 0x0f000f00"); a("s_mov_b32 s67, 0x0f000f00")
    a("s_mov_b32 s70, 0xf000f000"); a("s_mov_b32 s71, 0xf000f000")
    MASK = {1: "s[64:65]", 2: "s[66:67]", 3: "s[70:71]"}
    a("s_mov_b32 s8, 0x05040100")
    a("s_mov_b32 s9, 0x07060302")
    a(f"s_mov_b32 s10, {f32(CSC)}")
    tagcalc()
    a("s_waitcnt vmcnt(10)")
    covered[0] = 2
    a("s_barrier")
    stamp(7)
    for tt in range(2, 8): issueK(tt)
    npre = 8 if sched == 2 else 4
    for tt in range(0, npre): issueV(tt)
    stamp(1)
    a("s_barrier")
    stamp(2)
    Dcur[0] = D2
    QFR, KT, DT, SD = 12, 28, 44, 48
    for j in range(4):
        a(f"ds_read_b128 v[{QFR+4*j}:{QFR+4*j+3}], v44 offset:{64*j}")
    a("s_waitcnt lgkmcnt(0)")
    def S(tt):
        waitfor(("k", tt))
        slot = tt & 7
        G = tt >> 1; t = G & 3; st = 2 * (G >> 2) + (tt & 1)
        dst = SD + 4 * st if t == 0 else DT
        for j in range(4):
            a(f"ds_read_b128 v[{KT+4*j}:{KT+4*j+3}], v{6+j} offset:{slot*4096}")
        for j in range(4):
            a(f"s_waitcnt lgkmcnt({3-j})")
            c = "0" if j == 0 else f"v[{dst}:{dst+3}]"
            a(f"v_mfma_f32_16x16x32_bf16 v[{dst}:{dst+3}], v[{KT+4*j}:{KT+4*j+3}], v[{QFR+4*j}:{QFR+4*j+3}], {c}")
        return (t, st)
    def Ssel(ts):
        t, st = ts
        if t != 0:
            for r in range(4):
                a(f"v_cndmask_b32 v{SD+4*st+r}, v{SD+4*st+r}, v{DT+r}, {MASK[t]}")
    for tt in range(8):
        ts = S(tt)
        issueK(tt + 8)
        Ssel(ts)
    vn = [npre]
    def nextV():
        issueV(vn[0]); vn[0] += 1
    if sched == 2:
        for tt in range(8, 13): Ssel(S(tt))
        nextV(); Ssel(S(13))
        nextV(); Ssel(S(14))
        nextV(); Ssel(S(15))
    else:
        nextV()
        for tt in range(8, 13): Ssel(S(tt))
        for tt in range(13, 16):
            nextV(); Ssel(S(tt))
    a(f"v_max3_f32 v44, v{SD}, v{SD+1}, v{SD+2}")
    a(f"v_max3_f32 v45, v{SD+3}, v{SD+4}, v{SD+5}")
    a(f"v_max3_f32 v46, v{SD+6}, v{SD+7}, v{SD+8}")
    a(f"v_max3_f32 v47, v{SD+9}, v{SD+10}, v{SD+11}")
    a(f"v_max3_f32 v44, v44, v{SD+12}, v{SD+13}")
    a(f"v_max3_f32 v45, v45, v{SD+14}, v{SD+15}")
    a(f"v_max3_f32 v44, v44, v46, v47")
    a(f"v_max_f32 v44, v44, v45")
    def xlane(op, r, tmp):
        a(f"{op}_dpp v{r}, v{r}, v{r} row_ror:4 row_mask:0xf bank_mask:0xf")
        a(f"{op}_dpp v{r}, v{r}, v{r} row_ror:8 row_mask:0xf bank_mask:0xf")
        a(f"v_mov_b32 v{tmp}, v{r}")
        a(f"v_permlane16_swap_b32 v{r}, v{tmp}")
        a(f"{op} v{r}, v{r}, v{tmp}")
        a(f"v_mov_b32 v{tmp}, v{r}")
        a(f"v_permlane32_swap_b32 v{r}, v{tmp}")
        a(f"{op} v{r}, v{r}, v{tmp}")
    xlane("v_max_f32", 44, 45)
    a("v_and_b32 v46, 3, v0")
    a("v_lshlrev_b32 v46, 4, v46")
    a(f"v_add_u32 v46, {M_L:#x}, v46")
    a("s_lshl_b32 s6, s3, 2")
    a("v_add_u32 v47, s6, v46")
    a("s_mov_b64 exec, 15")
    a("ds_write_b32 v47, v44")
    a("s_mov_b64 exec, -1")
    if sched != 2: nextV()
    a("s_waitcnt lgkmcnt(0)")
    a("s_barrier")
    a("ds_read_b128 v[28:31], v46")
    a("s_waitcnt lgkmcnt(0)")
    a("v_max3_f32 v44, v28, v29, v30")
    a("v_max_f32 v44, v44, v31")
    a("v_mul_f32 v44, s10, v44")
    for i in range(16):
        a(f"v_fma_f32 v{SD+i}, v{SD+i}, s10, -v44")
    for i in range(16):
        a(f"v_exp_f32 v{SD+i}, v{SD+i}")
    a(f"v_add_f32 v28, v{SD}, v{SD+1}")
    a(f"v_add_f32 v29, v{SD+2}, v{SD+3}")
    a(f"v_add_f32 v30, v{SD+4}, v{SD+5}")
    a(f"v_add_f32 v31, v{SD+6}, v{SD+7}")
    for k in range(2):
        for q in range(4):
            a(f"v_add_f32 v{28+q}, v{28+q}, v{SD+8+4*k+q}")
    a("v_add_f32 v28, v28, v29")
    a("v_add_f32 v30, v30, v31")
    a("v_add_f32 v28, v28, v30")
    xlane("v_add_f32", 28, 29)
    a("s_mov_b64 exec, 15")
    a(f"ds_write_b32 v47, v28 offset:{L_L-M_L}")
    a("s_mov_b64 exec, -1")
    for i in range(8):
        a(f"v_cvt_pk_bf16_f32 v{SD+i}, v{SD+2*i}, v{SD+2*i+1}")
    nextV()
    a("s_waitcnt lgkmcnt(0)")
    a("s_barrier")
    stamp(3)
    OA, AT, PT = 12, 44, 56
    def PV(G, last=False):
        t = G & 3; aa = G >> 2
        src = SD + 4 * aa
        if t != 0:
            for i in range(4):
                a(f"v_mov_b32_dpp v{AT+i}, v{src+i} row_shl:{4*t} row_mask:0xf bank_mask:0xf bound_ctrl:0")
            src = AT
        X, Y = 2 * G, 2 * G + 1
        def V(e, p):
            return vreg(X if e < 4 else Y, e & 3) + p
        if not last:
            waitfor(("v", Y))
            def perms(dd):
                p, sel = dd >> 1, ("s8" if (dd & 1) == 0 else "s9")
                tb = PT + 4 * (dd & 1)
                for q in range(4):
                    a(f"v_perm_b32 v{tb+q}, v{V(2*q+1, p)}, v{V(2*q, p)}, {sel}")
            def mf(dd):
                tb = PT + 4 * (dd & 1)
                c = "0" if G == 0 else f"v[{OA+4*dd}:{OA+4*dd+3}]"
                a(f"v_mfma_f32_16x16x32_bf16 v[{OA+4*dd}:{OA+4*dd+3}], v[{src}:{src+3}], v[{tb}:{tb+3}], {c}")
            perms(0)
            for dd in range(8):
                if dd + 1 < 8: perms(dd + 1)
                mf(dd)
        else:
            TB = vreg(4, 0)
            for q in range(4):
                key = ("v", X if q < 2 else Y, (2 * q + 1) & 3)
                waitfor(key)
                for dd in range(8):
                    p, sel = dd >> 1, ("s8" if (dd & 1) == 0 else "s9")
                    a(f"v_perm_b32 v{TB+4*dd+q}, v{V(2*q+1, p)}, v{V(2*q, p)}, {sel}")
            for dd in range(8):
                a(f"v_mfma_f32_16x16x32_bf16 v[{OA+4*dd}:{OA+4*dd+3}], v[{src}:{src+3}], v[{TB+4*dd}:{TB+4*dd+3}], v[{OA+4*dd}:{OA+4*dd+3}]")
    if sched == 2:
        PV(0); nextV()
        PV(1); nextV()
        PV(2); nextV()
        PV(3); nextV()
        PV(4)
    else:
        PV(0); nextV()
        PV(1); nextV()
        PV(2); nextV()
        PV(3); nextV()
        PV(4); nextV(); nextV()
    assert vn[0] == 16
    stamp(4)
    a("s_lshl_b32 s6, s3, 4")
    a(f"s_add_u32 s6, s6, {L_L:#x}")
    a("v_mov_b32 v1, s6")
    a("ds_read_b128 v[6:9], v1")
    a(f"v_mov_b32 v1, {G_L:#x}")
    a("ds_read_b32 v60, v1")
    a("v_and_b32 v2, 1, v0")
    a("v_lshlrev_b32 v2, 10, v2")
    a("v_bfe_u32 v3, v0, 1, 4")
    a("v_lshl_add_u32 v2, v3, 4, v2")
    a("v_lshrrev_b32 v3, 5, v0")
    a("v_lshl_add_u32 v2, v3, 12, v2")
    a("s_lshl_b32 s6, s3, 2")
    a(f"s_add_u32 s6, s6, {OP_L:#x}")
    a("v_add_u32 v2, s6, v2")
    a("s_lshl_b32 s6, s3, 11")
    a(f"s_add_u32 s6, s6, {OP_L:#x}")
    a("v_add_u32 v3, s6, v5")
    a("s_waitcnt lgkmcnt(0)")
    a("v_add_f32 v6, v6, v7")
    a("v_add_f32 v8, v8, v9")
    a("v_add_f32 v6, v6, v8")
    a("v_rcp_f32 v1, v6")
    a("v_sub_f32 v9, 1.0, v60")
    a("v_mul_f32 v1, v1, v60")
    a("v_lshlrev_b32 v10, 16, v10")
    a("v_lshlrev_b32 v11, 16, v11")
    a("v_mul_f32 v10, v10, v9")
    a("v_mul_f32 v11, v11, v9")
    a("s_and_b32 s6, s2, 0x1c")
    a("s_add_u32 s6, s6, s3")
    a("s_lshl_b32 s63, s6, 14")
    a("s_lshr_b32 s6, s2, 5")
    a("s_lshl_b32 s6, s6, 11")
    a("s_add_u32 s63, s63, s6")
    a("s_and_b32 s6, s2, 3")
    a("s_lshl_b32 s6, s6, 9")
    a("s_add_u32 s63, s63, s6")
    a(f"s_add_u32 s63, s63, {OG:#x}")
    PV(5); PV(6); PV(7, last=True)
    a("s_mov_b64 exec, 0xffff")
    for dd in range(8):
        a(f"ds_write_b128 v3, v[{OA+4*dd}:{OA+4*dd+3}] offset:{dd*256}")
    a("s_mov_b64 exec, -1")
    a("s_waitcnt lgkmcnt(0)")
    a("s_barrier")
    a("ds_read2st64_b32 v[12:13], v2 offset0:0 offset1:1")
    a("ds_read2st64_b32 v[14:15], v2 offset0:2 offset1:3")
    a("ds_read2st64_b32 v[16:17], v2 offset0:8 offset1:9")
    a("ds_read2st64_b32 v[18:19], v2 offset0:10 offset1:11")
    a("v_mov_b32 v21, s5")
    a("v_mov_b32 v23, s5")
    a("s_waitcnt lgkmcnt(0)")
    for k in range(4):
        a(f"v_add_f32 v{12+k}, v{12+k}, v{16+k}")
    for k in range(4):
        a(f"v_mov_b32 v{16+k}, v{12+k}")
    for k in range(4):
        a(f"v_permlane32_swap_b32 v{12+k}, v{16+k}")
    for k in range(4):
        a(f"v_add_f32 v{12+k}, v{12+k}, v{16+k}")
    for k in range(4):
        a(f"v_mul_f32 v{12+k}, v{12+k}, v1")
    a("v_cvt_pk_bf16_f32 v20, v12, v13")
    a("v_cvt_pk_bf16_f32 v22, v14, v15")
    a("s_mov_b64 exec, 0xffffffff")
    a("buffer_store_dwordx4 v[20:23], v5, s[44:47], s63 offen sc1")
    a("s_mov_b64 exec, -1")
    stamp(5)
    a("s_cmp_lg_u32 s3, 0")
    a("s_cbranch_scc1 L_end")
    srd(48, 38, 8192)
    a("s_lshr_b32 s6, s2, 5")
    a("s_lshl_b32 s60, s2, 12")
    a(f"s_add_u32 s60, s60, {PG:#x}")
    a("s_lshl_b32 s6, s6, 9")
    a("s_add_u32 s6, s6, s69")
    a("s_lshl_b32 s61, s6, 1")
    a("v_lshlrev_b32 v2, 1, v0")
    a(f"s_mov_b32 s62, {spin_max}")
    a("L_fin_poll:")
    for t in range(4):
        a(f"buffer_load_dwordx4 v[{12+4*t}:{15+4*t}], v5, s[44:47], s60 offen offset:{t*1024} sc1")
    a("s_waitcnt vmcnt(2)")
    a("v_xor_b32 v28, s5, v13")
    a("v_xor_b32 v29, s5, v15")
    a("v_xor_b32 v30, s5, v17")
    a("v_xor_b32 v31, s5, v19")
    a("v_add_f32 v12, v12, v16")
    a("v_add_f32 v14, v14, v18")
    a("v_or3_b32 v28, v28, v29, v30")
    a("s_waitcnt vmcnt(0)")
    a("v_xor_b32 v29, s5, v21")
    a("v_xor_b32 v30, s5, v23")
    a("v_xor_b32 v32, s5, v25")
    a("v_xor_b32 v33, s5, v27")
    a("v_add_f32 v20, v20, v24")
    a("v_add_f32 v22, v22, v26")
    a("v_or3_b32 v28, v28, v31, v29")
    a("v_or3_b32 v30, v30, v32, v33")
    a("v_add_f32 v12, v12, v20")
    a("v_add_f32 v14, v14, v22")
    a("v_or_b32 v28, v28, v30")
    a("v_cmp_ne_u32 vcc, 0, v28")
    prs = ((12, 13), (14, 15))
    for r, tmp in prs: a(f"v_add_f32_dpp v{r}, v{r}, v{r} row_ror:8 row_mask:0xf bank_mask:0xf")
    for r, tmp in prs: a(f"v_mov_b32 v{tmp}, v{r}")
    for r, tmp in prs: a(f"v_permlane16_swap_b32 v{r}, v{tmp}")
    for r, tmp in prs: a(f"v_add_f32 v{r}, v{r}, v{tmp}")
    for r, tmp in prs: a(f"v_mov_b32 v{tmp}, v{r}")
    for r, tmp in prs: a(f"v_permlane32_swap_b32 v{r}, v{tmp}")
    a("v_add_f32 v12, v12, v13")
    a("v_add_f32 v14, v14, v15")
    a("v_add_f32 v12, v12, v10")
    a("v_add_f32 v14, v14, v11")
    a("v_cvt_pk_bf16_f32 v12, v12, v14")
    a("s_cbranch_vccz L_fin_go")
    a("s_sub_u32 s62, s62, 1")
    a("s_cbranch_scc0 L_fin_poll")
    a("L_fin_go:")
    a("s_mov_b64 exec, 0xff")
    a("buffer_store_short v12, v2, s[48:51], s61 offen")
    a("buffer_store_short_d16_hi v12, v2, s[48:51], s61 offen offset:32")
    a("s_cmp_lg_u32 s2, 0")
    a("s_cbranch_scc1 L_fin_done")
    a("s_mov_b64 exec, 1")
    a("v_mov_b32 v3, s5")
    a("v_mov_b32 v4, 0")
    a("buffer_store_dword v3, v4, s[44:47], 0 offen sc1")
    a("L_fin_done:")
    a("s_mov_b64 exec, -1")
    stamp(6)
    stamp_store(0)
    a("s_endpgm")

    a("L_helper:")
    a("s_setprio 3")
    stamp(6)
    a("s_sub_u32 s3, s3, 4")
    srd(52, 16, 8192)
    a("v_lshrrev_b32 v8, 2, v7")
    a("v_lshl_add_u32 v8, v6, 3, v8")
    a("v_and_b32 v9, 3, v0")
    a("v_lshlrev_b32 v11, 7, v8")
    a("v_lshl_add_u32 v11, v9, 3, v11")
    a("v_and_b32 v2, 7, v0")
    a("v_lshlrev_b32 v2, 10, v2")
    a("v_lshl_add_u32 v2, v6, 4, v2")
    a("v_lshlrev_b32 v5, 4, v0")
    a("s_cmp_eq_u32 s3, 1")
    a("s_cbranch_scc1 L_h1")
    a("s_cmp_eq_u32 s3, 2")
    a("s_cbranch_scc1 L_h2")
    a("s_cmp_eq_u32 s3, 3")
    a("s_cbranch_scc1 L_h3")
    XF, BF, AC = 64, 128, 12
    def tile_frags(vaddr, js, jbase_off):
        n = 0
        for j in js:
            for aa in range(4):
                for eh in range(2):
                    r = BF + 16 * j + 4 * aa + 2 * eh
                    a(f"ds_read_b64_tr_b16 v[{r}:{r+1}], v{vaddr} offset:{jbase_off(j) + eh*512 + aa*32}")
            a("s_waitcnt lgkmcnt(0)")
            for aa in range(4):
                c = "0" if j == 0 else f"v[{AC+4*aa}:{AC+4*aa+3}]"
                a(f"v_mfma_f32_16x16x32_bf16 v[{AC+4*aa}:{AC+4*aa+3}], v[{BF+16*j+4*aa}:{BF+16*j+4*aa+3}], v[{XF+4*j}:{XF+4*j+3}], {c}")
    def payload_store_flag(vaddr, sbase, sflag):
        a("s_mov_b32 exec_lo, 0x00ff00ff")
        a("s_mov_b32 exec_hi, 0x00ff00ff")
        for aa in range(4):
            a(f"buffer_store_dwordx4 v[{AC+4*aa}:{AC+4*aa+3}], v{vaddr}, s[44:47], s{sbase} offen offset:{aa*64} sc1")
        a("s_mov_b64 exec, 1")
        a("v_mov_b32 v28, s5")
        a("v_mov_b32 v29, 0")
        a("s_waitcnt vmcnt(0)")
        a(f"buffer_store_dword v28, v29, s[44:47], s{sflag} offen sc1")
        a("s_mov_b64 exec, -1")

    a("s_lshr_b32 s60, s2, 2")
    a("s_and_b32 s61, s2, 3")
    a("s_lshl_b32 s63, s61, 8")
    for j in range(4):
        a(f"buffer_load_dwordx4 v[{XF+4*j}:{XF+4*j+3}], v2, s[52:55], s63 offen offset:{j*64}")
    a(f"v_add_u32 v3, {WQ_L:#x}, v11")
    a("v_lshlrev_b32 v4, 16, v7")
    a("v_lshl_add_u32 v4, v6, 4, v4")
    a("s_lshr_b32 s6, s60, 3")
    a("s_lshl_b32 s63, s6, 13")
    a("s_lshl_b32 s7, s61, 11")
    a("s_add_u32 s63, s63, s7")
    a("s_and_b32 s7, s60, 7")
    a("s_lshl_b32 s7, s7, 8")
    a("s_add_u32 s63, s63, s7")
    a(f"s_add_u32 s63, s63, {QP:#x}")
    a("s_lshl_b32 s64, s2, 2")
    a(f"s_add_u32 s64, s64, {QF:#x}")
    tagcalc()
    a("s_waitcnt vmcnt(0)")
    a("s_barrier")
    stamp(1)
    tile_frags(3, [0, 1, 2, 3], lambda j: j * 4096)
    stamp(7)
    payload_store_flag(4, 63, 64)
    stamp(2)
    a("s_branch L_hjoin")

    a("L_h1:")
    a("s_bfe_u32 s6, s2, 0x30002")
    a("s_lshl_b32 s62, s6, 7")
    a(f"s_add_u32 s62, s62, {QF:#x}")
    a("s_lshr_b32 s63, s2, 2")
    a("s_lshl_b32 s63, s63, 13")
    a(f"s_add_u32 s63, s63, {QP:#x}")
    a("s_add_u32 s64, s63, 4096")
    a("v_and_b32 v1, 31, v0")
    a("v_lshlrev_b32 v1, 2, v1")
    a("v_lshlrev_b32 v3, 3, v0")
    a(f"v_add_u32 v3, {Q_L:#x}, v3")
    tagcalc()
    a(f"s_mov_b32 s65, {spin_max}")
    a("s_waitcnt vmcnt(0)")
    a("s_barrier")
    a("s_sleep 24")
    a("L_h1_poll:")
    a("s_sleep 8")
    a("buffer_load_dword v12, v1, s[44:47], s62 offen sc1")
    a("s_waitcnt vmcnt(0)")
    a("v_cmp_ne_u32 vcc, s5, v12")
    a("s_cbranch_vccz L_h1_go")
    a("s_sub_u32 s65, s65, 1")
    a("s_cbranch_scc0 L_h1_poll")
    a("L_h1_go:")
    stamp(1)
    for k in range(8):
        so = "s63" if k < 4 else "s64"
        a(f"buffer_load_dwordx4 v[{12+4*k}:{15+4*k}], v5, s[44:47], {so} offen offset:{(k&3)*1024} sc1")
    a("s_waitcnt vmcnt(0)")
    for hf in range(2):
        for e in range(4):
            r = 12 + 4 * hf + e
            a(f"v_add_f32 v{r}, v{r}, v{r+8}")
            a(f"v_add_f32 v{r+16}, v{r+16}, v{r+24}")
    for hf in range(2):
        for e in range(4):
            r = 12 + 4 * hf + e
            a(f"v_add_f32 v{r}, v{r}, v{r+16}")
    a("v_cvt_pk_bf16_f32 v12, v12, v13")
    a("v_cvt_pk_bf16_f32 v13, v14, v15")
    a("v_cvt_pk_bf16_f32 v14, v16, v17")
    a("v_cvt_pk_bf16_f32 v15, v18, v19")
    a("ds_write_b64 v3, v[12:13]")
    a("ds_write_b64 v3, v[14:15] offset:512")
    stamp(2)
    a("s_branch L_hjoin")

    a("L_h2:")
    tagcalc()
    a("s_waitcnt vmcnt(0)")
    a("s_barrier")
    a("s_cmp_lt_u32 s2, 144")
    a("s_cbranch_scc1 L_hjoin")
    srd(48, 28, 512 * 3584)
    a("s_sub_u32 s60, s2, 144")
    a("s_lshr_b32 s60, s60, 2")
    a("s_and_b32 s61, s2, 3")
    a(f"s_mul_i32 s62, s61, {128*3584}")
    a("s_lshl_b32 s6, s60, 7")
    a("s_add_u32 s62, s62, s6")
    a("v_lshrrev_b32 v1, 3, v0")
    a("v_mul_u32_u24 v1, 3584, v1")
    a("v_and_b32 v3, 7, v0")
    a("v_lshl_add_u32 v1, v3, 4, v1")
    a("s_lshl_b32 s63, s61, 8")
    for j in range(4):
        a(f"buffer_load_dwordx4 v[{XF+4*j}:{XF+4*j+3}], v2, s[52:55], s63 offen offset:{j*64}")
    a(f"v_add_u32 v3, {W1_L:#x}, v11")
    a("v_lshlrev_b32 v4, 8, v7")
    a("v_lshl_add_u32 v4, v6, 4, v4")
    a("s_lshl_b32 s63, s60, 13")
    a("s_lshl_b32 s7, s61, 11")
    a("s_add_u32 s63, s63, s7")
    a(f"s_add_u32 s63, s63, {HP:#x}")
    a("s_lshl_b32 s64, s60, 7")
    a("s_lshl_b32 s7, s61, 2")
    a("s_add_u32 s64, s64, s7")
    a(f"s_add_u32 s64, s64, {HF:#x}")
    for half in range(2):
        for i in range(8):
            a(f"s_mov_b32 m0, {W1_L + i*1024:#x}")
            a(f"buffer_load_dwordx4 v1, s[48:51], s62 offen {wpol} lds")
            a(f"s_add_u32 s62, s62, {8*3584}")
        a("s_waitcnt vmcnt(0)")
        tile_frags(3, [2 * half, 2 * half + 1], lambda j: (j & 1) * 4096)
    payload_store_flag(4, 63, 64)
    a("s_branch L_hjoin")

    a("L_h3:")
    srd(48, 36, 1024)
    a("s_lshr_b32 s60, s2, 5")
    a("s_lshl_b32 s61, s60, 10")
    a("buffer_load_dwordx4 v[12:15], v5, s[52:55], s61 offen")
    a("buffer_load_dwordx4 v[16:19], v5, s[48:51], 0 offen")
    a("v_mov_b32 v20, 0")
    a(f"v_mov_b32 v4, {G_L:#x}")
    tagcalc()
    a("s_waitcnt vmcnt(0)")
    a("s_barrier")
    for i in range(4):
        a(f"v_dot2_f32_bf16 v20, v{12+i}, v{16+i}, v20")
    a("v_add_f32_dpp v20, v20, v20 quad_perm:[1,0,3,2] row_mask:0xf bank_mask:0xf")
    a("v_add_f32_dpp v20, v20, v20 quad_perm:[2,3,0,1] row_mask:0xf bank_mask:0xf")
    xlane("v_add_f32", 20, 21)
    a(f"v_mul_f32 v20, {f32(-LOG2E)}, v20")
    a("v_exp_f32 v20, v20")
    a("v_add_f32 v20, 1.0, v20")
    a("v_rcp_f32 v20, v20")
    a("s_mov_b64 exec, 1")
    a("ds_write_b32 v4, v20")
    a("s_and_b32 s6, s2, 31")
    a("s_cmp_lg_u32 s6, 0")
    a("s_cbranch_scc1 L_h3_done")
    a("v_sub_f32 v22, 1.0, v20")
    a("v_mov_b32 v23, s5")
    a("v_mov_b32 v24, 0")
    a("s_lshl_b32 s6, s60, 3")
    a(f"s_add_u32 s6, s6, {GG:#x}")
    a("buffer_store_dwordx2 v[22:23], v24, s[44:47], s6 offen sc1")
    a("L_h3_done:")
    a("s_mov_b64 exec, -1")

    a("L_hjoin:")
    a("s_waitcnt lgkmcnt(0)")
    a("s_barrier")
    if xcdkb:
        a("s_lshr_b32 s60, s2, 5")
        a("s_and_b32 s61, s2, 7")
        a("s_lshl_b32 s61, s61, 2")
        a("s_bfe_u32 s6, s2, 0x20003")
        a("s_add_u32 s61, s61, s6")
    else:
        a("s_and_b32 s60, s2, 7")
        a("s_lshr_b32 s61, s2, 3")
    a("s_cmp_lg_u32 s3, 2")
    a("s_cbranch_scc1 L_nohact")
    a("s_cmp_ge_u32 s61, 28")
    a("s_cbranch_scc1 L_nohact")
    srd(56, 30, 3584)
    a("s_lshl_b32 s62, s61, 7")
    a("v_and_b32 v1, 7, v0")
    a("v_lshlrev_b32 v1, 4, v1")
    a("buffer_load_dwordx4 v[48:51], v1, s[56:59], s62 offen")
    a(f"s_add_u32 s62, s62, {HF:#x}")
    a("v_lshlrev_b32 v3, 2, v9")
    a("v_lshrrev_b32 v4, 3, v0")
    a("v_lshlrev_b32 v10, 3, v4")
    a(f"s_mov_b32 s63, {GG:#x}")
    a(f"s_mov_b32 s65, {spin_max}")
    a("L_h2_poll:")
    a("buffer_load_dword v12, v3, s[44:47], s62 offen sc1")
    a("buffer_load_dwordx2 v[52:53], v10, s[44:47], s63 offen sc1")
    a("s_waitcnt vmcnt(0)")
    a("v_xor_b32 v12, s5, v12")
    a("v_xor_b32 v13, s5, v53")
    a("v_or_b32 v12, v12, v13")
    a("v_cmp_ne_u32 vcc, 0, v12")
    a("s_cbranch_vccz L_h2_go")
    a("s_sleep 8")
    a("s_sub_u32 s65, s65, 1")
    a("s_cbranch_scc0 L_h2_poll")
    a("L_h2_go:")
    a("s_lshl_b32 s62, s61, 13")
    a(f"s_add_u32 s62, s62, {HP:#x}")
    a("s_add_u32 s63, s62, 4096")
    a("v_lshlrev_b32 v1, 5, v0")
    for k in range(8):
        so = "s62" if k < 4 else "s63"
        a(f"buffer_load_dwordx4 v[{12+4*k}:{15+4*k}], v1, s[44:47], {so} offen offset:{((k>>1)&1)*2048 + (k&1)*16} sc1")
    a("v_mul_u32_u24 v3, 144, v4")
    a("v_and_b32 v4, 7, v0")
    a("v_lshl_add_u32 v3, v4, 4, v3")
    a(f"v_add_u32 v3, {HA_L:#x}, v3")
    for e in range(4):
        a(f"v_lshlrev_b32 v{54+2*e}, 16, v{48+e}")
        a(f"v_and_b32 v{55+2*e}, 0xffff0000, v{48+e}")
    a("s_waitcnt vmcnt(0)")
    for e in range(8):
        r = 12 + e
        a(f"v_add_f32 v{r}, v{r}, v{r+8}")
        a(f"v_add_f32 v{r+16}, v{r+16}, v{r+24}")
    for e in range(8):
        a(f"v_add3_f32 v{12+e}, v{12+e}, v{28+e}, v{54+e}") if False else None
        a(f"v_add_f32 v{12+e}, v{12+e}, v{28+e}")
    for e in range(8):
        a(f"v_add_f32 v{12+e}, v{12+e}, v{54+e}")
    for e in range(8):
        a(f"v_max_f32 v{12+e}, 0, v{12+e}")
    for e in range(8):
        a(f"v_mul_f32 v{20+e}, v{12+e}, v52")
    for e in range(8):
        a(f"v_mul_f32 v{12+e}, v{12+e}, v{20+e}")
    for e in range(4):
        a(f"v_cvt_pk_bf16_f32 v{20+e}, v{12+2*e}, v{13+2*e}")
    a("ds_write_b128 v3, v[20:23]")
    a("L_nohact:")
    srd(48, 24, 0x400000)
    srd(56, 32, 1792 * 1024)
    a("s_lshl_b32 s64, s60, 7")
    a("s_lshl_b32 s65, s61, 17")
    a("s_add_u32 s65, s65, s64")
    a("s_lshl_b32 s6, s3, 15")
    a("s_add_u32 s65, s65, s6")
    a("s_lshl_b32 s66, s61, 16")
    a("s_add_u32 s66, s66, s64")
    a("s_lshl_b32 s6, s3, 14")
    a("s_add_u32 s66, s66, s6")
    a("s_lshl_b32 s67, s3, 12")
    a("s_lshl_b32 s68, s3, 11")
    a(f"s_add_u32 s68, s68, {W2_L:#x}")
    a("v_lshrrev_b32 v1, 3, v0")
    a("v_lshlrev_b32 v1, 10, v1")
    a("v_and_b32 v3, 7, v0")
    a("v_lshl_add_u32 v1, v3, 4, v1")
    a("v_mov_b32 v3, v11")
    a("v_bfe_u32 v10, v7, 2, 1")
    a("v_mul_u32_u24 v4, 144, v10")
    a("v_lshl_add_u32 v4, v6, 4, v4")
    a("s_mul_i32 s6, s3, 288")
    a(f"s_add_u32 s6, s6, {HA_L:#x}")
    a("v_add_u32 v4, s6, v4")
    a("v_and_b32 v12, 1, v6")
    a("v_lshlrev_b32 v11, 10, v12")
    a("s_lshl_b32 s69, s3, 11")
    a("s_lshl_b32 s6, s61, 5")
    a("s_add_u32 s69, s69, s6")
    a(f"s_add_u32 s69, s69, {LG:#x}")
    a("s_lshl_b32 s70, s61, 14")
    a("s_lshl_b32 s6, s3, 12")
    a("s_add_u32 s70, s70, s6")
    a(f"s_add_u32 s70, s70, {OG:#x}")
    a("s_mul_i32 s6, s3, 2304")
    a(f"s_add_u32 s6, s6, {AS_L:#x}")
    a("v_lshrrev_b32 v13, 5, v0")
    a("v_mul_u32_u24 v13, 272, v13")
    a("v_and_b32 v14, 31, v0")
    a("v_lshl_add_u32 v13, v14, 3, v13")
    a("v_add_u32 v2, s6, v13")
    a("v_and_b32 v13, 7, v7")
    a("v_mul_u32_u24 v13, 272, v13")
    a("v_lshl_add_u32 v13, v6, 4, v13")
    a("v_add_u32 v8, s6, v13")
    a("v_lshlrev_b32 v10, 17, v12")
    a("v_lshrrev_b32 v12, 3, v7")
    a("v_lshl_add_u32 v10, v12, 12, v10")
    a("v_and_b32 v12, 7, v7")
    a("v_lshl_add_u32 v10, v12, 4, v10")
    a("s_lshl_b32 s71, s3, 18")
    a("s_lshl_b32 s6, s60, 14")
    a("s_add_u32 s71, s71, s6")
    a("s_lshl_b32 s6, s61, 7")
    a("s_add_u32 s71, s71, s6")
    a(f"s_add_u32 s71, s71, {PG:#x}")
    a("s_add_u32 s8, s71, 8192")
    a("s_waitcnt lgkmcnt(0)")
    a("s_barrier")
    a("s_barrier")
    a("s_cmp_lg_u32 s3, 0")
    a("s_cbranch_scc1 L_nolse")
    a("v_lshlrev_b32 v12, 4, v9")
    a(f"v_add_u32 v12, {M_L:#x}, v12")
    a("ds_read_b128 v[16:19], v12")
    a(f"ds_read_b128 v[20:23], v12 offset:{L_L-M_L}")
    a("s_and_b32 s6, s2, 0xfc")
    a("s_lshl_b32 s6, s6, 5")
    a("s_and_b32 s7, s2, 3")
    a("s_lshl_b32 s7, s7, 3")
    a("s_add_u32 s6, s6, s7")
    a(f"s_add_u32 s6, s6, {LG:#x}")
    a("v_lshlrev_b32 v13, 5, v9")
    a("s_waitcnt lgkmcnt(0)")
    a("v_max3_f32 v16, v16, v17, v18")
    a("v_max_f32 v16, v16, v19")
    a("v_add_f32 v20, v20, v21")
    a("v_add_f32 v22, v22, v23")
    a("v_add_f32 v20, v20, v22")
    a("v_log_f32 v20, v20")
    a(f"v_mov_b32 v21, {f32(CSC)}")
    a("v_fma_f32 v14, v16, v21, v20")
    a("v_mov_b32 v15, s5")
    a("s_mov_b64 exec, 15")
    a("buffer_store_dwordx2 v[14:15], v13, s[44:47], s6 offen sc1")
    a("s_mov_b64 exec, -1")
    a("L_nolse:")
    for i in range(4):
        a(f"s_add_u32 m0, s67, {WO_L + i*1024}")
        a(f"buffer_load_dwordx4 v1, s[48:51], s65 offen {wpol} lds")
        a("s_add_u32 s65, s65, 8192")
    for i in range(2):
        a(f"s_add_u32 m0, s68, {i*1024}")
        a(f"buffer_load_dwordx4 v1, s[56:59], s66 offen {wpol} lds")
        a("s_add_u32 s66, s66, 8192")
    a(f"s_mov_b32 s64, {spin_max}")
    for k in range(4):
        a(f"v_mov_b32 v{65+2*k}, s5")
    a("v_add_u32 v9, 1088, v2")
    a("s_waitcnt vmcnt(0)")
    stamp(3)
    a("s_barrier")
    stamp(4)
    WOF, W2F, AF, ACC = 128, 192, 72, 96
    def p2_loads():
        a("buffer_load_dwordx4 v[28:31], v11, s[44:47], s69 offen sc1")
        a("buffer_load_dwordx4 v[32:35], v11, s[44:47], s69 offen offset:16 sc1")
        for k in range(4):
            a(f"buffer_load_dwordx4 v[{12+4*k}:{15+4*k}], v5, s[44:47], s70 offen offset:{k*1024} sc1")
    p2_loads()
    for j in range(2):
        for aa in range(4):
            for eh in range(2):
                r = W2F + 16 * j + 4 * aa + 2 * eh
                a(f"ds_read_b64_tr_b16 v[{r}:{r+1}], v3 offset:{W2_L + j*4096 + eh*512 + aa*32}")
        a("s_waitcnt lgkmcnt(4)")
    a("ds_read_b128 v[88:91], v4")
    a("ds_read_b128 v[92:95], v4 offset:64")
    for k in range(4):
        a(f"v_mov_b32 v{60+k}, 0")
    a("s_waitcnt lgkmcnt(0)")
    a("s_cmp_ge_u32 s61, 28")
    a("s_cbranch_scc1 L_nomlp1")
    for j in range(2):
        for aa in range(4):
            c = "0" if j == 0 else f"v[{ACC+4*aa}:{ACC+4*aa+3}]"
            a(f"v_mfma_f32_16x16x32_bf16 v[{ACC+4*aa}:{ACC+4*aa+3}], v[{88+4*j}:{91+4*j}], v[{W2F+16*j+4*aa}:{W2F+16*j+4*aa+3}], {c}")
    a("L_nomlp1:")
    for j in range(4):
        for aa in range(4):
            for eh in range(2):
                r = WOF + 16 * j + 4 * aa + 2 * eh
                a(f"ds_read_b64_tr_b16 v[{r}:{r+1}], v3 offset:{WO_L + j*4096 + eh*512 + aa*32}")
        a("s_waitcnt lgkmcnt(4)")
    a("s_cmp_ge_u32 s61, 28")
    a("s_cbranch_scc1 L_nomlp2")
    for aa in range(4):
        a(f"v_mov_b32 v{60+aa}, v{ACC+4*aa}")
    a("L_nomlp2:")
    a("s_waitcnt lgkmcnt(0)")
    a("s_branch L_p2_body")
    a("L_p2_poll:")
    if p2sleep: a(f"s_sleep {p2sleep}")
    p2_loads()
    a("L_p2_body:")
    a("s_waitcnt vmcnt(4)")
    a("v_max3_f32 v44, v28, v30, v32")
    a("v_max_f32 v44, v44, v34")
    for k in range(4):
        a(f"v_sub_f32 v{48+k}, v{28+2*k}, v44")
    for k in range(4):
        a(f"v_exp_f32 v{48+k}, v{48+k}")
    for k in range(4):
        a(f"s_waitcnt vmcnt({3-k})")
        va = "v2" if k < 2 else "v9"
        o = (k & 1) * 136
        a(f"ds_write2_b32 {va}, v{12+4*k}, v{14+4*k} offset0:{o} offset1:{o+1}")
    a("v_add_f32 v44, v48, v49")
    a("v_add_f32 v45, v50, v51")
    a("v_add_f32 v44, v44, v45")
    a("v_rcp_f32 v44, v44")
    a("s_waitcnt lgkmcnt(0)")
    for j in range(4):
        a(f"ds_read_b128 v[{AF+4*j}:{AF+4*j+3}], v8 offset:{j*64}")
    for k in range(12):
        a(f"v_xor_b32 v{13+2*k}, s5, v{13+2*k}")
    for k in range(4):
        a(f"v_mul_f32 v{48+k}, v{48+k}, v44")
    for j in range(4):
        a(f"s_waitcnt lgkmcnt({3-j})")
        for aa in range(4):
            c = "0" if j == 0 else f"v[{ACC+4*aa}:{ACC+4*aa+3}]"
            a(f"v_mfma_f32_16x16x32_bf16 v[{ACC+4*aa}:{ACC+4*aa+3}], v[{AF+4*j}:{AF+4*j+3}], v[{WOF+16*j+4*aa}:{WOF+16*j+4*aa+3}], {c}")
        if j == 0:
            a("v_or3_b32 v13, v13, v15, v17")
            a("v_or3_b32 v19, v19, v21, v23")
        if j == 1:
            a("v_or3_b32 v25, v25, v27, v29")
            a("v_or3_b32 v31, v31, v33, v35")
        if j == 2:
            a("v_or3_b32 v13, v13, v19, v25")
            a("v_or_b32 v13, v13, v31")
            a("v_cmp_ne_u32 vcc, 0, v13")
    for r in range(4):
        for aa in range(4):
            c = f"v{60+aa}" if r == 0 else f"v{64+2*aa}"
            a(f"v_fma_f32 v{64+2*aa}, v{ACC+4*aa+r}, v{48+r}, {c}")
    a("s_cbranch_vccz L_p2_go")
    a("s_sub_u32 s64, s64, 1")
    a("s_cbranch_scc0 L_p2_poll")
    a("L_p2_go:")
    a("s_mov_b64 exec, 0xffffffff")
    a("buffer_store_dwordx4 v[64:67], v10, s[44:47], s71 offen sc1")
    a("buffer_store_dwordx4 v[68:71], v10, s[44:47], s8 offen sc1")
    a("s_mov_b64 exec, -1")
    stamp(5)
    if stamps:
        a("s_add_u32 s3, s3, 1")
        stamp_store("s3")
    a("L_end:")
    a("s_endpgm")
    a.raw('.section .rodata,"a"')
    a.raw(".p2align 6")
    a.raw(f".amdhsa_kernel {NAME}_kernel")
    a.raw("  .amdhsa_next_free_vgpr 256")
    a.raw("  .amdhsa_next_free_sgpr 96")
    a.raw("  .amdhsa_accum_offset 256")
    a.raw("  .amdhsa_group_segment_fixed_size 0")
    a.raw("  .amdhsa_kernarg_size 112")
    a.raw("  .amdhsa_user_sgpr_count 2")
    a.raw("  .amdhsa_user_sgpr_kernarg_segment_ptr 1")
    a.raw("  .amdhsa_system_sgpr_workgroup_id_x 1")
    a.raw(".end_amdhsa_kernel")
    return a.text()

if __name__ == "__main__":
    out = sys.argv[1]
    kw = json.loads(sys.argv[2]) if len(sys.argv) > 2 else {}
    open(out, "w").write(gen(**kw))
```

```python
import sys, json, math, struct
from asmdsl import Asm
NAME = "gated_mix__gqa_block_cached__dense_activation_squared_relu__decode"

GG, LG = 0x3000, 0x10000
QP, HP, OG, PG = 0x100000, 0x80000, 0x200000, 0x300000
STAMP = 0x8000000
def f32(x): return "0x%08x" % struct.unpack("<I", struct.pack("<f", x))[0]
CSC = math.log2(math.e) / math.sqrt(128.0)
LOG2E = math.log2(math.e)
HEADER = open("cdna_kernels/" + NAME + ".s.ref").read().split("; Override launch geometry")[0]

def gen(stamps=False, kvpol="nt", wpol="nt", spin_max=400000, D1=5, D2=5, qsleep=4, qtrig=6,
        trig=15, npre=8, amap=2, hprio=0, sprio=2, w2early=False, outpol="", touch=0, no_h=False, no_wo=False, no_qp=False, no_st=False, no_gate=False):
    a = Asm()
    NST = 8
    WQ_L, W1_L = 0x20000, 0x24000
    WO_L, W2_L = WQ_L, W1_L
    Q_L, M_L, L_L, G_L, C_L, HA_L = 0x26000, 0x26400, 0x26440, 0x26480, 0x264c0, 0x26500
    LDS_TOTAL = HA_L + 8 * 144
    AS_OFF = 0x1000
    a.raw(HEADER.rstrip())
    a.raw(f"; @launch grid=(256,1,1) block=(512,1,1) lds={LDS_TOTAL}")
    a.raw('.amdgcn_target "amdgcn-amd-amdhsa--gfx950"')
    a.raw(".text")
    a.raw(f".globl {NAME}_kernel")
    a.raw(".p2align 8")
    a.raw(f".type {NAME}_kernel,@function")
    a.label(f"{NAME}_kernel")

    def srd(d, base, size):
        a(f"s_mov_b32 s{d}, s{base}")
        a(f"s_mov_b32 s{d+1}, s{base+1}")
        a(f"s_mov_b32 s{d+2}, {size:#x}")
        a(f"s_mov_b32 s{d+3}, 0x00020000")
    def stamp(i):
        if stamps:
            a(f"s_memrealtime s[{72+2*i}:{73+2*i}]")
            a("s_waitcnt lgkmcnt(0)")
    def stamp_store(slot):
        if not stamps: return
        a(f"s_lshl_b32 s6, s2, 3")
        a(f"s_add_u32 s6, s6, {slot}")
        a(f"s_mul_i32 s6, s6, {NST*8}")
        a(f"s_add_u32 s6, s6, {STAMP:#x}")
        a("s_mov_b64 exec, 1")
        a("v_mov_b32 v1, 0")
        for i in range(0, NST, 2):
            for k in range(4):
                a(f"v_mov_b32 v{4+k}, s{72+2*i+k}")
            a(f"buffer_store_dwordx4 v[4:7], v1, s[44:47], s6 offen offset:{i*8}")
            a("s_nop 1")
        a("s_mov_b64 exec, -1")
    def tagcalc():
        a("s_waitcnt lgkmcnt(0)")
        a("s_mul_i32 s5, s4, 1664525")
        a("s_add_u32 s5, s5, 1013904223")
    def xlane(op, r, tmp):
        a(f"{op}_dpp v{r}, v{r}, v{r} row_ror:4 row_mask:0xf bank_mask:0xf")
        a(f"{op}_dpp v{r}, v{r}, v{r} row_ror:8 row_mask:0xf bank_mask:0xf")
        a(f"v_mov_b32 v{tmp}, v{r}")
        a(f"v_permlane16_swap_b32 v{r}, v{tmp}")
        a(f"{op} v{r}, v{r}, v{tmp}")
        a(f"v_mov_b32 v{tmp}, v{r}")
        a(f"v_permlane32_swap_b32 v{r}, v{tmp}")
        a(f"{op} v{r}, v{r}, v{tmp}")
    def cnt_add(off, vaddr, vone):
        a("s_mov_b64 exec, 1")
        a(f"ds_add_u32 v{vaddr}, v{vone} offset:{off}")
        a("s_mov_b64 exec, -1")
    def cnt_wait(off, lbl, vaddr, vtmp, sreg, sleep=0, target=4):
        a(f"s_mov_b32 s{sreg}, {spin_max*4}")
        a(f"{lbl}:")
        a(f"ds_read_b32 v{vtmp}, v{vaddr} offset:{off}")
        a("s_waitcnt lgkmcnt(0)")
        a(f"v_cmp_gt_u32 vcc, {target}, v{vtmp}")
        a(f"s_cbranch_vccz {lbl}_go")
        if sleep: a(f"s_sleep {sleep}")
        a(f"s_sub_u32 s{sreg}, s{sreg}, 1")
        a(f"s_cbranch_scc0 {lbl}")
        a(f"{lbl}_go:")
    def unit_id():
        if amap == 1:
            a("s_and_b32 s11, s2, 0xe0")
            a("s_and_b32 s6, s2, 7")
            a("s_lshl_b32 s6, s6, 2")
            a("s_add_u32 s11, s11, s6")
            a("s_bfe_u32 s6, s2, 0x20003")
            a("s_add_u32 s11, s11, s6")
        elif amap == 2:
            a("s_and_b32 s11, s2, 7")
            a("s_lshl_b32 s11, s11, 5")
            a("s_lshr_b32 s6, s2, 3")
            a("s_add_u32 s11, s11, s6")
        else:
            a("s_mov_b32 s11, s2")

    a("s_cmp_ge_u32 s2, 256")
    a("s_cbranch_scc1 L_end")
    if stamps:
        for i in range(NST):
            a(f"s_mov_b64 s[{72+2*i}:{73+2*i}], 0")
        a("s_memrealtime s[72:73]")
    a("s_load_dwordx16 s[16:31], s[0:1], 0")
    a("s_load_dwordx8 s[32:39], s[0:1], 64")
    a("s_load_dwordx4 s[40:43], s[0:1], 96")
    a("v_lshrrev_b32 v1, 6, v0")
    a("v_and_b32 v0, 63, v0")
    a("v_readfirstlane_b32 s3, v1")
    a("v_lshrrev_b32 v6, 4, v0")
    a("v_and_b32 v7, 15, v0")
    a("v_lshlrev_b32 v5, 4, v0")
    unit_id()
    a("s_cmp_lt_u32 s3, 4")
    a("s_cbranch_scc1 L_stream")

    a("s_setprio 3")
    a(f"v_mov_b32 v10, {C_L:#x}")
    for k in range(4): a(f"v_mov_b32 v{12+k}, 0")
    a("ds_write_b128 v10, v[12:15]")
    a("ds_write_b64 v10, v[12:13] offset:16")
    a("s_sub_u32 s3, s3, 4")
    a("v_lshrrev_b32 v16, 3, v0")
    a("v_and_b32 v8, 7, v0")
    a("v_lshlrev_b32 v1, 13, v16")
    a("v_lshl_add_u32 v1, v8, 4, v1")
    for i in range(1, 4):
        a(f"v_add_u32 v{1+i}, {i*(65536-1024)}, v1")
    a("v_mul_u32_u24 v16, 3584, v16")
    a("v_lshl_add_u32 v16, v8, 4, v16")
    a(f"v_add_u32 v17, {8*3584-1024}, v16")
    a("v_lshlrev_b32 v18, 10, v8")
    a("v_lshl_add_u32 v19, v6, 3, v18")
    a("v_lshl_add_u32 v18, v6, 4, v18")
    a("s_bfe_u32 s61, s2, 0x20003")
    a("s_and_b32 s60, s2, 7")
    a("s_lshl_b32 s60, s60, 3")
    a("s_lshr_b32 s6, s2, 5")
    a("s_add_u32 s60, s60, s6")
    a("s_lshl_b32 s62, s61, 20")
    a("s_lshl_b32 s6, s60, 7")
    a("s_add_u32 s62, s62, s6")
    a("s_lshl_b32 s6, s3, 18")
    a("s_add_u32 s62, s62, s6")
    a("s_lshl_b32 s6, s3, 12")
    a(f"s_add_u32 s67, s6, {WQ_L:#x}")
    a("s_lshl_b32 s6, s3, 11")
    a(f"s_add_u32 s68, s6, {W1_L:#x}")
    a("s_lshl_b32 s63, s61, 8")
    a("s_lshl_b32 s6, s3, 6")
    a("s_add_u32 s63, s63, s6")
    a("s_lshr_b32 s66, s60, 1")
    a("s_and_b32 s69, s60, 1")
    a("s_lshl_b32 s70, s61, 1")
    a("s_add_u32 s70, s70, s69")
    a("s_lshl_b32 s6, s70, 2")
    a("s_add_u32 s6, s6, s3")
    a(f"s_mul_i32 s65, s6, {16*3584}")
    a("s_lshl_b32 s64, s6, 5")
    a("s_lshl_b32 s6, s66, 7")
    a("s_add_u32 s65, s65, s6")
    a("s_mov_b32 m0, s67")
    a("s_waitcnt lgkmcnt(0)")
    srd(48, 22, 0x400000)
    srd(52, 16, 8192)
    XF, BF, AC = 64, 128, 80
    for i in range(4):
        a(f"buffer_load_dwordx4 v{1+i}, s[48:51], s62 offen offset:{i*1024} {wpol} lds")
    a(f"buffer_load_dwordx4 v[{XF}:{XF+3}], v18, s[52:55], s63 offen")
    a("s_mov_b32 m0, s68")
    srd(56, 28, 512 * 3584)
    a("s_cmp_ge_u32 s66, 28")
    a("s_cbranch_scc1 L_now1a")
    a(f"buffer_load_dwordx4 v16, s[56:59], s65 offen {wpol} lds")
    a(f"buffer_load_dwordx4 v17, s[56:59], s65 offen offset:1024 {wpol} lds")
    a(f"buffer_load_dwordx2 v[{XF+4}:{XF+5}], v19, s[52:55], s64 offen")
    a("L_now1a:")
    a("s_load_dword s4, s[42:43], 0")
    a("s_barrier")
    srd(44, 42, 0x10000000)
    a("v_lshrrev_b32 v16, 2, v7")
    a("v_and_b32 v9, 3, v0")
    a("v_lshl_add_u32 v17, v6, 3, v16")
    a("v_lshlrev_b32 v11, 7, v17")
    a("v_lshl_add_u32 v11, v9, 3, v11")
    a("v_add_u32 v3, s67, v11")
    a("v_lshl_add_u32 v17, v6, 2, v16")
    a("v_lshlrev_b32 v2, 7, v17")
    a("v_lshl_add_u32 v2, v9, 3, v2")
    a("v_add_u32 v2, s68, v2")
    a("v_mov_b32 v20, 1")
    a("v_xor_b32 v1, v6, v8")
    a("v_lshlrev_b32 v1, 4, v1")
    a("v_lshl_add_u32 v1, v8, 8, v1")
    a("v_add_u32 v1, s67, v1")
    a("v_xor_b32 v19, 64, v1")
    a("v_and_b32 v16, 1, v6")
    a("s_lshl_b32 s6, s3, 1")
    a("v_add_u32 v16, s6, v16")
    a("v_xor_b32 v17, v16, v7")
    a("v_lshlrev_b32 v17, 4, v17")
    a("v_lshl_add_u32 v16, v16, 8, v17")
    a("v_bfe_u32 v17, v0, 3, 2")
    a("s_lshl_b32 s6, s3, 2")
    a("v_add_u32 v17, s6, v17")
    a("v_xor_b32 v17, v17, v8")
    a("v_lshlrev_b32 v17, 4, v17")
    a("v_lshl_add_u32 v18, v8, 8, v17")
    a("v_add_u32 v18, 2048, v18")
    a("s_mov_b32 s6, 0")
    a("s_mov_b32 s7, -1")
    a("v_cndmask_b32 v16, v16, v18, s[6:7]")
    a(f"v_add_u32 v16, {WQ_L:#x}, v16")
    a("v_and_b32 v17, 1, v6")
    a("v_lshlrev_b32 v17, 16, v17")
    a("v_lshl_add_u32 v17, v7, 4, v17")
    a("s_lshl_b32 s63, s3, 17")
    a("s_lshr_b32 s8, s60, 1")
    a("s_lshl_b32 s8, s8, 11")
    a("s_add_u32 s63, s63, s8")
    a("s_lshl_b32 s8, s61, 9")
    a("s_add_u32 s63, s63, s8")
    a("s_lshl_b32 s8, s69, 8")
    a("s_add_u32 s63, s63, s8")
    a(f"s_add_u32 s63, s63, {QP:#x}")
    a("v_add_u32 v17, s63, v17")
    a("s_lshl_b32 s64, s66, 14")
    a("s_lshl_b32 s8, s70, 9")
    a("s_add_u32 s64, s64, s8")
    a("s_lshl_b32 s8, s3, 12")
    a("s_add_u32 s64, s64, s8")
    a(f"s_add_u32 s64, s64, {HP-512:#x}")
    a("v_add_u32 v18, s64, v5")
    a("v_cndmask_b32 v4, v17, v18, s[6:7]")
    a("s_cmp_lt_u32 s66, 28")
    a("s_cselect_b32 s9, -1, 0")
    tagcalc()
    a("v_mov_b32 v25, s5")
    a("v_mov_b32 v27, s5")
    a("s_waitcnt vmcnt(0)")
    for aa in range(4):
        for eh in range(2):
            r = BF + 4 * aa + 2 * eh
            a(f"ds_read_b64_tr_b16 v[{r}:{r+1}], v3 offset:{eh*512 + aa*32}")
    for aa in range(4):
        r = BF + 16 + 2 * aa
        a(f"ds_read_b64_tr_b16 v[{r}:{r+1}], v2 offset:{aa*32}")
    for aa in range(4):
        a(f"s_waitcnt lgkmcnt({10-2*aa})")
        a(f"v_mfma_f32_16x16x32_bf16 v[{AC+4*aa}:{AC+4*aa+3}], v[{BF+4*aa}:{BF+4*aa+3}], v[{XF}:{XF+3}], 0")
    for aa in range(4):
        a(f"s_waitcnt lgkmcnt({3-aa})")
        a(f"v_mfma_f32_16x16x16_bf16 v[{AC+16+4*aa}:{AC+16+4*aa+3}], v[{BF+16+2*aa}:{BF+16+2*aa+1}], v[{XF+4}:{XF+5}], 0")
    a("s_mov_b32 exec_lo, 0x00ff00ff")
    a("s_mov_b32 exec_hi, 0x00ff00ff")
    for part in range(2):
        for aa in range(4):
            r = AC + 16 * part + 4 * aa
            a(f"ds_write_b128 v{1 if aa % 2 == 0 else 19}, v[{r}:{r+3}] offset:{part*2048 + (aa>>1)*128}")
    a("s_mov_b64 exec, 1")
    a("s_waitcnt lgkmcnt(0)")
    a("ds_add_u32 v10, v20")
    a("s_mov_b64 exec, -1")
    cnt_wait(0, "L_s1", 10, 21, 65)
    for j in range(4):
        a(f"ds_read_b128 v[{32+4*j}:{35+4*j}], v16 offset:{j*4096}")
    a("s_waitcnt lgkmcnt(2)")
    for e in range(4): a(f"v_add_f32 v{32+e}, v{32+e}, v{36+e}")
    a("s_waitcnt lgkmcnt(0)")
    for e in range(4): a(f"v_add_f32 v{40+e}, v{40+e}, v{44+e}")
    for e in range(4): a(f"v_add_f32 v{32+e}, v{32+e}, v{40+e}")
    a("v_cvt_pk_bf16_f32 v24, v32, v33")
    a("v_cvt_pk_bf16_f32 v26, v34, v35")
    a("s_mov_b32 exec_hi, s9")
    if not no_st: a("buffer_store_dwordx4 v[24:27], v4, s[44:47], 0 offen sc1")
    a("s_mov_b64 exec, -1")
    stamp(1)
    a("s_branch L_helper2")

    a("L_stream:")
    a("v_lshlrev_b32 v1, 2, v6")
    a("v_xor_b32 v1, v1, v7")
    a("v_xor_b32 v2, 1, v1")
    a("v_xor_b32 v3, 2, v1")
    a("v_xor_b32 v4, 3, v1")
    a("v_lshlrev_b32 v8, 8, v6")
    for i in range(4):
        a(f"v_lshl_add_u32 v{1+i}, v{1+i}, 4, v8")
    a("s_lshl_b32 s60, s11, 18")
    a("s_lshl_b32 s6, s3, 12")
    a("s_add_u32 s60, s60, s6")
    a("s_mov_b32 s61, s60")
    a("s_lshl_b32 s62, s3, 15")
    a("s_waitcnt lgkmcnt(0)")
    srd(48, 18, 0x4000000)
    srd(52, 20, 0x4000000)
    a("s_load_dword s4, s[42:43], 0")
    if touch:
        a("s_load_dword s88, s[20:21], s60")
        a("s_and_b32 s6, s2, 7")
        a("s_lshl_b32 s6, s6, 19")
        a("s_load_dword s89, s[24:25], s6")
        a("s_load_dword s90, s[32:33], 0")
        a("s_load_dword s91, s[30:31], 0")
        a("s_load_dword s92, s[34:35], 0")
        a("s_load_dword s93, s[36:37], 0")
        a(f"s_mov_b32 s6, {OG:#x}")
        a("s_load_dword s94, s[42:43], s6")
        a("s_load_dword s95, s[38:39], 0")
    a("s_barrier")

    nissued = [0]
    pos = {}
    covered = [0]
    Dcur = [D1]
    def throttle():
        D = Dcur[0]
        if D >= 63: return
        if nissued[0] - covered[0] > D - 1:
            a(f"s_waitcnt vmcnt({D-1})")
            covered[0] = nissued[0] - (D - 1)
    def issueK(tt):
        a(f"s_add_u32 m0, s62, {(tt & 7) * 4096}")
        for i in range(4):
            throttle()
            a(f"buffer_load_dwordx4 v{1+i}, s[48:51], s60 offen offset:{i*1024} {kvpol} lds")
            nissued[0] += 1
        pos[("k", tt)] = nissued[0]
        a("s_add_u32 s60, s60, 16384")
    def vreg(tt, i):
        return 64 + 4 * (4 * (tt % 12) + i)
    def issueV(tt):
        for i in range(4):
            r = vreg(tt, i)
            throttle()
            a(f"buffer_load_dwordx4 v[{r}:{r+3}], v5, s[52:55], s61 offen offset:{i*1024} {kvpol}")
            nissued[0] += 1
            pos[("v", tt, i)] = nissued[0]
        pos[("v", tt)] = nissued[0]
        a("s_add_u32 s61, s61, 16384")
    def waitfor(key):
        if pos[key] <= covered[0]: return
        n = min(nissued[0] - pos[key], 63)
        a(f"s_waitcnt vmcnt({n})")
        covered[0] = nissued[0] - n

    issueK(0)
    if sprio: a(f"s_setprio {sprio}")
    srd(44, 42, 0x10000000)
    a("v_and_b32 v8, 3, v7")
    a("v_lshlrev_b32 v8, 10, v8")
    a("v_lshrrev_b32 v9, 2, v7")
    a("v_lshl_add_u32 v8, v9, 8, v8")
    a("v_add_u32 v8, s62, v8")
    a("v_xor_b32 v9, v6, v7")
    a("v_and_b32 v44, 3, v7")
    a("v_lshlrev_b32 v44, 8, v44")
    a("v_lshl_add_u32 v44, v6, 4, v44")
    a(f"v_add_u32 v44, {Q_L:#x}, v44")
    a("v_xor_b32 v45, 4, v9")
    a("v_xor_b32 v46, 8, v9")
    a("v_xor_b32 v47, 12, v9")
    a("v_lshl_add_u32 v6, v9, 4, v8")
    a("v_lshl_add_u32 v7, v45, 4, v8")
    a("v_lshl_add_u32 v9, v47, 4, v8")
    a("v_lshl_add_u32 v8, v46, 4, v8")
    a("s_mov_b32 s64, 0x00f000f0"); a("s_mov_b32 s65, 0x00f000f0")
    a("s_mov_b32 s66, 0x0f000f00"); a("s_mov_b32 s67, 0x0f000f00")
    a("s_mov_b32 s70, 0xf000f000"); a("s_mov_b32 s71, 0xf000f000")
    MASK = {1: "s[64:65]", 2: "s[66:67]", 3: "s[70:71]"}
    a("s_mov_b32 s8, 0x05040100")
    a("s_mov_b32 s9, 0x07060302")
    a(f"s_mov_b32 s10, {f32(CSC)}")
    a(f"v_mov_b32 v45, {C_L:#x}")
    a("v_mov_b32 v46, 1")
    srd(56, 34, 1024)
    a("s_and_b32 s6, s11, 31")
    a("s_lshr_b32 s6, s6, 1")
    a("s_lshl_b32 s6, s6, 5")
    a("s_and_b32 s7, s11, 1")
    a("s_lshl_b32 s7, s7, 3")
    a("s_add_u32 s69, s6, s7")
    a("s_lshl_b32 s68, s69, 1")
    a("v_and_b32 v12, 7, v0")
    a("v_lshlrev_b32 v12, 1, v12")
    tagcalc()
    seqno = [1]
    def tick():
        if seqno[0] == qtrig:
            cnt_add(16, 45, 46)
        seqno[0] += 1
    for tt in range(1, 8):
        issueK(tt); tick()
    a("buffer_load_ushort v10, v12, s[56:59], s68 offen")
    a("buffer_load_ushort v11, v12, s[56:59], s68 offen offset:32")
    nissued[0] += 2
    vn = [0]
    def nextV():
        issueV(vn[0]); vn[0] += 1
        if vn[0] - 1 == trig:
            a(f"v_mov_b32 v1, {C_L:#x}")
            a("v_mov_b32 v2, 1")
            cnt_add(12, 1, 2)
    for tt in range(0, npre):
        nextV(); tick()
    stamp(1)
    cnt_wait(4, "L_wq", 45, 46, 63)
    stamp(2)
    Dcur[0] = D2
    QFR, KT, DT, SD = 12, 28, 44, 48
    for j in range(4):
        a(f"ds_read_b128 v[{QFR+4*j}:{QFR+4*j+3}], v44 offset:{64*j}")
    a("s_waitcnt lgkmcnt(0)")
    def S(tt):
        waitfor(("k", tt))
        slot = tt & 7
        G = tt >> 1; t = G & 3; st = 2 * (G >> 2) + (tt & 1)
        dst = SD + 4 * st if t == 0 else DT
        for j in range(4):
            a(f"ds_read_b128 v[{KT+4*j}:{KT+4*j+3}], v{6+j} offset:{slot*4096}")
        for j in range(4):
            a(f"s_waitcnt lgkmcnt({3-j})")
            c = "0" if j == 0 else f"v[{dst}:{dst+3}]"
            a(f"v_mfma_f32_16x16x32_bf16 v[{dst}:{dst+3}], v[{KT+4*j}:{KT+4*j+3}], v[{QFR+4*j}:{QFR+4*j+3}], {c}")
        return (t, st)
    def Ssel(ts):
        t, st = ts
        if t != 0:
            for r in range(4):
                a(f"v_cndmask_b32 v{SD+4*st+r}, v{SD+4*st+r}, v{DT+r}, {MASK[t]}")
    for tt in range(8):
        ts = S(tt)
        issueK(tt + 8)
        Ssel(ts)
        if tt >= 2:
            Ssel(S(tt + 6))
    nextV(); Ssel(S(14))
    nextV(); Ssel(S(15))
    a(f"v_max3_f32 v44, v{SD}, v{SD+1}, v{SD+2}")
    a(f"v_max3_f32 v45, v{SD+3}, v{SD+4}, v{SD+5}")
    a(f"v_max3_f32 v46, v{SD+6}, v{SD+7}, v{SD+8}")
    a(f"v_max3_f32 v47, v{SD+9}, v{SD+10}, v{SD+11}")
    a(f"v_max3_f32 v44, v44, v{SD+12}, v{SD+13}")
    a(f"v_max3_f32 v45, v45, v{SD+14}, v{SD+15}")
    a(f"v_max3_f32 v44, v44, v46, v47")
    a(f"v_max_f32 v44, v44, v45")
    xlane("v_max_f32", 44, 45)
    a("v_mul_f32 v44, s10, v44")
    a("v_and_b32 v46, 3, v0")
    a("v_lshlrev_b32 v46, 4, v46")
    a("s_lshl_b32 s6, s3, 2")
    a(f"s_add_u32 s6, s6, {M_L:#x}")
    a("v_add_u32 v47, s6, v46")
    for i in range(16):
        a(f"v_fma_f32 v{SD+i}, v{SD+i}, s10, -v44")
    nextV()
    for i in range(16):
        a(f"v_exp_f32 v{SD+i}, v{SD+i}")
    a(f"v_add_f32 v28, v{SD}, v{SD+1}")
    a(f"v_add_f32 v29, v{SD+2}, v{SD+3}")
    a(f"v_add_f32 v30, v{SD+4}, v{SD+5}")
    a(f"v_add_f32 v31, v{SD+6}, v{SD+7}")
    for k in range(2):
        for q in range(4):
            a(f"v_add_f32 v{28+q}, v{28+q}, v{SD+8+4*k+q}")
    a("v_add_f32 v28, v28, v29")
    a("v_add_f32 v30, v30, v31")
    a("v_add_f32 v28, v28, v30")
    xlane("v_add_f32", 28, 29)
    a("s_mov_b64 exec, 15")
    a("ds_write_b32 v47, v44")
    a(f"ds_write_b32 v47, v28 offset:{L_L-M_L}")
    a("s_mov_b64 exec, -1")
    for i in range(8):
        a(f"v_cvt_pk_bf16_f32 v{SD+i}, v{SD+2*i}, v{SD+2*i+1}")
    a(f"v_mov_b32 v1, {C_L:#x}")
    a("v_mov_b32 v2, 1")
    a("s_waitcnt lgkmcnt(0)")
    cnt_add(8, 1, 2)
    stamp(3)
    OA, AT, PT = 12, 44, 56
    def PV(G, last=False):
        t = G & 3; aa = G >> 2
        src = SD + 4 * aa
        if t != 0:
            for i in range(4):
                a(f"v_mov_b32_dpp v{AT+i}, v{src+i} row_shl:{4*t} row_mask:0xf bank_mask:0xf bound_ctrl:0")
            src = AT
        X, Y = 2 * G, 2 * G + 1
        def V(e, p):
            return vreg(X if e < 4 else Y, e & 3) + p
        if not last:
            waitfor(("v", Y))
            def perms(dd):
                p, sel = dd >> 1, ("s8" if (dd & 1) == 0 else "s9")
                tb = PT + 4 * (dd & 1)
                for q in range(4):
                    a(f"v_perm_b32 v{tb+q}, v{V(2*q+1, p)}, v{V(2*q, p)}, {sel}")
            def mf(dd):
                tb = PT + 4 * (dd & 1)
                c = "0" if G == 0 else f"v[{OA+4*dd}:{OA+4*dd+3}]"
                a(f"v_mfma_f32_16x16x32_bf16 v[{OA+4*dd}:{OA+4*dd+3}], v[{src}:{src+3}], v[{tb}:{tb+3}], {c}")
            perms(0)
            for dd in range(8):
                if dd + 1 < 8: perms(dd + 1)
                mf(dd)
        else:
            TB = vreg(4, 0)
            for q in range(4):
                key = ("v", X if q < 2 else Y, (2 * q + 1) & 3)
                waitfor(key)
                for dd in range(8):
                    p, sel = dd >> 1, ("s8" if (dd & 1) == 0 else "s9")
                    a(f"v_perm_b32 v{TB+4*dd+q}, v{V(2*q+1, p)}, v{V(2*q, p)}, {sel}")
            for dd in range(8):
                a(f"v_mfma_f32_16x16x32_bf16 v[{OA+4*dd}:{OA+4*dd+3}], v[{src}:{src+3}], v[{TB+4*dd}:{TB+4*dd+3}], v[{OA+4*dd}:{OA+4*dd+3}]")
    def factors():
        a(f"v_mov_b32 v1, {C_L:#x}")
        cnt_wait(8, "L_wml", 1, 2, 63, target=5)
        a("s_lshl_b32 s6, s3, 4")
        a(f"s_add_u32 s6, s6, {M_L:#x}")
        a("v_mov_b32 v1, s6")
        TR = vreg(6, 0)
        a(f"ds_read_b128 v[{TR}:{TR+3}], v1")
        a(f"ds_read_b128 v[{TR+4}:{TR+7}], v1 offset:{L_L-M_L}")
        a(f"v_mov_b32 v1, {G_L:#x}")
        a("ds_read_b32 v4, v1")
        a("v_and_b32 v2, 1, v0")
        a("v_lshlrev_b32 v2, 10, v2")
        a("v_bfe_u32 v3, v0, 1, 4")
        a("v_lshl_add_u32 v2, v3, 4, v2")
        a("v_lshrrev_b32 v3, 5, v0")
        a("v_lshl_add_u32 v2, v3, 16, v2")
        a("s_lshl_b32 s6, s3, 2")
        a("v_add_u32 v2, s6, v2")
        a("v_add_u32 v3, s62, v5")
        a("s_waitcnt lgkmcnt(0)")
        a(f"v_max3_f32 v6, v{TR}, v{TR+1}, v{TR+2}")
        a(f"v_max_f32 v6, v6, v{TR+3}")
        for w in range(4):
            a(f"v_sub_f32 v{TR+w}, v{TR+w}, v6")
        for w in range(4):
            a(f"v_exp_f32 v{TR+w}, v{TR+w}")
        a(f"v_mul_f32 v7, v{TR}, v{TR+4}")
        for w in range(1, 4):
            a(f"v_fma_f32 v7, v{TR+w}, v{TR+4+w}, v7")
        a("v_rcp_f32 v7, v7")
        a("v_sub_f32 v9, 1.0, v4")
        a("s_mov_b32 s6, 0")
        a("s_mov_b32 s7, -1")
        a("v_mul_f32 v7, v7, v4")
        a(f"v_cndmask_b32 v6, v{TR}, v{TR+2}, s[6:7]")
        a(f"v_cndmask_b32 v8, v{TR+1}, v{TR+3}, s[6:7]")
        a("v_mul_f32 v6, v6, v7")
        a("v_mul_f32 v7, v8, v7")
        a("v_lshlrev_b32 v10, 16, v10")
        a("v_lshlrev_b32 v11, 16, v11")
        a("v_mul_f32 v10, v10, v9")
        a("v_mul_f32 v11, v11, v9")
        a("s_and_b32 s6, s11, 0x1c")
        a("s_add_u32 s6, s6, s3")
        a("s_lshl_b32 s63, s6, 14")
        a("s_lshr_b32 s6, s11, 5")
        a("s_lshl_b32 s6, s6, 11")
        a("s_add_u32 s63, s63, s6")
        a("s_and_b32 s6, s11, 3")
        a("s_lshl_b32 s6, s6, 9")
        a("s_add_u32 s63, s63, s6")
        a(f"s_add_u32 s63, s63, {OG:#x}")
        a(f"v_mov_b32 v1, {C_L:#x}")
        a("v_mov_b32 v4, 1")
    G = 0
    while vn[0] < 16:
        if vn[0] >= 12 and G <= (vn[0] - 12) // 2:
            PV(G); G += 1
            continue
        nextV()
        k = 0
        while vn[0] < 16 and 2 * G + 1 <= vn[0] - 3 and G < 6 and k < 2:
            PV(G); G += 1; k += 1
    stamp(4)
    while G < 4:
        PV(G); G += 1
    factors()
    while G < 7:
        PV(G); G += 1
    PV(7, last=True)
    a("s_mov_b64 exec, 0xffff")
    for dd in range(8):
        a(f"ds_write_b128 v3, v[{OA+4*dd}:{OA+4*dd+3}] offset:{dd*256}")
    a("s_mov_b64 exec, 1")
    a("ds_add_u32 v1, v4 offset:20")
    a("s_mov_b64 exec, -1")
    a("v_mov_b32 v49, s5")
    a("v_mov_b32 v51, s5")
    a(f"s_mov_b32 s60, {spin_max*4}")
    a("L_wo:")
    a("ds_read_b32 v44, v1 offset:20")
    a("ds_read2st64_b32 v[52:53], v2 offset0:0 offset1:1")
    a("ds_read2st64_b32 v[54:55], v2 offset0:2 offset1:3")
    a("ds_read2st64_b32 v[56:57], v2 offset0:128 offset1:129")
    a("ds_read2st64_b32 v[58:59], v2 offset0:130 offset1:131")
    a("s_waitcnt lgkmcnt(4)")
    a("v_cmp_gt_u32 vcc, 4, v44")
    a("s_sub_u32 s60, s60, 1")
    a("s_cbranch_scc1 L_wo_go")
    a("s_cbranch_vccnz L_wo")
    a("L_wo_go:")
    a("s_waitcnt lgkmcnt(2)")
    for k in range(4):
        a(f"v_mul_f32 v{52+k}, v{52+k}, v6")
    a("s_waitcnt lgkmcnt(0)")
    for k in range(4):
        a(f"v_fma_f32 v{52+k}, v{56+k}, v7, v{52+k}")
    for k in range(4):
        a(f"v_mov_b32 v{56+k}, v{52+k}")
    for k in range(4):
        a(f"v_permlane32_swap_b32 v{52+k}, v{56+k}")
    for k in range(4):
        a(f"v_add_f32 v{52+k}, v{52+k}, v{56+k}")
    a("v_cvt_pk_bf16_f32 v48, v52, v53")
    a("v_cvt_pk_bf16_f32 v50, v54, v55")
    a("s_mov_b64 exec, 0xffffffff")
    a("buffer_store_dwordx4 v[48:51], v5, s[44:47], s63 offen sc1")
    a("s_mov_b64 exec, -1")
    stamp(5)
    a("s_cmp_lg_u32 s3, 0")
    a("s_cbranch_scc1 L_end")
    srd(48, 38, 8192)
    a("s_lshr_b32 s6, s11, 5")
    a("s_lshl_b32 s60, s11, 12")
    a(f"s_add_u32 s60, s60, {PG:#x}")
    a("s_lshl_b32 s6, s6, 9")
    a("s_add_u32 s6, s6, s69")
    a("s_lshl_b32 s61, s6, 1")
    a("v_lshlrev_b32 v2, 1, v0")
    a(f"s_mov_b32 s62, {spin_max}")
    a("L_fin_poll:")
    for t in range(4):
        a(f"buffer_load_dwordx4 v[{12+4*t}:{15+4*t}], v5, s[44:47], s60 offen offset:{t*1024} sc1")
    a("s_waitcnt vmcnt(2)")
    a("v_xor_b32 v28, s5, v13")
    a("v_xor_b32 v29, s5, v15")
    a("v_xor_b32 v30, s5, v17")
    a("v_xor_b32 v31, s5, v19")
    a("v_add_f32 v12, v12, v16")
    a("v_add_f32 v14, v14, v18")
    a("v_or3_b32 v28, v28, v29, v30")
    a("s_waitcnt vmcnt(0)")
    a("v_xor_b32 v29, s5, v21")
    a("v_xor_b32 v30, s5, v23")
    a("v_xor_b32 v32, s5, v25")
    a("v_xor_b32 v33, s5, v27")
    a("v_add_f32 v20, v20, v24")
    a("v_add_f32 v22, v22, v26")
    a("v_or3_b32 v28, v28, v31, v29")
    a("v_or3_b32 v30, v30, v32, v33")
    a("v_add_f32 v12, v12, v20")
    a("v_add_f32 v14, v14, v22")
    a("v_or_b32 v28, v28, v30")
    a("v_cmp_ne_u32 vcc, 0, v28")
    a("s_sub_u32 s62, s62, 1")
    a("s_cbranch_scc1 L_fin_go")
    a("s_cbranch_vccnz L_fin_poll")
    a("L_fin_go:")
    prs = ((12, 13), (14, 15))
    for r, tmp in prs: a(f"v_add_f32_dpp v{r}, v{r}, v{r} row_ror:8 row_mask:0xf bank_mask:0xf")
    for r, tmp in prs: a(f"v_mov_b32 v{tmp}, v{r}")
    for r, tmp in prs: a(f"v_permlane16_swap_b32 v{r}, v{tmp}")
    for r, tmp in prs: a(f"v_add_f32 v{r}, v{r}, v{tmp}")
    for r, tmp in prs: a(f"v_mov_b32 v{tmp}, v{r}")
    for r, tmp in prs: a(f"v_permlane32_swap_b32 v{r}, v{tmp}")
    a("v_add_f32 v12, v12, v13")
    a("v_add_f32 v14, v14, v15")
    a("v_add_f32 v12, v12, v10")
    a("v_add_f32 v14, v14, v11")
    a("v_cvt_pk_bf16_f32 v12, v12, v14")
    a("s_mov_b64 exec, 0xff")
    a(f"buffer_store_short v12, v2, s[48:51], s61 offen {outpol}")
    a(f"buffer_store_short_d16_hi v12, v2, s[48:51], s61 offen offset:32 {outpol}")
    a("s_cmp_lg_u32 s2, 0")
    a("s_cbranch_scc1 L_fin_done")
    a("s_mov_b64 exec, 1")
    a("v_mov_b32 v3, s5")
    a("v_mov_b32 v4, 0")
    a("buffer_store_dword v3, v4, s[44:47], 0 offen sc1")
    a("L_fin_done:")
    a("s_mov_b64 exec, -1")
    stamp(6)
    stamp_store(0)
    a("s_endpgm")

    a("L_helper2:")
    a("s_cmp_lg_u32 s3, 3")
    a("s_cbranch_scc1 L_nogate")
    srd(48, 36, 1024)
    a("s_lshr_b32 s60, s11, 5")
    a("s_lshl_b32 s62, s60, 10")
    a("buffer_load_dwordx4 v[32:35], v5, s[52:55], s62 offen")
    a("buffer_load_dwordx4 v[36:39], v5, s[48:51], 0 offen")
    a("v_mov_b32 v40, 0")
    a(f"v_mov_b32 v2, {G_L:#x}")
    a("s_waitcnt vmcnt(0)")
    for i in range(4):
        a(f"v_dot2_f32_bf16 v40, v{32+i}, v{36+i}, v40")
    a("v_add_f32_dpp v40, v40, v40 quad_perm:[1,0,3,2] row_mask:0xf bank_mask:0xf")
    a("v_add_f32_dpp v40, v40, v40 quad_perm:[2,3,0,1] row_mask:0xf bank_mask:0xf")
    xlane("v_add_f32", 40, 41)
    a(f"v_mul_f32 v40, {f32(-LOG2E)}, v40")
    a("v_exp_f32 v40, v40")
    a("v_add_f32 v40, 1.0, v40")
    a("v_rcp_f32 v40, v40")
    a("s_mov_b64 exec, 1")
    a("ds_write_b32 v2, v40")
    a("s_waitcnt lgkmcnt(0)")
    a("ds_add_u32 v10, v20 offset:8")
    a("s_and_b32 s6, s11, 31")
    a("s_cmp_lg_u32 s6, 0")
    a("s_cbranch_scc1 L_gate_done")
    a("v_sub_f32 v42, 1.0, v40")
    a("v_mov_b32 v43, s5")
    a("v_mov_b32 v44, 0")
    a("s_lshl_b32 s6, s60, 3")
    a(f"s_add_u32 s6, s6, {GG:#x}")
    a("buffer_store_dwordx2 v[42:43], v44, s[44:47], s6 offen sc1")
    a("L_gate_done:")
    a("s_mov_b64 exec, -1")
    a("L_nogate:")
    a("s_lshr_b32 s62, s11, 2")
    a("s_lshl_b32 s62, s62, 13")
    a("s_lshl_b32 s6, s3, 11")
    a("s_add_u32 s62, s62, s6")
    a(f"s_add_u32 s62, s62, {QP:#x}")
    a("s_lshl_b32 s6, s3, 8")
    a(f"s_add_u32 s6, s6, {Q_L:#x}")
    a("v_and_b32 v2, 31, v0")
    a("v_lshl_add_u32 v2, v2, 3, s6")
    cnt_wait(16, "L_qt", 10, 21, 65, sleep=4, target=1)
    a(f"s_mov_b32 s65, {spin_max}")
    if no_qp: a("s_branch L_qp_go")
    a("L_qp:")
    a("buffer_load_dwordx4 v[32:35], v5, s[44:47], s62 offen sc1")
    a("buffer_load_dwordx4 v[36:39], v5, s[44:47], s62 offen offset:1024 sc1")
    a("s_waitcnt vmcnt(0)")
    for k in range(4):
        a(f"v_xor_b32 v{33+2*k}, s5, v{33+2*k}")
    a("v_or3_b32 v33, v33, v35, v37")
    a("v_or_b32 v33, v33, v39")
    a("v_cmp_ne_u32 vcc, 0, v33")
    a("s_cbranch_vccz L_qp_go")
    if qsleep: a(f"s_sleep {qsleep}")
    a("s_sub_u32 s65, s65, 1")
    a("s_cbranch_scc0 L_qp")
    a("L_qp_go:")
    def unpack_sum(nk):
        for k in range(nk):
            for h in range(2):
                src = 32 + 4 * k + 2 * h
                if k == 0:
                    a(f"v_lshlrev_b32 v{12+2*h}, 16, v{src}")
                    a(f"v_and_b32 v{13+2*h}, 0xffff0000, v{src}")
                else:
                    a(f"v_lshlrev_b32 v{src+1}, 16, v{src}")
                    a(f"v_and_b32 v{src}, 0xffff0000, v{src}")
                    a(f"v_add_f32 v{12+2*h}, v{12+2*h}, v{src+1}")
                    a(f"v_add_f32 v{13+2*h}, v{13+2*h}, v{src}")
        for e in range(4): a(f"v_mov_b32 v{16+e}, v{12+e}")
        for e in range(4): a(f"v_permlane32_swap_b32 v{12+e}, v{16+e}")
        for e in range(4): a(f"v_add_f32 v{12+e}, v{12+e}, v{16+e}")
    unpack_sum(2)
    a("v_cvt_pk_bf16_f32 v12, v12, v13")
    a("v_cvt_pk_bf16_f32 v13, v14, v15")
    a("ds_write_b64 v2, v[12:13]")
    a("s_waitcnt lgkmcnt(0)")
    cnt_add(4, 10, 20)
    a(f"s_setprio {hprio}")
    stamp(2)
    a("s_lshr_b32 s60, s2, 5")
    a("s_and_b32 s61, s2, 7")
    a("s_lshl_b32 s61, s61, 2")
    a("s_bfe_u32 s6, s2, 0x20003")
    a("s_add_u32 s61, s61, s6")
    srd(48, 24, 0x400000)
    srd(56, 32, 1792 * 1024)
    srd(52, 30, 3584)
    a("s_lshl_b32 s64, s60, 7")
    a("s_lshl_b32 s62, s61, 17")
    a("s_add_u32 s62, s62, s64")
    a("s_lshl_b32 s6, s3, 15")
    a("s_add_u32 s62, s62, s6")
    a("s_lshl_b32 s66, s61, 16")
    a("s_add_u32 s66, s66, s64")
    a("s_lshl_b32 s6, s3, 14")
    a("s_add_u32 s66, s66, s6")
    a(f"s_mov_b32 s90, {WO_L:#x}")
    a("v_lshrrev_b32 v24, 3, v0")
    a("v_and_b32 v12, 2, v24")
    a("v_xor_b32 v12, v12, v8")
    a("v_lshlrev_b32 v24, 10, v24")
    a("v_lshl_add_u32 v24, v12, 4, v24")
    a("v_xor_b32 v25, 64, v24")
    a(f"v_add_u32 v26, {2*(8192-1024)}, v24")
    a(f"v_add_u32 v27, {3*(8192-1024)}, v25")
    a(f"v_add_u32 v25, {8192-1024}, v25")
    a("v_bfe_u32 v12, v0, 3, 2")
    a("v_lshlrev_b32 v12, 5, v12")
    a(f"v_add3_u32 v120, v11, v12, s90")
    a("v_xor_b32 v121, 32, v120")
    a("v_xor_b32 v122, 64, v120")
    a("v_xor_b32 v123, 96, v120")
    a("v_bfe_u32 v12, v7, 2, 1")
    a("v_mul_u32_u24 v4, 144, v12")
    a("v_lshl_add_u32 v4, v6, 4, v4")
    a("s_mul_i32 s6, s3, 288")
    a(f"s_add_u32 s6, s6, {HA_L:#x}")
    a("v_add_u32 v4, s6, v4")
    a("v_bfe_u32 v12, v0, 3, 2")
    a("v_lshlrev_b32 v53, 3, v12")
    a("v_mul_u32_u24 v1, 144, v8")
    a("s_lshl_b32 s6, s3, 5")
    a(f"s_add_u32 s6, s6, {HA_L:#x}")
    a("v_add3_u32 v1, v1, v53, s6")
    a("v_lshlrev_b32 v52, 3, v8")
    a("v_and_b32 v12, 1, v6")
    a("v_lshlrev_b32 v11, 10, v12")
    a("s_lshl_b32 s69, s3, 11")
    a("s_lshl_b32 s6, s61, 5")
    a("s_add_u32 s69, s69, s6")
    a(f"s_add_u32 s69, s69, {LG:#x}")
    a("s_lshl_b32 s70, s61, 14")
    a("s_lshl_b32 s6, s3, 12")
    a("s_add_u32 s70, s70, s6")
    a(f"s_add_u32 s63, s70, {HP:#x}")
    a(f"s_add_u32 s70, s70, {OG:#x}")
    a("s_lshl_b32 s6, s3, 15")
    a(f"s_add_u32 s6, s6, {AS_OFF:#x}")
    a("v_lshrrev_b32 v13, 5, v0")
    a("v_and_b32 v14, 31, v0")
    a("v_mul_u32_u24 v13, 272, v13")
    a("v_lshl_add_u32 v13, v14, 3, v13")
    a("v_add_u32 v2, s6, v13")
    a("v_mul_u32_u24 v13, 272, v8")
    a("v_lshl_add_u32 v13, v6, 4, v13")
    a("v_add_u32 v58, s6, v13")
    a("v_lshlrev_b32 v59, 17, v12")
    a("v_lshrrev_b32 v12, 3, v7")
    a("v_lshl_add_u32 v59, v12, 12, v59")
    a("v_lshl_add_u32 v59, v8, 4, v59")
    a("s_lshl_b32 s71, s3, 18")
    a("s_lshl_b32 s6, s60, 14")
    a("s_add_u32 s71, s71, s6")
    a("s_lshl_b32 s6, s61, 7")
    a("s_add_u32 s71, s71, s6")
    a(f"s_add_u32 s71, s71, {PG:#x}")
    a("s_add_u32 s8, s71, 8192")
    if no_h: a("s_branch L_nohact")
    a("s_cmp_ge_u32 s61, 28")
    a("s_cbranch_scc1 L_nohact")
    a("s_lshl_b32 s6, s61, 7")
    a("s_lshl_b32 s7, s3, 5")
    a("s_add_u32 s6, s6, s7")
    a("buffer_load_dwordx2 v[54:55], v53, s[52:55], s6 offen")
    a(f"s_mov_b32 s64, {GG:#x}")
    a(f"s_mov_b32 s65, {spin_max}")
    a("L_hp:")
    for k in range(4):
        a(f"buffer_load_dwordx4 v[{32+4*k}:{35+4*k}], v5, s[44:47], s63 offen offset:{k*1024} sc1")
    a("buffer_load_dwordx2 v[56:57], v52, s[44:47], s64 offen sc1")
    a("s_waitcnt vmcnt(0)")
    for k in range(8):
        a(f"v_xor_b32 v{33+2*k}, s5, v{33+2*k}")
    a("v_xor_b32 v48, s5, v57")
    a("v_or3_b32 v33, v33, v35, v37")
    a("v_or3_b32 v39, v39, v41, v43")
    a("v_or3_b32 v45, v45, v47, v48")
    a("v_or3_b32 v33, v33, v39, v45")
    a("v_cmp_ne_u32 vcc, 0, v33")
    a("s_cbranch_vccz L_hp_go")
    a("s_sleep 16")
    a("s_sub_u32 s65, s65, 1")
    a("s_cbranch_scc0 L_hp")
    a("L_hp_go:")
    unpack_sum(4)
    a("v_lshlrev_b32 v16, 16, v54")
    a("v_and_b32 v17, 0xffff0000, v54")
    a("v_lshlrev_b32 v18, 16, v55")
    a("v_and_b32 v19, 0xffff0000, v55")
    for e in range(4): a(f"v_add_f32 v{12+e}, v{12+e}, v{16+e}")
    for e in range(4): a(f"v_max_f32 v{12+e}, 0, v{12+e}")
    for e in range(4): a(f"v_mul_f32 v{16+e}, v{12+e}, v56")
    for e in range(4): a(f"v_mul_f32 v{12+e}, v{12+e}, v{16+e}")
    a("v_cvt_pk_bf16_f32 v12, v12, v13")
    a("v_cvt_pk_bf16_f32 v13, v14, v15")
    a("ds_write_b64 v1, v[12:13]")
    a("L_nohact:")
    a("s_cmp_lg_u32 s3, 0")
    a("s_cbranch_scc1 L_nolse")
    cnt_wait(8, "L_hml", 10, 21, 65, sleep=8, target=5)
    a("v_lshlrev_b32 v12, 4, v9")
    a(f"v_add_u32 v12, {M_L:#x}, v12")
    a("ds_read_b128 v[16:19], v12")
    a(f"ds_read_b128 v[32:35], v12 offset:{L_L-M_L}")
    a("s_and_b32 s6, s11, 0xfc")
    a("s_lshl_b32 s6, s6, 5")
    a("s_and_b32 s7, s11, 3")
    a("s_lshl_b32 s7, s7, 3")
    a("s_add_u32 s6, s6, s7")
    a(f"s_add_u32 s6, s6, {LG:#x}")
    a("v_lshlrev_b32 v13, 5, v9")
    a("s_waitcnt lgkmcnt(0)")
    a("v_max3_f32 v14, v16, v17, v18")
    a("v_max_f32 v14, v14, v19")
    for w in range(4): a(f"v_sub_f32 v{16+w}, v{16+w}, v14")
    for w in range(4): a(f"v_exp_f32 v{16+w}, v{16+w}")
    a("v_mul_f32 v36, v16, v32")
    for w in range(1, 4): a(f"v_fma_f32 v36, v{16+w}, v{32+w}, v36")
    a("v_log_f32 v36, v36")
    a("v_mov_b32 v15, s5")
    a("v_add_f32 v14, v14, v36")
    a("s_mov_b64 exec, 15")
    a("buffer_store_dwordx2 v[14:15], v13, s[44:47], s6 offen sc1")
    a("s_mov_b64 exec, -1")
    a("L_nolse:")
    cnt_wait(12, "L_trig", 10, 21, 65, sleep=4)
    if no_wo: a("s_branch L_now2")
    a("s_mov_b32 m0, s67")
    a("s_nop 0")
    for i in range(4):
        a(f"buffer_load_dwordx4 v{24+i}, s[48:51], s62 offen offset:{i*1024} {wpol} lds")
    a("s_cmp_ge_u32 s61, 28")
    a("s_cbranch_scc1 L_now2")
    a("s_mov_b32 m0, s68")
    a("s_nop 0")
    for i in range(2):
        a(f"buffer_load_dwordx4 v{24+i}, s[56:59], s66 offen offset:{i*1024} {wpol} lds")
    a("L_now2:")
    for k in range(4):
        a(f"v_mov_b32 v{65+2*k}, s5")
    a("v_add_u32 v9, 1088, v2")
    a("v_mov_b32 v36, 1")
    stamp(3)
    WOF, W2F, AF, ACC = 128, 192, 72, 96
    a(f"s_mov_b32 s64, {spin_max}")
    a("L_lp:")
    a("buffer_load_dwordx4 v[28:31], v11, s[44:47], s69 offen sc1")
    a("buffer_load_dwordx4 v[32:35], v11, s[44:47], s69 offen offset:16 sc1")
    a("s_waitcnt vmcnt(0)")
    for k in range(4):
        a(f"v_xor_b32 v{29+2*k}, s5, v{29+2*k}")
    a("v_or3_b32 v29, v29, v31, v33")
    a("v_or_b32 v29, v29, v35")
    a("v_cmp_ne_u32 vcc, 0, v29")
    a("s_sub_u32 s64, s64, 1")
    a("s_cbranch_scc1 L_lp_go")
    a("s_cbranch_vccz L_lp_go")
    a("s_sleep 4")
    a("s_branch L_lp")
    a("L_lp_go:")
    cnt_add(0, 10, 36)
    a("v_max3_f32 v44, v28, v30, v32")
    a("v_max_f32 v44, v44, v34")
    for k in range(4):
        a(f"v_sub_f32 v{48+k}, v{28+2*k}, v44")
    for k in range(4):
        a(f"v_exp_f32 v{48+k}, v{48+k}")
    a("v_add_f32 v44, v48, v49")
    a("v_add_f32 v45, v50, v51")
    a("v_add_f32 v44, v44, v45")
    a("v_rcp_f32 v44, v44")
    for k in range(4):
        a(f"v_mov_b32 v{60+k}, 0")
    for k in range(4):
        a(f"v_mul_f32 v{48+k}, v{48+k}, v44")
    def p2_loads():
        for k in range(4):
            a(f"buffer_load_dwordx4 v[{12+4*k}:{15+4*k}], v5, s[44:47], s70 offen offset:{k*1024} sc1")
    cnt_wait(0, "L_s2", 10, 37, 65, sleep=1, target=8)
    stamp(6)
    for j in range(4):
        for aa in range(4):
            for eh in range(2):
                r = WOF + 16 * j + 4 * aa + 2 * eh
                a(f"ds_read_b64_tr_b16 v[{r}:{r+1}], v{120+aa} offset:{j*4096 + eh*512}")
        a("s_waitcnt lgkmcnt(4)")
    p2_loads()
    a("s_cmp_ge_u32 s61, 28")
    a("s_cbranch_scc1 L_nomlp")
    for j in range(2):
        for aa in range(4):
            for eh in range(2):
                r = W2F + 16 * j + 4 * aa + 2 * eh
                a(f"ds_read_b64_tr_b16 v[{r}:{r+1}], v{120+aa} offset:{W2_L-WO_L + j*4096 + eh*512}")
        a("s_waitcnt lgkmcnt(4)")
    a("ds_read_b128 v[88:91], v4")
    a("ds_read_b128 v[92:95], v4 offset:64")
    a("s_waitcnt lgkmcnt(0)")
    for j in range(2):
        for aa in range(4):
            c = "0" if j == 0 else f"v[{ACC+4*aa}:{ACC+4*aa+3}]"
            a(f"v_mfma_f32_16x16x32_bf16 v[{ACC+4*aa}:{ACC+4*aa+3}], v[{88+4*j}:{91+4*j}], v[{W2F+16*j+4*aa}:{W2F+16*j+4*aa+3}], {c}")
    for aa in range(4):
        a(f"v_mov_b32 v{60+aa}, v{ACC+4*aa}")
    a("L_nomlp:")
    a(f"s_mov_b32 s64, {spin_max}")
    stamp(4)
    a("s_branch L_p2_body")
    a("L_p2_poll:")
    p2_loads()
    a("L_p2_body:")
    for k in range(4):
        a(f"s_waitcnt vmcnt({3-k})")
        va = "v2" if k < 2 else "v9"
        o = (k & 1) * 136
        a(f"ds_write2_b32 {va}, v{12+4*k}, v{14+4*k} offset0:{o} offset1:{o+1}")
        a(f"v_xor_b32 v{28+2*k}, s5, v{13+4*k}")
        a(f"v_xor_b32 v{29+2*k}, s5, v{15+4*k}")
    a("v_or3_b32 v28, v28, v29, v30")
    a("v_or3_b32 v31, v31, v32, v33")
    a("v_or3_b32 v28, v28, v34, v35")
    a("v_or_b32 v28, v28, v31")
    a("v_cmp_ne_u32 vcc, 0, v28")
    a("s_sub_u32 s64, s64, 1")
    a("s_waitcnt lgkmcnt(0)")
    a("s_cbranch_scc1 L_p2_go")
    a("s_cbranch_vccnz L_p2_poll")
    a("L_p2_go:")
    for j in range(4):
        a(f"ds_read_b128 v[{AF+4*j}:{AF+4*j+3}], v58 offset:{j*64}")
    for j in range(4):
        a(f"s_waitcnt lgkmcnt({3-j})")
        for aa in range(4):
            c = "0" if j == 0 else f"v[{ACC+4*aa}:{ACC+4*aa+3}]"
            a(f"v_mfma_f32_16x16x32_bf16 v[{ACC+4*aa}:{ACC+4*aa+3}], v[{AF+4*j}:{AF+4*j+3}], v[{WOF+16*j+4*aa}:{WOF+16*j+4*aa+3}], {c}")
    a("s_mov_b64 exec, 0xffffffff")
    for aa in range(4):
        for r in range(4):
            c = f"v{60+aa}" if r == 0 else f"v{64+2*aa}"
            a(f"v_fma_f32 v{64+2*aa}, v{ACC+4*aa+r}, v{48+r}, {c}")
        if aa == 1: a("buffer_store_dwordx4 v[64:67], v59, s[44:47], s71 offen sc1")
    a("buffer_store_dwordx4 v[68:71], v59, s[44:47], s8 offen sc1")
    a("s_mov_b64 exec, -1")
    stamp(5)
    if stamps:
        a("s_add_u32 s3, s3, 1")
        stamp_store("s3")
    a("L_end:")
    a("s_endpgm")
    a.raw('.section .rodata,"a"')
    a.raw(".p2align 6")
    a.raw(f".amdhsa_kernel {NAME}_kernel")
    a.raw("  .amdhsa_next_free_vgpr 256")
    a.raw("  .amdhsa_next_free_sgpr 96")
    a.raw("  .amdhsa_accum_offset 256")
    a.raw("  .amdhsa_group_segment_fixed_size 0")
    a.raw("  .amdhsa_kernarg_size 112")
    a.raw("  .amdhsa_user_sgpr_count 2")
    a.raw("  .amdhsa_user_sgpr_kernarg_segment_ptr 1")
    a.raw("  .amdhsa_system_sgpr_workgroup_id_x 1")
    a.raw(".end_amdhsa_kernel")
    return a.text()

if __name__ == "__main__":
    out = sys.argv[1]
    kw = json.loads(sys.argv[2]) if len(sys.argv) > 2 else {}
    open(out, "w").write(gen(**kw))
```

```python
import sys, json, math, struct
from asmdsl import Asm
NAME = "gated_mix__gqa_block_cached__dense_activation_squared_relu__decode"

GG, LG = 0x3000, 0x10000
QP, HP, OG, PG = 0x100000, 0x80000, 0x200000, 0x300000
STAMP = 0x8000000
def f32(x): return "0x%08x" % struct.unpack("<I", struct.pack("<f", x))[0]
CSC = math.log2(math.e) / math.sqrt(128.0)
LOG2E = math.log2(math.e)
HEADER = open("cdna_kernels/" + NAME + ".s.ref").read().split("; Override launch geometry")[0]

def gen(stamps=False, kvpol="nt", wpol="nt", spin_max=400000, D1=6, D2=6, qsleep=4, qtrig=6,
        trig=15, npre=4, rot=False, ttarget=4, early=True, st2=False, spread=False, amap=2, hprio=0, sprio=2, w2early=False, outpol="", touch=0, no_h=False, no_wo=False, no_qp=False, no_st=False, no_gate=False):
    a = Asm()
    NST = 8
    QSTR, HSTR = (67584, 540672) if spread else (2048, 16384)
    QP, HP = (0x1000000, 0x3000000) if spread else (0x100000, 0x80000)
    WQ_L, W1_L = 0x20000, 0x24000
    WO_L, W2_L = WQ_L, W1_L
    Q_L, M_L, L_L, G_L, C_L, HA_L = 0x26000, 0x26400, 0x26440, 0x26480, 0x264c0, 0x26500
    LDS_TOTAL = HA_L + 8 * 144
    AS_OFF = 0x1000
    a.raw(HEADER.rstrip())
    a.raw(f"; @launch grid=(256,1,1) block=(512,1,1) lds={LDS_TOTAL}")
    a.raw('.amdgcn_target "amdgcn-amd-amdhsa--gfx950"')
    a.raw(".text")
    a.raw(f".globl {NAME}_kernel")
    a.raw(".p2align 8")
    a.raw(f".type {NAME}_kernel,@function")
    a.label(f"{NAME}_kernel")

    def srd(d, base, size):
        a(f"s_mov_b32 s{d}, s{base}")
        a(f"s_mov_b32 s{d+1}, s{base+1}")
        a(f"s_mov_b32 s{d+2}, {size:#x}")
        a(f"s_mov_b32 s{d+3}, 0x00020000")
    def stamp(i):
        if stamps:
            a(f"s_memrealtime s[{72+2*i}:{73+2*i}]")
            a("s_waitcnt lgkmcnt(0)")
    def stamp_store(slot):
        if not stamps: return
        a(f"s_lshl_b32 s6, s2, 3")
        a(f"s_add_u32 s6, s6, {slot}")
        a(f"s_mul_i32 s6, s6, {NST*8}")
        a(f"s_add_u32 s6, s6, {STAMP:#x}")
        a("s_mov_b64 exec, 1")
        a("v_mov_b32 v1, 0")
        for i in range(0, NST, 2):
            for k in range(4):
                a(f"v_mov_b32 v{4+k}, s{72+2*i+k}")
            a(f"buffer_store_dwordx4 v[4:7], v1, s[44:47], s6 offen offset:{i*8}")
            a("s_nop 1")
        a("s_mov_b64 exec, -1")
    def tagcalc():
        a("s_waitcnt lgkmcnt(0)")
        a("s_mul_i32 s5, s4, 1664525")
        a("s_add_u32 s5, s5, 1013904223")
    def xlane(op, r, tmp):
        a(f"{op}_dpp v{r}, v{r}, v{r} row_ror:4 row_mask:0xf bank_mask:0xf")
        a(f"{op}_dpp v{r}, v{r}, v{r} row_ror:8 row_mask:0xf bank_mask:0xf")
        a(f"v_mov_b32 v{tmp}, v{r}")
        a(f"v_permlane16_swap_b32 v{r}, v{tmp}")
        a(f"{op} v{r}, v{r}, v{tmp}")
        a(f"v_mov_b32 v{tmp}, v{r}")
        a(f"v_permlane32_swap_b32 v{r}, v{tmp}")
        a(f"{op} v{r}, v{r}, v{tmp}")
    def cnt_add(off, vaddr, vone):
        a("s_mov_b64 exec, 1")
        a(f"ds_add_u32 v{vaddr}, v{vone} offset:{off}")
        a("s_mov_b64 exec, -1")
    def cnt_wait(off, lbl, vaddr, vtmp, sreg, sleep=0, target=4):
        a(f"s_mov_b32 s{sreg}, {spin_max*4}")
        a(f"{lbl}:")
        a(f"ds_read_b32 v{vtmp}, v{vaddr} offset:{off}")
        a("s_waitcnt lgkmcnt(0)")
        a(f"v_cmp_gt_u32 vcc, {target}, v{vtmp}")
        a(f"s_cbranch_vccz {lbl}_go")
        if sleep: a(f"s_sleep {sleep}")
        a(f"s_sub_u32 s{sreg}, s{sreg}, 1")
        a(f"s_cbranch_scc0 {lbl}")
        a(f"{lbl}_go:")
    def unit_id():
        if amap == 1:
            a("s_and_b32 s11, s2, 0xe0")
            a("s_and_b32 s6, s2, 7")
            a("s_lshl_b32 s6, s6, 2")
            a("s_add_u32 s11, s11, s6")
            a("s_bfe_u32 s6, s2, 0x20003")
            a("s_add_u32 s11, s11, s6")
        elif amap == 2:
            a("s_and_b32 s11, s2, 7")
            a("s_lshl_b32 s11, s11, 5")
            a("s_lshr_b32 s6, s2, 3")
            a("s_add_u32 s11, s11, s6")
        else:
            a("s_mov_b32 s11, s2")

    a("s_cmp_ge_u32 s2, 256")
    a("s_cbranch_scc1 L_end")
    if stamps:
        for i in range(NST):
            a(f"s_mov_b64 s[{72+2*i}:{73+2*i}], 0")
        a("s_memrealtime s[72:73]")
    a("s_load_dwordx16 s[16:31], s[0:1], 0")
    a("s_load_dwordx8 s[32:39], s[0:1], 64")
    a("s_load_dwordx4 s[40:43], s[0:1], 96")
    a("v_lshrrev_b32 v1, 6, v0")
    a("v_and_b32 v0, 63, v0")
    a("v_readfirstlane_b32 s3, v1")
    a("v_lshrrev_b32 v6, 4, v0")
    a("v_and_b32 v7, 15, v0")
    a("v_lshlrev_b32 v5, 4, v0")
    unit_id()
    a("s_cmp_lt_u32 s3, 4")
    a("s_cbranch_scc1 L_stream")

    a("s_setprio 3")
    a(f"v_mov_b32 v10, {C_L:#x}")
    for k in range(4): a(f"v_mov_b32 v{12+k}, 0")
    a("ds_write_b128 v10, v[12:15]")
    a("ds_write_b64 v10, v[12:13] offset:16")
    a("s_sub_u32 s3, s3, 4")
    a("v_lshrrev_b32 v16, 3, v0")
    a("v_and_b32 v8, 7, v0")
    a("v_lshlrev_b32 v1, 13, v16")
    a("v_lshl_add_u32 v1, v8, 4, v1")
    for i in range(1, 4):
        a(f"v_add_u32 v{1+i}, {i*(65536-1024)}, v1")
    a("v_mul_u32_u24 v16, 3584, v16")
    a("v_lshl_add_u32 v16, v8, 4, v16")
    a(f"v_add_u32 v17, {8*3584-1024}, v16")
    a("v_lshlrev_b32 v18, 10, v8")
    a("v_lshl_add_u32 v19, v6, 3, v18")
    a("v_lshl_add_u32 v18, v6, 4, v18")
    a("s_bfe_u32 s61, s2, 0x20003")
    a("s_and_b32 s60, s2, 7")
    a("s_lshl_b32 s60, s60, 3")
    a("s_lshr_b32 s6, s2, 5")
    a("s_add_u32 s60, s60, s6")
    a("s_lshl_b32 s62, s61, 20")
    a("s_lshl_b32 s6, s60, 7")
    a("s_add_u32 s62, s62, s6")
    a("s_lshl_b32 s6, s3, 18")
    a("s_add_u32 s62, s62, s6")
    a("s_lshl_b32 s6, s3, 12")
    a(f"s_add_u32 s67, s6, {WQ_L:#x}")
    a("s_lshl_b32 s6, s3, 11")
    a(f"s_add_u32 s68, s6, {W1_L:#x}")
    a("s_lshl_b32 s63, s61, 8")
    a("s_lshl_b32 s6, s3, 6")
    a("s_add_u32 s63, s63, s6")
    a("s_lshr_b32 s66, s60, 1")
    a("s_and_b32 s69, s60, 1")
    a("s_lshl_b32 s70, s61, 1")
    a("s_add_u32 s70, s70, s69")
    a("s_lshl_b32 s6, s70, 2")
    a("s_add_u32 s6, s6, s3")
    a(f"s_mul_i32 s65, s6, {16*3584}")
    a("s_lshl_b32 s64, s6, 5")
    a("s_lshl_b32 s6, s66, 7")
    a("s_add_u32 s65, s65, s6")
    a("s_mov_b32 m0, s67")
    a("s_waitcnt lgkmcnt(0)")
    srd(48, 22, 0x400000)
    srd(52, 16, 8192)
    XF, BF, AC = 64, 128, 80
    for i in range(4):
        a(f"buffer_load_dwordx4 v{1+i}, s[48:51], s62 offen offset:{i*1024} {wpol} lds")
    a(f"buffer_load_dwordx4 v[{XF}:{XF+3}], v18, s[52:55], s63 offen")
    a("s_mov_b32 m0, s68")
    srd(56, 28, 512 * 3584)
    a("s_cmp_ge_u32 s66, 28")
    a("s_cbranch_scc1 L_now1a")
    a(f"buffer_load_dwordx4 v16, s[56:59], s65 offen {wpol} lds")
    a(f"buffer_load_dwordx4 v17, s[56:59], s65 offen offset:1024 {wpol} lds")
    a(f"buffer_load_dwordx2 v[{XF+4}:{XF+5}], v19, s[52:55], s64 offen")
    a("L_now1a:")
    a("s_load_dword s4, s[42:43], 0")
    a("s_barrier")
    srd(44, 42, 0x10000000)
    a("v_lshrrev_b32 v16, 2, v7")
    a("v_and_b32 v9, 3, v0")
    a("v_lshl_add_u32 v17, v6, 3, v16")
    a("v_lshlrev_b32 v11, 7, v17")
    a("v_lshl_add_u32 v11, v9, 3, v11")
    a("v_add_u32 v3, s67, v11")
    a("v_lshl_add_u32 v17, v6, 2, v16")
    a("v_lshlrev_b32 v2, 7, v17")
    a("v_lshl_add_u32 v2, v9, 3, v2")
    a("v_add_u32 v2, s68, v2")
    a("v_mov_b32 v20, 1")
    a("v_xor_b32 v1, v6, v8")
    a("v_lshlrev_b32 v1, 4, v1")
    a("v_lshl_add_u32 v1, v8, 8, v1")
    a("v_add_u32 v1, s67, v1")
    a("v_xor_b32 v19, 64, v1")
    a("v_and_b32 v16, 1, v6")
    a("s_lshl_b32 s6, s3, 1")
    a("v_add_u32 v16, s6, v16")
    a("v_xor_b32 v17, v16, v7")
    a("v_lshlrev_b32 v17, 4, v17")
    a("v_lshl_add_u32 v16, v16, 8, v17")
    a("v_bfe_u32 v17, v0, 3, 2")
    a("s_lshl_b32 s6, s3, 2")
    a("v_add_u32 v17, s6, v17")
    a("v_xor_b32 v17, v17, v8")
    a("v_lshlrev_b32 v17, 4, v17")
    a("v_lshl_add_u32 v18, v8, 8, v17")
    a("v_add_u32 v18, 2048, v18")
    a("s_mov_b32 s6, 0")
    a("s_mov_b32 s7, -1")
    a("v_cndmask_b32 v16, v16, v18, s[6:7]")
    a(f"v_add_u32 v16, {WQ_L:#x}, v16")
    a("v_and_b32 v17, 1, v6")
    a(f"v_mul_u32_u24 v17, {32*QSTR}, v17")
    a("v_lshl_add_u32 v17, v7, 4, v17")
    a("s_lshl_b32 s63, s3, 6")
    a("s_lshr_b32 s8, s60, 1")
    a("s_add_u32 s63, s63, s8")
    a(f"s_mul_i32 s63, s63, {QSTR}")
    a("s_lshl_b32 s8, s61, 9")
    a("s_add_u32 s63, s63, s8")
    a("s_lshl_b32 s8, s69, 8")
    a("s_add_u32 s63, s63, s8")
    a(f"s_add_u32 s63, s63, {QP:#x}")
    a("v_add_u32 v17, s63, v17")
    a(f"s_mul_i32 s64, s66, {HSTR}")
    a("s_lshl_b32 s8, s70, 9")
    a("s_add_u32 s64, s64, s8")
    a("s_lshl_b32 s8, s3, 12")
    a("s_add_u32 s64, s64, s8")
    a(f"s_add_u32 s64, s64, {HP-512:#x}")
    a("v_add_u32 v18, s64, v5")
    a("v_cndmask_b32 v4, v17, v18, s[6:7]")
    a("s_cmp_lt_u32 s66, 28")
    a("s_cselect_b32 s9, -1, 0")
    tagcalc()
    a("v_mov_b32 v25, s5")
    a("v_mov_b32 v27, s5")
    a("s_waitcnt vmcnt(0)")
    for aa in range(4):
        for eh in range(2):
            r = BF + 4 * aa + 2 * eh
            a(f"ds_read_b64_tr_b16 v[{r}:{r+1}], v3 offset:{eh*512 + aa*32}")
    for aa in range(4):
        r = BF + 16 + 2 * aa
        a(f"ds_read_b64_tr_b16 v[{r}:{r+1}], v2 offset:{aa*32}")
    for aa in range(4):
        a(f"s_waitcnt lgkmcnt({10-2*aa})")
        a(f"v_mfma_f32_16x16x32_bf16 v[{AC+4*aa}:{AC+4*aa+3}], v[{BF+4*aa}:{BF+4*aa+3}], v[{XF}:{XF+3}], 0")
    for aa in range(4):
        a(f"s_waitcnt lgkmcnt({3-aa})")
        a(f"v_mfma_f32_16x16x16_bf16 v[{AC+16+4*aa}:{AC+16+4*aa+3}], v[{BF+16+2*aa}:{BF+16+2*aa+1}], v[{XF+4}:{XF+5}], 0")
    a("s_mov_b32 exec_lo, 0x00ff00ff")
    a("s_mov_b32 exec_hi, 0x00ff00ff")
    for part in range(2):
        for aa in range(4):
            r = AC + 16 * part + 4 * aa
            a(f"ds_write_b128 v{1 if aa % 2 == 0 else 19}, v[{r}:{r+3}] offset:{part*2048 + (aa>>1)*128}")
    a("s_mov_b64 exec, 1")
    a("s_waitcnt lgkmcnt(0)")
    a("ds_add_u32 v10, v20")
    a("s_mov_b64 exec, -1")
    cnt_wait(0, "L_s1", 10, 21, 65)
    for j in range(4):
        a(f"ds_read_b128 v[{32+4*j}:{35+4*j}], v16 offset:{j*4096}")
    a("s_waitcnt lgkmcnt(2)")
    for e in range(4): a(f"v_add_f32 v{32+e}, v{32+e}, v{36+e}")
    a("s_waitcnt lgkmcnt(0)")
    for e in range(4): a(f"v_add_f32 v{40+e}, v{40+e}, v{44+e}")
    for e in range(4): a(f"v_add_f32 v{32+e}, v{32+e}, v{40+e}")
    a("v_cvt_pk_bf16_f32 v24, v32, v33")
    a("v_cvt_pk_bf16_f32 v26, v34, v35")
    a("s_mov_b32 exec_hi, s9")
    if not no_st: a("buffer_store_dwordx4 v[24:27], v4, s[44:47], 0 offen sc1")
    a("s_mov_b64 exec, -1")
    stamp(1)
    a("s_branch L_helper2")

    a("L_stream:")
    a("v_lshlrev_b32 v1, 2, v6")
    a("v_xor_b32 v1, v1, v7")
    a("v_xor_b32 v2, 1, v1")
    a("v_xor_b32 v3, 2, v1")
    a("v_xor_b32 v4, 3, v1")
    a("v_lshlrev_b32 v8, 8, v6")
    for i in range(4):
        a(f"v_lshl_add_u32 v{1+i}, v{1+i}, 4, v8")
    a("s_lshl_b32 s7, s11, 18")
    for r in range(4):
        a(f"s_add_u32 s6, s3, {r if rot else 0}")
        a("s_and_b32 s6, s6, 3")
        a("s_lshl_b32 s6, s6, 12")
        a(f"s_add_u32 s{12+r}, s7, s6")
    a("s_mov_b32 s60, s12")
    a("s_mov_b32 s61, s12")
    a("s_lshl_b32 s62, s3, 15")
    a("s_waitcnt lgkmcnt(0)")
    if st2: stamp(3)
    srd(48, 18, 0x4000000)
    srd(52, 20, 0x4000000)
    a("s_load_dword s4, s[42:43], 0")
    if touch:
        a("s_load_dword s88, s[20:21], s60")
        a("s_and_b32 s6, s2, 7")
        a("s_lshl_b32 s6, s6, 19")
        a("s_load_dword s89, s[24:25], s6")
        a("s_load_dword s90, s[32:33], 0")
        a("s_load_dword s91, s[30:31], 0")
        a("s_load_dword s92, s[34:35], 0")
        a("s_load_dword s93, s[36:37], 0")
        a(f"s_mov_b32 s6, {OG:#x}")
        a("s_load_dword s94, s[42:43], s6")
        a("s_load_dword s95, s[38:39], 0")
    if not early: a("s_barrier")
    if st2: stamp(4)

    nissued = [0]
    pos = {}
    covered = [0]
    Dcur = [D1]
    def throttle():
        D = Dcur[0]
        if D >= 63: return
        if nissued[0] - covered[0] > D - 1:
            a(f"s_waitcnt vmcnt({D-1})")
            covered[0] = nissued[0] - (D - 1)
    def issueK(tt):
        a(f"s_add_u32 m0, s62, {(tt & 7) * 4096}")
        for i in range(4):
            throttle()
            a(f"buffer_load_dwordx4 v{1+i}, s[48:51], s60 offen offset:{i*1024} {kvpol} lds")
            nissued[0] += 1
        pos[("k", tt)] = nissued[0]
        if tt < 15: a(f"s_add_u32 s60, s{12+((tt+1)&3)}, {(tt+1)*16384}")
    def vreg(tt, i):
        return 64 + 4 * (4 * (tt % 12) + i)
    def issueV(tt):
        for i in range(4):
            r = vreg(tt, i)
            throttle()
            a(f"buffer_load_dwordx4 v[{r}:{r+3}], v5, s[52:55], s61 offen offset:{i*1024} {kvpol}")
            nissued[0] += 1
            pos[("v", tt, i)] = nissued[0]
        pos[("v", tt)] = nissued[0]
        if tt < 15: a(f"s_add_u32 s61, s{12+((tt+1)&3)}, {(tt+1)*16384}")
    def waitfor(key):
        if pos[key] <= covered[0]: return
        n = min(nissued[0] - pos[key], 63)
        a(f"s_waitcnt vmcnt({n})")
        covered[0] = nissued[0] - n

    issueK(0)
    if early: a("s_barrier")
    if sprio: a(f"s_setprio {sprio}")
    srd(44, 42, 0x10000000)
    a("v_and_b32 v8, 3, v7")
    a("v_lshlrev_b32 v8, 10, v8")
    a("v_lshrrev_b32 v9, 2, v7")
    a("v_lshl_add_u32 v8, v9, 8, v8")
    a("v_add_u32 v8, s62, v8")
    a("v_xor_b32 v9, v6, v7")
    a("v_and_b32 v44, 3, v7")
    a("v_lshlrev_b32 v44, 8, v44")
    a("v_lshl_add_u32 v44, v6, 4, v44")
    a(f"v_add_u32 v44, {Q_L:#x}, v44")
    a("v_xor_b32 v45, 4, v9")
    a("v_xor_b32 v46, 8, v9")
    a("v_xor_b32 v47, 12, v9")
    a("v_lshl_add_u32 v6, v9, 4, v8")
    a("v_lshl_add_u32 v7, v45, 4, v8")
    a("v_lshl_add_u32 v9, v47, 4, v8")
    a("v_lshl_add_u32 v8, v46, 4, v8")
    a("s_mov_b32 s64, 0x00f000f0"); a("s_mov_b32 s65, 0x00f000f0")
    a("s_mov_b32 s66, 0x0f000f00"); a("s_mov_b32 s67, 0x0f000f00")
    a("s_mov_b32 s70, 0xf000f000"); a("s_mov_b32 s71, 0xf000f000")
    MASK = {1: "s[64:65]", 2: "s[66:67]", 3: "s[70:71]"}
    a("s_mov_b32 s8, 0x05040100")
    a("s_mov_b32 s9, 0x07060302")
    a(f"s_mov_b32 s10, {f32(CSC)}")
    a(f"v_mov_b32 v45, {C_L:#x}")
    a("v_mov_b32 v46, 1")
    srd(56, 34, 1024)
    a("s_and_b32 s6, s11, 31")
    a("s_lshr_b32 s6, s6, 1")
    a("s_lshl_b32 s6, s6, 5")
    a("s_and_b32 s7, s11, 1")
    a("s_lshl_b32 s7, s7, 3")
    a("s_add_u32 s69, s6, s7")
    a("s_lshl_b32 s68, s69, 1")
    a("v_and_b32 v12, 7, v0")
    a("v_lshlrev_b32 v12, 1, v12")
    tagcalc()
    seqno = [1]
    def tick():
        if seqno[0] == qtrig:
            cnt_add(16, 45, 46)
        seqno[0] += 1
    for tt in range(1, 8):
        issueK(tt); tick()
        if st2 and tt == 1: stamp(7)
        if st2 and tt == 3: stamp(2)
    a("buffer_load_ushort v10, v12, s[56:59], s68 offen")
    a("buffer_load_ushort v11, v12, s[56:59], s68 offen offset:32")
    nissued[0] += 2
    vn = [0]
    def nextV():
        issueV(vn[0]); vn[0] += 1
        if vn[0] - 1 == trig:
            a(f"v_mov_b32 v1, {C_L:#x}")
            a("v_mov_b32 v2, 1")
            cnt_add(12, 1, 2)
    for tt in range(0, npre):
        nextV(); tick()
    stamp(1)
    cnt_wait(4, "L_wq", 45, 46, 63)
    if not st2: stamp(2)
    Dcur[0] = D2
    QFR, KT, DT, SD = 12, 28, 44, 48
    for j in range(4):
        a(f"ds_read_b128 v[{QFR+4*j}:{QFR+4*j+3}], v44 offset:{64*j}")
    a("s_waitcnt lgkmcnt(0)")
    def S(tt):
        waitfor(("k", tt))
        slot = tt & 7
        G = tt >> 1; t = G & 3; st = 2 * (G >> 2) + (tt & 1)
        dst = SD + 4 * st if t == 0 else DT
        for j in range(4):
            a(f"ds_read_b128 v[{KT+4*j}:{KT+4*j+3}], v{6+j} offset:{slot*4096}")
        for j in range(4):
            a(f"s_waitcnt lgkmcnt({3-j})")
            c = "0" if j == 0 else f"v[{dst}:{dst+3}]"
            a(f"v_mfma_f32_16x16x32_bf16 v[{dst}:{dst+3}], v[{KT+4*j}:{KT+4*j+3}], v[{QFR+4*j}:{QFR+4*j+3}], {c}")
        return (t, st)
    def Ssel(ts):
        t, st = ts
        if t != 0:
            for r in range(4):
                a(f"v_cndmask_b32 v{SD+4*st+r}, v{SD+4*st+r}, v{DT+r}, {MASK[t]}")
    for tt in range(8):
        ts = S(tt)
        issueK(tt + 8)
        Ssel(ts)
        if tt >= 2:
            Ssel(S(tt + 6))
    nextV(); Ssel(S(14))
    nextV(); Ssel(S(15))
    a(f"v_max3_f32 v44, v{SD}, v{SD+1}, v{SD+2}")
    a(f"v_max3_f32 v45, v{SD+3}, v{SD+4}, v{SD+5}")
    a(f"v_max3_f32 v46, v{SD+6}, v{SD+7}, v{SD+8}")
    a(f"v_max3_f32 v47, v{SD+9}, v{SD+10}, v{SD+11}")
    a(f"v_max3_f32 v44, v44, v{SD+12}, v{SD+13}")
    a(f"v_max3_f32 v45, v45, v{SD+14}, v{SD+15}")
    a(f"v_max3_f32 v44, v44, v46, v47")
    a(f"v_max_f32 v44, v44, v45")
    xlane("v_max_f32", 44, 45)
    a("v_mul_f32 v44, s10, v44")
    a("v_and_b32 v46, 3, v0")
    a("v_lshlrev_b32 v46, 4, v46")
    a("s_lshl_b32 s6, s3, 2")
    a(f"s_add_u32 s6, s6, {M_L:#x}")
    a("v_add_u32 v47, s6, v46")
    for i in range(16):
        a(f"v_fma_f32 v{SD+i}, v{SD+i}, s10, -v44")
    nextV()
    for i in range(16):
        a(f"v_exp_f32 v{SD+i}, v{SD+i}")
    a(f"v_add_f32 v28, v{SD}, v{SD+1}")
    a(f"v_add_f32 v29, v{SD+2}, v{SD+3}")
    a(f"v_add_f32 v30, v{SD+4}, v{SD+5}")
    a(f"v_add_f32 v31, v{SD+6}, v{SD+7}")
    for k in range(2):
        for q in range(4):
            a(f"v_add_f32 v{28+q}, v{28+q}, v{SD+8+4*k+q}")
    a("v_add_f32 v28, v28, v29")
    a("v_add_f32 v30, v30, v31")
    a("v_add_f32 v28, v28, v30")
    xlane("v_add_f32", 28, 29)
    a("s_mov_b64 exec, 15")
    a("ds_write_b32 v47, v44")
    a(f"ds_write_b32 v47, v28 offset:{L_L-M_L}")
    a("s_mov_b64 exec, -1")
    for i in range(8):
        a(f"v_cvt_pk_bf16_f32 v{SD+i}, v{SD+2*i}, v{SD+2*i+1}")
    a(f"v_mov_b32 v1, {C_L:#x}")
    a("v_mov_b32 v2, 1")
    a("s_waitcnt lgkmcnt(0)")
    cnt_add(8, 1, 2)
    if not st2: stamp(3)
    OA, AT, PT = 12, 44, 56
    def PV(G, last=False):
        t = G & 3; aa = G >> 2
        src = SD + 4 * aa
        if t != 0:
            for i in range(4):
                a(f"v_mov_b32_dpp v{AT+i}, v{src+i} row_shl:{4*t} row_mask:0xf bank_mask:0xf bound_ctrl:0")
            src = AT
        X, Y = 2 * G, 2 * G + 1
        def V(e, p):
            return vreg(X if e < 4 else Y, e & 3) + p
        if not last:
            waitfor(("v", Y))
            def perms(dd):
                p, sel = dd >> 1, ("s8" if (dd & 1) == 0 else "s9")
                tb = PT + 4 * (dd & 1)
                for q in range(4):
                    a(f"v_perm_b32 v{tb+q}, v{V(2*q+1, p)}, v{V(2*q, p)}, {sel}")
            def mf(dd):
                tb = PT + 4 * (dd & 1)
                c = "0" if G == 0 else f"v[{OA+4*dd}:{OA+4*dd+3}]"
                a(f"v_mfma_f32_16x16x32_bf16 v[{OA+4*dd}:{OA+4*dd+3}], v[{src}:{src+3}], v[{tb}:{tb+3}], {c}")
            perms(0)
            for dd in range(8):
                if dd + 1 < 8: perms(dd + 1)
                mf(dd)
        else:
            TB = vreg(4, 0)
            for q in range(4):
                key = ("v", X if q < 2 else Y, (2 * q + 1) & 3)
                waitfor(key)
                for dd in range(8):
                    p, sel = dd >> 1, ("s8" if (dd & 1) == 0 else "s9")
                    a(f"v_perm_b32 v{TB+4*dd+q}, v{V(2*q+1, p)}, v{V(2*q, p)}, {sel}")
            for dd in range(8):
                a(f"v_mfma_f32_16x16x32_bf16 v[{OA+4*dd}:{OA+4*dd+3}], v[{src}:{src+3}], v[{TB+4*dd}:{TB+4*dd+3}], v[{OA+4*dd}:{OA+4*dd+3}]")
    def factors():
        a(f"v_mov_b32 v1, {C_L:#x}")
        cnt_wait(8, "L_wml", 1, 2, 63, target=6)
        a("s_lshl_b32 s6, s3, 4")
        a(f"s_add_u32 s6, s6, {M_L:#x}")
        a("v_lshrrev_b32 v3, 5, v0")
        a("v_lshl_add_u32 v1, v3, 3, s6")
        a("ds_read_b64 v[6:7], v1")
        a("s_lshl_b32 s6, s3, 2")
        a(f"s_add_u32 s7, s6, {G_L+16:#x}")
        a("v_mov_b32 v1, s7")
        a("ds_read_b32 v8, v1")
        a(f"v_mov_b32 v1, {G_L:#x}")
        a("ds_read_b32 v4, v1")
        a("v_and_b32 v2, 1, v0")
        a("v_lshlrev_b32 v2, 10, v2")
        a("v_lshl_add_u32 v2, v3, 16, v2")
        a("v_bfe_u32 v3, v0, 1, 4")
        a("v_lshl_add_u32 v2, v3, 4, v2")
        a("v_add_u32 v2, s6, v2")
        a("v_add_u32 v3, s62, v5")
        a("s_waitcnt lgkmcnt(0)")
        a("v_sub_f32 v6, v6, v8")
        a("v_sub_f32 v7, v7, v8")
        a("v_exp_f32 v6, v6")
        a("v_exp_f32 v7, v7")
        a("v_sub_f32 v9, 1.0, v4")
        a("v_mul_f32 v6, v6, v4")
        a("v_mul_f32 v7, v7, v4")
        a("v_lshlrev_b32 v10, 16, v10")
        a("v_lshlrev_b32 v11, 16, v11")
        a("v_mul_f32 v10, v10, v9")
        a("v_mul_f32 v11, v11, v9")
        a("s_and_b32 s6, s11, 0x1c")
        a("s_add_u32 s6, s6, s3")
        a("s_lshl_b32 s63, s6, 14")
        a("s_lshr_b32 s6, s11, 5")
        a("s_lshl_b32 s6, s6, 11")
        a("s_add_u32 s63, s63, s6")
        a("s_and_b32 s6, s11, 3")
        a("s_lshl_b32 s6, s6, 9")
        a("s_add_u32 s63, s63, s6")
        a(f"s_add_u32 s63, s63, {OG:#x}")
        a(f"v_mov_b32 v1, {C_L:#x}")
        a("v_mov_b32 v4, 1")
    G = 0
    while vn[0] < 16:
        if vn[0] >= 12 and G <= (vn[0] - 12) // 2:
            PV(G); G += 1
            continue
        nextV()
        k = 0
        while vn[0] < 16 and 2 * G + 1 <= vn[0] - 3 and G < 6 and k < 2:
            PV(G); G += 1; k += 1
    if not st2: stamp(4)
    while G < 4:
        PV(G); G += 1
    factors()
    while G < 7:
        PV(G); G += 1
    PV(7, last=True)
    a("s_mov_b64 exec, 0xffff")
    for dd in range(8):
        a(f"ds_write_b128 v3, v[{OA+4*dd}:{OA+4*dd+3}] offset:{dd*256}")
    a("s_mov_b64 exec, 1")
    a("ds_add_u32 v1, v4 offset:20")
    a("s_mov_b64 exec, -1")
    a("v_mov_b32 v49, s5")
    a("v_mov_b32 v51, s5")
    a(f"s_mov_b32 s60, {spin_max*4}")
    a("L_wo:")
    a("ds_read_b32 v44, v1 offset:20")
    a("ds_read2st64_b32 v[52:53], v2 offset0:0 offset1:1")
    a("ds_read2st64_b32 v[54:55], v2 offset0:2 offset1:3")
    a("ds_read2st64_b32 v[56:57], v2 offset0:128 offset1:129")
    a("ds_read2st64_b32 v[58:59], v2 offset0:130 offset1:131")
    a("s_waitcnt lgkmcnt(4)")
    a("v_cmp_gt_u32 vcc, 4, v44")
    a("s_sub_u32 s60, s60, 1")
    a("s_cbranch_scc1 L_wo_go")
    a("s_cbranch_vccnz L_wo")
    a("L_wo_go:")
    a("s_waitcnt lgkmcnt(2)")
    for k in range(4):
        a(f"v_mul_f32 v{52+k}, v{52+k}, v6")
    a("s_waitcnt lgkmcnt(0)")
    for k in range(4):
        a(f"v_fma_f32 v{52+k}, v{56+k}, v7, v{52+k}")
    for k in range(4):
        a(f"v_mov_b32 v{56+k}, v{52+k}")
    for k in range(4):
        a(f"v_permlane32_swap_b32 v{52+k}, v{56+k}")
    for k in range(4):
        a(f"v_add_f32 v{52+k}, v{52+k}, v{56+k}")
    a("v_cvt_pk_bf16_f32 v48, v52, v53")
    a("v_cvt_pk_bf16_f32 v50, v54, v55")
    a("s_mov_b64 exec, 0xffffffff")
    a("buffer_store_dwordx4 v[48:51], v5, s[44:47], s63 offen sc1")
    a("s_mov_b64 exec, -1")
    stamp(5)
    a("s_cmp_lg_u32 s3, 0")
    a("s_cbranch_scc1 L_end")
    srd(48, 38, 8192)
    a("s_lshr_b32 s6, s11, 5")
    a("s_lshl_b32 s60, s11, 12")
    a(f"s_add_u32 s60, s60, {PG:#x}")
    a("s_lshl_b32 s6, s6, 9")
    a("s_add_u32 s6, s6, s69")
    a("s_lshl_b32 s61, s6, 1")
    a("v_lshlrev_b32 v2, 1, v0")
    a(f"s_mov_b32 s62, {spin_max}")
    a("L_fin_poll:")
    for t in range(4):
        a(f"buffer_load_dwordx4 v[{12+4*t}:{15+4*t}], v5, s[44:47], s60 offen offset:{t*1024} sc1")
    a("s_waitcnt vmcnt(2)")
    a("v_xor_b32 v28, s5, v13")
    a("v_xor_b32 v29, s5, v15")
    a("v_xor_b32 v30, s5, v17")
    a("v_xor_b32 v31, s5, v19")
    a("v_add_f32 v12, v12, v16")
    a("v_add_f32 v14, v14, v18")
    a("v_or3_b32 v28, v28, v29, v30")
    a("s_waitcnt vmcnt(0)")
    a("v_xor_b32 v29, s5, v21")
    a("v_xor_b32 v30, s5, v23")
    a("v_xor_b32 v32, s5, v25")
    a("v_xor_b32 v33, s5, v27")
    a("v_add_f32 v20, v20, v24")
    a("v_add_f32 v22, v22, v26")
    a("v_or3_b32 v28, v28, v31, v29")
    a("v_or3_b32 v30, v30, v32, v33")
    a("v_add_f32 v12, v12, v20")
    a("v_add_f32 v14, v14, v22")
    a("v_or_b32 v28, v28, v30")
    a("v_cmp_ne_u32 vcc, 0, v28")
    a("s_sub_u32 s62, s62, 1")
    a("s_cbranch_scc1 L_fin_go")
    a("s_cbranch_vccnz L_fin_poll")
    a("L_fin_go:")
    prs = ((12, 13), (14, 15))
    for r, tmp in prs: a(f"v_add_f32_dpp v{r}, v{r}, v{r} row_ror:8 row_mask:0xf bank_mask:0xf")
    for r, tmp in prs: a(f"v_mov_b32 v{tmp}, v{r}")
    for r, tmp in prs: a(f"v_permlane16_swap_b32 v{r}, v{tmp}")
    for r, tmp in prs: a(f"v_add_f32 v{r}, v{r}, v{tmp}")
    for r, tmp in prs: a(f"v_mov_b32 v{tmp}, v{r}")
    for r, tmp in prs: a(f"v_permlane32_swap_b32 v{r}, v{tmp}")
    a("v_add_f32 v12, v12, v13")
    a("v_add_f32 v14, v14, v15")
    a("v_add_f32 v12, v12, v10")
    a("v_add_f32 v14, v14, v11")
    a("v_cvt_pk_bf16_f32 v12, v12, v14")
    a("s_mov_b64 exec, 0xff")
    a(f"buffer_store_short v12, v2, s[48:51], s61 offen {outpol}")
    a(f"buffer_store_short_d16_hi v12, v2, s[48:51], s61 offen offset:32 {outpol}")
    a("s_cmp_lg_u32 s2, 0")
    a("s_cbranch_scc1 L_fin_done")
    a("s_mov_b64 exec, 1")
    a("v_mov_b32 v3, s5")
    a("v_mov_b32 v4, 0")
    a("buffer_store_dword v3, v4, s[44:47], 0 offen sc1")
    a("L_fin_done:")
    a("s_mov_b64 exec, -1")
    stamp(6)
    stamp_store(0)
    a("s_endpgm")

    a("L_helper2:")
    a("s_cmp_lg_u32 s3, 3")
    a("s_cbranch_scc1 L_nogate")
    srd(48, 36, 1024)
    a("s_lshr_b32 s60, s11, 5")
    a("s_lshl_b32 s62, s60, 10")
    a("buffer_load_dwordx4 v[32:35], v5, s[52:55], s62 offen")
    a("buffer_load_dwordx4 v[36:39], v5, s[48:51], 0 offen")
    a("v_mov_b32 v40, 0")
    a(f"v_mov_b32 v2, {G_L:#x}")
    a("s_waitcnt vmcnt(0)")
    for i in range(4):
        a(f"v_dot2_f32_bf16 v40, v{32+i}, v{36+i}, v40")
    a("v_add_f32_dpp v40, v40, v40 quad_perm:[1,0,3,2] row_mask:0xf bank_mask:0xf")
    a("v_add_f32_dpp v40, v40, v40 quad_perm:[2,3,0,1] row_mask:0xf bank_mask:0xf")
    xlane("v_add_f32", 40, 41)
    a(f"v_mul_f32 v40, {f32(-LOG2E)}, v40")
    a("v_exp_f32 v40, v40")
    a("v_add_f32 v40, 1.0, v40")
    a("v_rcp_f32 v40, v40")
    a("s_mov_b64 exec, 1")
    a("ds_write_b32 v2, v40")
    a("s_waitcnt lgkmcnt(0)")
    a("ds_add_u32 v10, v20 offset:8")
    a("s_and_b32 s6, s11, 31")
    a("s_cmp_lg_u32 s6, 0")
    a("s_cbranch_scc1 L_gate_done")
    a("v_sub_f32 v42, 1.0, v40")
    a("v_mov_b32 v43, s5")
    a("v_mov_b32 v44, 0")
    a("s_lshl_b32 s6, s60, 3")
    a(f"s_add_u32 s6, s6, {GG:#x}")
    a("buffer_store_dwordx2 v[42:43], v44, s[44:47], s6 offen sc1")
    a("L_gate_done:")
    a("s_mov_b64 exec, -1")
    a("L_nogate:")
    a("s_and_b32 s62, s11, 0xfc")
    a("s_add_u32 s62, s62, s3")
    a(f"s_mul_i32 s62, s62, {QSTR}")
    a(f"s_add_u32 s62, s62, {QP:#x}")
    a("s_lshl_b32 s6, s3, 8")
    a(f"s_add_u32 s6, s6, {Q_L:#x}")
    a("v_and_b32 v2, 31, v0")
    a("v_lshl_add_u32 v2, v2, 3, s6")
    cnt_wait(16, "L_qt", 10, 21, 65, sleep=4, target=1)
    a(f"s_mov_b32 s65, {spin_max}")
    if no_qp: a("s_branch L_qp_go")
    a("L_qp:")
    a("buffer_load_dwordx4 v[32:35], v5, s[44:47], s62 offen sc1")
    a("buffer_load_dwordx4 v[36:39], v5, s[44:47], s62 offen offset:1024 sc1")
    a("s_waitcnt vmcnt(0)")
    for k in range(4):
        a(f"v_xor_b32 v{33+2*k}, s5, v{33+2*k}")
    a("v_or3_b32 v33, v33, v35, v37")
    a("v_or_b32 v33, v33, v39")
    a("v_cmp_ne_u32 vcc, 0, v33")
    a("s_cbranch_vccz L_qp_go")
    if qsleep: a(f"s_sleep {qsleep}")
    a("s_sub_u32 s65, s65, 1")
    a("s_cbranch_scc0 L_qp")
    a("L_qp_go:")
    def unpack_sum(nk):
        for k in range(nk):
            for h in range(2):
                src = 32 + 4 * k + 2 * h
                if k == 0:
                    a(f"v_lshlrev_b32 v{12+2*h}, 16, v{src}")
                    a(f"v_and_b32 v{13+2*h}, 0xffff0000, v{src}")
                else:
                    a(f"v_lshlrev_b32 v{src+1}, 16, v{src}")
                    a(f"v_and_b32 v{src}, 0xffff0000, v{src}")
                    a(f"v_add_f32 v{12+2*h}, v{12+2*h}, v{src+1}")
                    a(f"v_add_f32 v{13+2*h}, v{13+2*h}, v{src}")
        for e in range(4): a(f"v_mov_b32 v{16+e}, v{12+e}")
        for e in range(4): a(f"v_permlane32_swap_b32 v{12+e}, v{16+e}")
        for e in range(4): a(f"v_add_f32 v{12+e}, v{12+e}, v{16+e}")
    unpack_sum(2)
    a("v_cvt_pk_bf16_f32 v12, v12, v13")
    a("v_cvt_pk_bf16_f32 v13, v14, v15")
    a("ds_write_b64 v2, v[12:13]")
    a("s_waitcnt lgkmcnt(0)")
    cnt_add(4, 10, 20)
    a(f"s_setprio {hprio}")
    stamp(2)
    a("s_lshr_b32 s60, s2, 5")
    a("s_and_b32 s61, s2, 7")
    a("s_lshl_b32 s61, s61, 2")
    a("s_bfe_u32 s6, s2, 0x20003")
    a("s_add_u32 s61, s61, s6")
    srd(48, 24, 0x400000)
    srd(56, 32, 1792 * 1024)
    srd(52, 30, 3584)
    a("s_lshl_b32 s64, s60, 7")
    a("s_lshl_b32 s62, s61, 17")
    a("s_add_u32 s62, s62, s64")
    a("s_lshl_b32 s6, s3, 15")
    a("s_add_u32 s62, s62, s6")
    a("s_lshl_b32 s66, s61, 16")
    a("s_add_u32 s66, s66, s64")
    a("s_lshl_b32 s6, s3, 14")
    a("s_add_u32 s66, s66, s6")
    a(f"s_mov_b32 s90, {WO_L:#x}")
    a("v_lshrrev_b32 v24, 3, v0")
    a("v_and_b32 v12, 2, v24")
    a("v_xor_b32 v12, v12, v8")
    a("v_lshlrev_b32 v24, 10, v24")
    a("v_lshl_add_u32 v24, v12, 4, v24")
    a("v_xor_b32 v25, 64, v24")
    a(f"v_add_u32 v26, {2*(8192-1024)}, v24")
    a(f"v_add_u32 v27, {3*(8192-1024)}, v25")
    a(f"v_add_u32 v25, {8192-1024}, v25")
    a("v_bfe_u32 v12, v0, 3, 2")
    a("v_lshlrev_b32 v12, 5, v12")
    a(f"v_add3_u32 v120, v11, v12, s90")
    a("v_xor_b32 v121, 32, v120")
    a("v_xor_b32 v122, 64, v120")
    a("v_xor_b32 v123, 96, v120")
    a("v_bfe_u32 v12, v7, 2, 1")
    a("v_mul_u32_u24 v4, 144, v12")
    a("v_lshl_add_u32 v4, v6, 4, v4")
    a("s_mul_i32 s6, s3, 288")
    a(f"s_add_u32 s6, s6, {HA_L:#x}")
    a("v_add_u32 v4, s6, v4")
    a("v_bfe_u32 v12, v0, 3, 2")
    a("v_lshlrev_b32 v53, 3, v12")
    a("v_mul_u32_u24 v1, 144, v8")
    a("s_lshl_b32 s6, s3, 5")
    a(f"s_add_u32 s6, s6, {HA_L:#x}")
    a("v_add3_u32 v1, v1, v53, s6")
    a("v_lshlrev_b32 v52, 3, v8")
    a("v_and_b32 v12, 1, v6")
    a("v_lshlrev_b32 v11, 10, v12")
    a("s_lshl_b32 s69, s3, 11")
    a("s_lshl_b32 s6, s61, 5")
    a("s_add_u32 s69, s69, s6")
    a(f"s_add_u32 s69, s69, {LG:#x}")
    a("s_lshl_b32 s70, s61, 14")
    a("s_lshl_b32 s6, s3, 12")
    a("s_add_u32 s70, s70, s6")
    a(f"s_mul_i32 s63, s61, {HSTR}")
    a("s_add_u32 s63, s63, s6")
    a(f"s_add_u32 s63, s63, {HP:#x}")
    a(f"s_add_u32 s70, s70, {OG:#x}")
    a("s_lshl_b32 s6, s3, 15")
    a(f"s_add_u32 s6, s6, {AS_OFF:#x}")
    a("v_lshrrev_b32 v13, 5, v0")
    a("v_and_b32 v14, 31, v0")
    a("v_mul_u32_u24 v13, 272, v13")
    a("v_lshl_add_u32 v13, v14, 3, v13")
    a("v_add_u32 v2, s6, v13")
    a("v_mul_u32_u24 v13, 272, v8")
    a("v_lshl_add_u32 v13, v6, 4, v13")
    a("v_add_u32 v58, s6, v13")
    a("v_lshlrev_b32 v59, 17, v12")
    a("v_lshrrev_b32 v12, 3, v7")
    a("v_lshl_add_u32 v59, v12, 12, v59")
    a("v_lshl_add_u32 v59, v8, 4, v59")
    a("s_lshl_b32 s71, s3, 18")
    a("s_lshl_b32 s6, s60, 14")
    a("s_add_u32 s71, s71, s6")
    a("s_lshl_b32 s6, s61, 7")
    a("s_add_u32 s71, s71, s6")
    a(f"s_add_u32 s71, s71, {PG:#x}")
    a("s_add_u32 s8, s71, 8192")
    if no_h: a("s_branch L_nohact")
    a("s_cmp_ge_u32 s61, 28")
    a("s_cbranch_scc1 L_nohact")
    a("s_lshl_b32 s6, s61, 7")
    a("s_lshl_b32 s7, s3, 5")
    a("s_add_u32 s6, s6, s7")
    a("buffer_load_dwordx2 v[54:55], v53, s[52:55], s6 offen")
    a(f"s_mov_b32 s64, {GG:#x}")
    a(f"s_mov_b32 s65, {spin_max}")
    a("L_hp:")
    for k in range(4):
        a(f"buffer_load_dwordx4 v[{32+4*k}:{35+4*k}], v5, s[44:47], s63 offen offset:{k*1024} sc1")
    a("buffer_load_dwordx2 v[56:57], v52, s[44:47], s64 offen sc1")
    a("s_waitcnt vmcnt(0)")
    for k in range(8):
        a(f"v_xor_b32 v{33+2*k}, s5, v{33+2*k}")
    a("v_xor_b32 v48, s5, v57")
    a("v_or3_b32 v33, v33, v35, v37")
    a("v_or3_b32 v39, v39, v41, v43")
    a("v_or3_b32 v45, v45, v47, v48")
    a("v_or3_b32 v33, v33, v39, v45")
    a("v_cmp_ne_u32 vcc, 0, v33")
    a("s_cbranch_vccz L_hp_go")
    a("s_sleep 16")
    a("s_sub_u32 s65, s65, 1")
    a("s_cbranch_scc0 L_hp")
    a("L_hp_go:")
    unpack_sum(4)
    a("v_lshlrev_b32 v16, 16, v54")
    a("v_and_b32 v17, 0xffff0000, v54")
    a("v_lshlrev_b32 v18, 16, v55")
    a("v_and_b32 v19, 0xffff0000, v55")
    for e in range(4): a(f"v_add_f32 v{12+e}, v{12+e}, v{16+e}")
    for e in range(4): a(f"v_max_f32 v{12+e}, 0, v{12+e}")
    for e in range(4): a(f"v_mul_f32 v{16+e}, v{12+e}, v56")
    for e in range(4): a(f"v_mul_f32 v{12+e}, v{12+e}, v{16+e}")
    a("v_cvt_pk_bf16_f32 v12, v12, v13")
    a("v_cvt_pk_bf16_f32 v13, v14, v15")
    a("ds_write_b64 v1, v[12:13]")
    a("L_nohact:")
    a("s_cmp_lg_u32 s3, 0")
    a("s_cbranch_scc1 L_nolse")
    cnt_wait(8, "L_hml", 10, 21, 65, sleep=8, target=5)
    a("v_lshlrev_b32 v12, 4, v9")
    a(f"v_add_u32 v12, {M_L:#x}, v12")
    a("ds_read_b128 v[16:19], v12")
    a(f"ds_read_b128 v[32:35], v12 offset:{L_L-M_L}")
    a("s_and_b32 s6, s11, 0xfc")
    a("s_lshl_b32 s6, s6, 5")
    a("s_and_b32 s7, s11, 3")
    a("s_lshl_b32 s7, s7, 3")
    a("s_add_u32 s6, s6, s7")
    a(f"s_add_u32 s6, s6, {LG:#x}")
    a("v_lshlrev_b32 v13, 5, v9")
    a("s_waitcnt lgkmcnt(0)")
    a("v_max3_f32 v14, v16, v17, v18")
    a("v_max_f32 v14, v14, v19")
    for w in range(4): a(f"v_sub_f32 v{16+w}, v{16+w}, v14")
    for w in range(4): a(f"v_exp_f32 v{16+w}, v{16+w}")
    a("v_mul_f32 v36, v16, v32")
    for w in range(1, 4): a(f"v_fma_f32 v36, v{16+w}, v{32+w}, v36")
    a("v_log_f32 v36, v36")
    a("v_mov_b32 v15, s5")
    a("v_add_f32 v14, v14, v36")
    a("s_mov_b64 exec, 15")
    a("buffer_store_dwordx2 v[14:15], v13, s[44:47], s6 offen sc1")
    a("s_mov_b64 exec, -1")
    a("s_sub_u32 s6, s6, s7")
    a(f"s_mov_b32 s65, {spin_max}")
    a("L_lp:")
    a("s_sleep 8")
    a("buffer_load_dwordx4 v[28:31], v13, s[44:47], s6 offen sc1")
    a("buffer_load_dwordx4 v[32:35], v13, s[44:47], s6 offen offset:16 sc1")
    a("s_waitcnt vmcnt(0)")
    for k in range(4):
        a(f"v_xor_b32 v{29+2*k}, s5, v{29+2*k}")
    a("v_or3_b32 v29, v29, v31, v33")
    a("v_or_b32 v29, v29, v35")
    a("v_cmp_ne_u32 vcc, 0, v29")
    a("s_sub_u32 s65, s65, 1")
    a("s_cbranch_scc1 L_lp_go")
    a("s_cbranch_vccnz L_lp")
    a("L_lp_go:")
    a("v_max3_f32 v44, v28, v30, v32")
    a("v_max_f32 v44, v44, v34")
    for k in range(4):
        a(f"v_sub_f32 v{48+k}, v{28+2*k}, v44")
    for k in range(4):
        a(f"v_exp_f32 v{48+k}, v{48+k}")
    a("v_add_f32 v48, v48, v49")
    a("v_add_f32 v50, v50, v51")
    a("v_add_f32 v48, v48, v50")
    a("v_log_f32 v48, v48")
    a("v_lshlrev_b32 v12, 2, v9")
    a(f"v_add_u32 v12, {G_L+16:#x}, v12")
    a("v_add_f32 v48, v48, v44")
    a("s_mov_b64 exec, 15")
    a("ds_write_b32 v12, v48")
    a("s_mov_b64 exec, 1")
    a("ds_add_u32 v10, v20 offset:8")
    a("s_mov_b64 exec, -1")
    a("L_nolse:")
    cnt_wait(12, "L_trig", 10, 21, 65, sleep=2, target=ttarget)
    if no_wo: a("s_branch L_now2")
    a("s_mov_b32 m0, s67")
    a("s_nop 0")
    for i in range(4):
        a(f"buffer_load_dwordx4 v{24+i}, s[48:51], s62 offen offset:{i*1024} {wpol} lds")
    a("s_cmp_ge_u32 s61, 28")
    a("s_cbranch_scc1 L_now2")
    a("s_mov_b32 m0, s68")
    a("s_nop 0")
    for i in range(2):
        a(f"buffer_load_dwordx4 v{24+i}, s[56:59], s66 offen offset:{i*1024} {wpol} lds")
    a("L_now2:")
    for k in range(4):
        a(f"v_mov_b32 v{65+2*k}, s5")
    a("v_add_u32 v9, 1088, v2")
    a("v_mov_b32 v36, 1")
    stamp(3)
    WOF, W2F, AF, ACC = 128, 192, 72, 96
    for k in range(4):
        a(f"v_mov_b32 v{60+k}, 0")
    a("s_waitcnt vmcnt(0)")
    cnt_add(0, 10, 36)
    def p2_loads():
        for k in range(4):
            a(f"buffer_load_dwordx4 v[{12+4*k}:{15+4*k}], v5, s[44:47], s70 offen offset:{k*1024} sc1")
    cnt_wait(0, "L_s2", 10, 37, 65, sleep=1, target=8)
    stamp(6)
    for j in range(4):
        for aa in range(4):
            for eh in range(2):
                r = WOF + 16 * j + 4 * aa + 2 * eh
                a(f"ds_read_b64_tr_b16 v[{r}:{r+1}], v{120+aa} offset:{j*4096 + eh*512}")
        a("s_waitcnt lgkmcnt(4)")
    p2_loads()
    a("s_cmp_ge_u32 s61, 28")
    a("s_cbranch_scc1 L_nomlp")
    for j in range(2):
        for aa in range(4):
            for eh in range(2):
                r = W2F + 16 * j + 4 * aa + 2 * eh
                a(f"ds_read_b64_tr_b16 v[{r}:{r+1}], v{120+aa} offset:{W2_L-WO_L + j*4096 + eh*512}")
        a("s_waitcnt lgkmcnt(4)")
    a("ds_read_b128 v[88:91], v4")
    a("ds_read_b128 v[92:95], v4 offset:64")
    a("s_waitcnt lgkmcnt(0)")
    for j in range(2):
        for aa in range(4):
            c = "0" if j == 0 else f"v[{ACC+4*aa}:{ACC+4*aa+3}]"
            a(f"v_mfma_f32_16x16x32_bf16 v[{ACC+4*aa}:{ACC+4*aa+3}], v[{88+4*j}:{91+4*j}], v[{W2F+16*j+4*aa}:{W2F+16*j+4*aa+3}], {c}")
    for aa in range(4):
        a(f"v_mov_b32 v{60+aa}, v{ACC+4*aa}")
    a("L_nomlp:")
    a(f"s_mov_b32 s64, {spin_max}")
    stamp(4)
    a("s_branch L_p2_body")
    a("L_p2_poll:")
    p2_loads()
    a("L_p2_body:")
    for k in range(4):
        a(f"s_waitcnt vmcnt({3-k})")
        va = "v2" if k < 2 else "v9"
        o = (k & 1) * 136
        a(f"ds_write2_b32 {va}, v{12+4*k}, v{14+4*k} offset0:{o} offset1:{o+1}")
        a(f"v_xor_b32 v{28+2*k}, s5, v{13+4*k}")
        a(f"v_xor_b32 v{29+2*k}, s5, v{15+4*k}")
    a("v_or3_b32 v28, v28, v29, v30")
    a("v_or3_b32 v31, v31, v32, v33")
    a("v_or3_b32 v28, v28, v34, v35")
    a("v_or_b32 v28, v28, v31")
    a("v_cmp_ne_u32 vcc, 0, v28")
    a("s_sub_u32 s64, s64, 1")
    a("s_waitcnt lgkmcnt(0)")
    a("s_cbranch_scc1 L_p2_go")
    a("s_cbranch_vccnz L_p2_poll")
    a("L_p2_go:")
    for j in range(4):
        a(f"ds_read_b128 v[{AF+4*j}:{AF+4*j+3}], v58 offset:{j*64}")
    for j in range(4):
        a(f"s_waitcnt lgkmcnt({3-j})")
        for aa in range(4):
            c = "0" if j == 0 else f"v[{ACC+4*aa}:{ACC+4*aa+3}]"
            a(f"v_mfma_f32_16x16x32_bf16 v[{ACC+4*aa}:{ACC+4*aa+3}], v[{AF+4*j}:{AF+4*j+3}], v[{WOF+16*j+4*aa}:{WOF+16*j+4*aa+3}], {c}")
    a("s_mov_b64 exec, 0xffffffff")
    for aa in range(4):
        a(f"v_add_f32 v{60+aa}, v{60+aa}, v{ACC+4*aa}")
        a(f"v_add_f32 v{48+aa}, v{ACC+4*aa+1}, v{ACC+4*aa+2}")
        a(f"v_add_f32 v{60+aa}, v{60+aa}, v{ACC+4*aa+3}")
        a(f"v_add_f32 v{64+2*aa}, v{60+aa}, v{48+aa}")
        if aa == 1: a("buffer_store_dwordx4 v[64:67], v59, s[44:47], s71 offen sc1")
    a("buffer_store_dwordx4 v[68:71], v59, s[44:47], s8 offen sc1")
    a("s_mov_b64 exec, -1")
    stamp(5)
    if stamps:
        a("s_add_u32 s3, s3, 1")
        stamp_store("s3")
    a("L_end:")
    a("s_endpgm")
    a.raw('.section .rodata,"a"')
    a.raw(".p2align 6")
    a.raw(f".amdhsa_kernel {NAME}_kernel")
    a.raw("  .amdhsa_next_free_vgpr 256")
    a.raw("  .amdhsa_next_free_sgpr 96")
    a.raw("  .amdhsa_accum_offset 256")
    a.raw("  .amdhsa_group_segment_fixed_size 0")
    a.raw("  .amdhsa_kernarg_size 112")
    a.raw("  .amdhsa_user_sgpr_count 2")
    a.raw("  .amdhsa_user_sgpr_kernarg_segment_ptr 1")
    a.raw("  .amdhsa_system_sgpr_workgroup_id_x 1")
    a.raw(".end_amdhsa_kernel")
    return a.text()

if __name__ == "__main__":
    out = sys.argv[1]
    kw = json.loads(sys.argv[2]) if len(sys.argv) > 2 else {}
    open(out, "w").write(gen(**kw))
```

```python
import sys, json, math, struct
from asmdsl import Asm
NAME = "gated_mix__gqa_block_cached__dense_activation_squared_relu__decode"

GG, LG = 0x3000, 0x10000
QP, HP, OG, PG = 0x100000, 0x80000, 0x200000, 0x300000
STAMP = 0x8000000
def f32(x): return "0x%08x" % struct.unpack("<I", struct.pack("<f", x))[0]
CSC = math.log2(math.e) / math.sqrt(128.0)
LOG2E = math.log2(math.e)
HEADER = open("cdna_kernels/" + NAME + ".s.ref").read().split("; Override launch geometry")[0]

def gen(stamps=False, kvpol="nt", wpol="nt", spin_max=400000, D1=6, D2=6, qsleep=4, qtrig=6,
        trig=15, npre=4, rot=False, ttarget=4, early=True, st2=False, spread=False, amap=2, hprio=0, sprio=2, w2early=False, outpol="", touch=0, no_h=False, no_wo=False, no_qp=False, no_st=False, no_gate=False):
    a = Asm()
    NST = 8
    QSTR, HSTR = (67584, 540672) if spread else (2048, 16384)
    QP, HP = (0x1000000, 0x3000000) if spread else (0x100000, 0x80000)
    WQ_L, W1_L = 0x20000, 0x24000
    WO_L, W2_L = WQ_L, W1_L
    Q_L, M_L, L_L, G_L, C_L, HA_L = 0x26000, 0x26400, 0x26440, 0x26480, 0x264c0, 0x26500
    LDS_TOTAL = HA_L + 8 * 144
    AS_OFF = 0x1000
    a.raw(HEADER.rstrip())
    a.raw(f"; @launch grid=(256,1,1) block=(512,1,1) lds={LDS_TOTAL}")
    a.raw('.amdgcn_target "amdgcn-amd-amdhsa--gfx950"')
    a.raw(".text")
    a.raw(f".globl {NAME}_kernel")
    a.raw(".p2align 8")
    a.raw(f".type {NAME}_kernel,@function")
    a.label(f"{NAME}_kernel")

    def srd(d, base, size):
        a(f"s_mov_b32 s{d}, s{base}")
        a(f"s_mov_b32 s{d+1}, s{base+1}")
        a(f"s_mov_b32 s{d+2}, {size:#x}")
        a(f"s_mov_b32 s{d+3}, 0x00020000")
    def stamp(i):
        if stamps:
            a(f"s_memrealtime s[{72+2*i}:{73+2*i}]")
            a("s_waitcnt lgkmcnt(0)")
    def stamp_store(slot):
        if not stamps: return
        a(f"s_lshl_b32 s6, s2, 3")
        a(f"s_add_u32 s6, s6, {slot}")
        a(f"s_mul_i32 s6, s6, {NST*8}")
        a(f"s_add_u32 s6, s6, {STAMP:#x}")
        a("s_mov_b64 exec, 1")
        a("v_mov_b32 v1, 0")
        for i in range(0, NST, 2):
            for k in range(4):
                a(f"v_mov_b32 v{4+k}, s{72+2*i+k}")
            a(f"buffer_store_dwordx4 v[4:7], v1, s[44:47], s6 offen offset:{i*8}")
            a("s_nop 1")
        a("s_mov_b64 exec, -1")
    def tagcalc():
        a("s_waitcnt lgkmcnt(0)")
        a("s_mul_i32 s5, s4, 1664525")
        a("s_add_u32 s5, s5, 1013904223")
    def xlane(op, r, tmp):
        a(f"{op}_dpp v{r}, v{r}, v{r} row_ror:4 row_mask:0xf bank_mask:0xf")
        a(f"{op}_dpp v{r}, v{r}, v{r} row_ror:8 row_mask:0xf bank_mask:0xf")
        a(f"v_mov_b32 v{tmp}, v{r}")
        a(f"v_permlane16_swap_b32 v{r}, v{tmp}")
        a(f"{op} v{r}, v{r}, v{tmp}")
        a(f"v_mov_b32 v{tmp}, v{r}")
        a(f"v_permlane32_swap_b32 v{r}, v{tmp}")
        a(f"{op} v{r}, v{r}, v{tmp}")
    def cnt_add(off, vaddr, vone):
        a("s_mov_b64 exec, 1")
        a(f"ds_add_u32 v{vaddr}, v{vone} offset:{off}")
        a("s_mov_b64 exec, -1")
    def cnt_wait(off, lbl, vaddr, vtmp, sreg, sleep=0, target=4):
        a(f"s_mov_b32 s{sreg}, {spin_max*4}")
        a(f"{lbl}:")
        a(f"ds_read_b32 v{vtmp}, v{vaddr} offset:{off}")
        a("s_waitcnt lgkmcnt(0)")
        a(f"v_cmp_gt_u32 vcc, {target}, v{vtmp}")
        a(f"s_cbranch_vccz {lbl}_go")
        if sleep: a(f"s_sleep {sleep}")
        a(f"s_sub_u32 s{sreg}, s{sreg}, 1")
        a(f"s_cbranch_scc0 {lbl}")
        a(f"{lbl}_go:")
    def unit_id():
        if amap == 1:
            a("s_and_b32 s11, s2, 0xe0")
            a("s_and_b32 s6, s2, 7")
            a("s_lshl_b32 s6, s6, 2")
            a("s_add_u32 s11, s11, s6")
            a("s_bfe_u32 s6, s2, 0x20003")
            a("s_add_u32 s11, s11, s6")
        elif amap == 2:
            a("s_and_b32 s11, s2, 7")
            a("s_lshl_b32 s11, s11, 5")
            a("s_lshr_b32 s6, s2, 3")
            a("s_add_u32 s11, s11, s6")
        else:
            a("s_mov_b32 s11, s2")

    a("s_cmp_ge_u32 s2, 256")
    a("s_cbranch_scc1 L_end")
    if stamps:
        for i in range(NST):
            a(f"s_mov_b64 s[{72+2*i}:{73+2*i}], 0")
        a("s_memrealtime s[72:73]")
    a("s_load_dwordx16 s[16:31], s[0:1], 0")
    a("s_load_dwordx8 s[32:39], s[0:1], 64")
    a("s_load_dwordx4 s[40:43], s[0:1], 96")
    a("v_lshrrev_b32 v1, 6, v0")
    a("v_and_b32 v0, 63, v0")
    a("v_readfirstlane_b32 s3, v1")
    a("v_lshrrev_b32 v6, 4, v0")
    a("v_and_b32 v7, 15, v0")
    a("v_lshlrev_b32 v5, 4, v0")
    unit_id()
    a("s_cmp_lt_u32 s3, 4")
    a("s_cbranch_scc1 L_stream")

    a("s_setprio 3")
    a(f"v_mov_b32 v10, {C_L:#x}")
    for k in range(4): a(f"v_mov_b32 v{12+k}, 0")
    a("ds_write_b128 v10, v[12:15]")
    a("ds_write_b64 v10, v[12:13] offset:16")
    a("s_sub_u32 s3, s3, 4")
    a("v_lshrrev_b32 v16, 3, v0")
    a("v_and_b32 v8, 7, v0")
    a("v_lshlrev_b32 v1, 13, v16")
    a("v_lshl_add_u32 v1, v8, 4, v1")
    for i in range(1, 4):
        a(f"v_add_u32 v{1+i}, {i*(65536-1024)}, v1")
    a("v_mul_u32_u24 v16, 3584, v16")
    a("v_lshl_add_u32 v16, v8, 4, v16")
    a(f"v_add_u32 v17, {8*3584-1024}, v16")
    a("v_lshlrev_b32 v18, 10, v8")
    a("v_lshl_add_u32 v19, v6, 3, v18")
    a("v_lshl_add_u32 v18, v6, 4, v18")
    a("s_bfe_u32 s61, s2, 0x20003")
    a("s_and_b32 s60, s2, 7")
    a("s_lshl_b32 s60, s60, 3")
    a("s_lshr_b32 s6, s2, 5")
    a("s_add_u32 s60, s60, s6")
    a("s_lshl_b32 s62, s61, 20")
    a("s_lshl_b32 s6, s60, 7")
    a("s_add_u32 s62, s62, s6")
    a("s_lshl_b32 s6, s3, 18")
    a("s_add_u32 s62, s62, s6")
    a("s_lshl_b32 s6, s3, 12")
    a(f"s_add_u32 s67, s6, {WQ_L:#x}")
    a("s_lshl_b32 s6, s3, 11")
    a(f"s_add_u32 s68, s6, {W1_L:#x}")
    a("s_lshl_b32 s63, s61, 8")
    a("s_lshl_b32 s6, s3, 6")
    a("s_add_u32 s63, s63, s6")
    a("s_lshr_b32 s66, s60, 1")
    a("s_and_b32 s69, s60, 1")
    a("s_lshl_b32 s70, s61, 1")
    a("s_add_u32 s70, s70, s69")
    a("s_lshl_b32 s6, s70, 2")
    a("s_add_u32 s6, s6, s3")
    a(f"s_mul_i32 s65, s6, {16*3584}")
    a("s_lshl_b32 s64, s6, 5")
    a("s_lshl_b32 s6, s66, 7")
    a("s_add_u32 s65, s65, s6")
    a("s_mov_b32 m0, s67")
    a("s_waitcnt lgkmcnt(0)")
    srd(48, 22, 0x400000)
    srd(52, 16, 8192)
    XF, BF, AC = 64, 128, 80
    for i in range(4):
        a(f"buffer_load_dwordx4 v{1+i}, s[48:51], s62 offen offset:{i*1024} {wpol} lds")
    a(f"buffer_load_dwordx4 v[{XF}:{XF+3}], v18, s[52:55], s63 offen")
    a("s_mov_b32 m0, s68")
    srd(56, 28, 512 * 3584)
    a("s_cmp_ge_u32 s66, 28")
    a("s_cbranch_scc1 L_now1a")
    a(f"buffer_load_dwordx4 v16, s[56:59], s65 offen {wpol} lds")
    a(f"buffer_load_dwordx4 v17, s[56:59], s65 offen offset:1024 {wpol} lds")
    a(f"buffer_load_dwordx2 v[{XF+4}:{XF+5}], v19, s[52:55], s64 offen")
    a("L_now1a:")
    a("s_load_dword s4, s[42:43], 0")
    a("s_barrier")
    srd(44, 42, 0x10000000)
    a("v_lshrrev_b32 v16, 2, v7")
    a("v_and_b32 v9, 3, v0")
    a("v_lshl_add_u32 v17, v6, 3, v16")
    a("v_lshlrev_b32 v11, 7, v17")
    a("v_lshl_add_u32 v11, v9, 3, v11")
    a("v_add_u32 v3, s67, v11")
    a("v_lshl_add_u32 v17, v6, 2, v16")
    a("v_lshlrev_b32 v2, 7, v17")
    a("v_lshl_add_u32 v2, v9, 3, v2")
    a("v_add_u32 v2, s68, v2")
    a("v_mov_b32 v20, 1")
    a("v_xor_b32 v1, v6, v8")
    a("v_lshlrev_b32 v1, 4, v1")
    a("v_lshl_add_u32 v1, v8, 8, v1")
    a("v_add_u32 v1, s67, v1")
    a("v_xor_b32 v19, 64, v1")
    a("v_and_b32 v16, 1, v6")
    a("s_lshl_b32 s6, s3, 1")
    a("v_add_u32 v16, s6, v16")
    a("v_xor_b32 v17, v16, v7")
    a("v_lshlrev_b32 v17, 4, v17")
    a("v_lshl_add_u32 v16, v16, 8, v17")
    a("v_bfe_u32 v17, v0, 3, 2")
    a("s_lshl_b32 s6, s3, 2")
    a("v_add_u32 v17, s6, v17")
    a("v_xor_b32 v17, v17, v8")
    a("v_lshlrev_b32 v17, 4, v17")
    a("v_lshl_add_u32 v18, v8, 8, v17")
    a("v_add_u32 v18, 2048, v18")
    a("s_mov_b32 s6, 0")
    a("s_mov_b32 s7, -1")
    a("v_cndmask_b32 v16, v16, v18, s[6:7]")
    a(f"v_add_u32 v16, {WQ_L:#x}, v16")
    a("v_and_b32 v17, 1, v6")
    a(f"v_mul_u32_u24 v17, {32*QSTR}, v17")
    a("v_lshl_add_u32 v17, v7, 4, v17")
    a("s_lshl_b32 s63, s3, 6")
    a("s_lshr_b32 s8, s60, 1")
    a("s_add_u32 s63, s63, s8")
    a(f"s_mul_i32 s63, s63, {QSTR}")
    a("s_lshl_b32 s8, s61, 9")
    a("s_add_u32 s63, s63, s8")
    a("s_lshl_b32 s8, s69, 8")
    a("s_add_u32 s63, s63, s8")
    a(f"s_add_u32 s63, s63, {QP:#x}")
    a("v_add_u32 v17, s63, v17")
    a(f"s_mul_i32 s64, s66, {HSTR}")
    a("s_lshl_b32 s8, s70, 9")
    a("s_add_u32 s64, s64, s8")
    a("s_lshl_b32 s8, s3, 12")
    a("s_add_u32 s64, s64, s8")
    a(f"s_add_u32 s64, s64, {HP-512:#x}")
    a("v_add_u32 v18, s64, v5")
    a("v_cndmask_b32 v4, v17, v18, s[6:7]")
    a("s_cmp_lt_u32 s66, 28")
    a("s_cselect_b32 s9, -1, 0")
    tagcalc()
    a("v_mov_b32 v25, s5")
    a("v_mov_b32 v27, s5")
    a("s_waitcnt vmcnt(0)")
    for aa in range(4):
        for eh in range(2):
            r = BF + 4 * aa + 2 * eh
            a(f"ds_read_b64_tr_b16 v[{r}:{r+1}], v3 offset:{eh*512 + aa*32}")
    for aa in range(4):
        r = BF + 16 + 2 * aa
        a(f"ds_read_b64_tr_b16 v[{r}:{r+1}], v2 offset:{aa*32}")
    for aa in range(4):
        a(f"s_waitcnt lgkmcnt({10-2*aa})")
        a(f"v_mfma_f32_16x16x32_bf16 v[{AC+4*aa}:{AC+4*aa+3}], v[{BF+4*aa}:{BF+4*aa+3}], v[{XF}:{XF+3}], 0")
    for aa in range(4):
        a(f"s_waitcnt lgkmcnt({3-aa})")
        a(f"v_mfma_f32_16x16x16_bf16 v[{AC+16+4*aa}:{AC+16+4*aa+3}], v[{BF+16+2*aa}:{BF+16+2*aa+1}], v[{XF+4}:{XF+5}], 0")
    a("s_mov_b32 exec_lo, 0x00ff00ff")
    a("s_mov_b32 exec_hi, 0x00ff00ff")
    for part in range(2):
        for aa in range(4):
            r = AC + 16 * part + 4 * aa
            a(f"ds_write_b128 v{1 if aa % 2 == 0 else 19}, v[{r}:{r+3}] offset:{part*2048 + (aa>>1)*128}")
    a("s_mov_b64 exec, 1")
    a("s_waitcnt lgkmcnt(0)")
    a("ds_add_u32 v10, v20")
    a("s_mov_b64 exec, -1")
    cnt_wait(0, "L_s1", 10, 21, 65)
    for j in range(4):
        a(f"ds_read_b128 v[{32+4*j}:{35+4*j}], v16 offset:{j*4096}")
    a("s_waitcnt lgkmcnt(2)")
    for e in range(4): a(f"v_add_f32 v{32+e}, v{32+e}, v{36+e}")
    a("s_waitcnt lgkmcnt(0)")
    for e in range(4): a(f"v_add_f32 v{40+e}, v{40+e}, v{44+e}")
    for e in range(4): a(f"v_add_f32 v{32+e}, v{32+e}, v{40+e}")
    a("v_cvt_pk_bf16_f32 v24, v32, v33")
    a("v_cvt_pk_bf16_f32 v26, v34, v35")
    a("s_mov_b32 exec_hi, s9")
    if not no_st: a("buffer_store_dwordx4 v[24:27], v4, s[44:47], 0 offen sc1")
    a("s_mov_b64 exec, -1")
    stamp(1)
    a("s_branch L_helper2")

    a("L_stream:")
    a("v_lshlrev_b32 v1, 2, v6")
    a("v_xor_b32 v1, v1, v7")
    a("v_xor_b32 v2, 1, v1")
    a("v_xor_b32 v3, 2, v1")
    a("v_xor_b32 v4, 3, v1")
    a("v_lshlrev_b32 v8, 8, v6")
    for i in range(4):
        a(f"v_lshl_add_u32 v{1+i}, v{1+i}, 4, v8")
    a("s_lshl_b32 s7, s11, 18")
    for r in range(4):
        a(f"s_add_u32 s6, s3, {r if rot else 0}")
        a("s_and_b32 s6, s6, 3")
        a("s_lshl_b32 s6, s6, 12")
        a(f"s_add_u32 s{12+r}, s7, s6")
    a("s_mov_b32 s60, s12")
    a("s_mov_b32 s61, s12")
    a("s_lshl_b32 s62, s3, 15")
    a("s_waitcnt lgkmcnt(0)")
    if st2: stamp(3)
    srd(48, 18, 0x4000000)
    srd(52, 20, 0x4000000)
    a("s_load_dword s4, s[42:43], 0")
    if touch == 1:
        a("s_load_dword s88, s[20:21], s60")
        a("s_and_b32 s6, s2, 7")
        a("s_lshl_b32 s6, s6, 19")
        a("s_load_dword s89, s[24:25], s6")
        a("s_load_dword s90, s[32:33], 0")
        a("s_load_dword s91, s[30:31], 0")
        a("s_load_dword s92, s[34:35], 0")
        a("s_load_dword s93, s[36:37], 0")
        a(f"s_mov_b32 s6, {OG:#x}")
        a("s_load_dword s94, s[42:43], s6")
        a("s_load_dword s95, s[38:39], 0")
    if not early: a("s_barrier")
    if st2: stamp(4)

    nissued = [0]
    pos = {}
    covered = [0]
    Dcur = [D1]
    def throttle():
        D = Dcur[0]
        if D >= 63: return
        if nissued[0] - covered[0] > D - 1:
            a(f"s_waitcnt vmcnt({D-1})")
            covered[0] = nissued[0] - (D - 1)
    def issueK(tt):
        a(f"s_add_u32 m0, s62, {(tt & 7) * 4096}")
        for i in range(4):
            throttle()
            a(f"buffer_load_dwordx4 v{1+i}, s[48:51], s60 offen offset:{i*1024} {kvpol} lds")
            nissued[0] += 1
        pos[("k", tt)] = nissued[0]
        if tt < 15: a(f"s_add_u32 s60, s{12+((tt+1)&3)}, {(tt+1)*16384}")
    def vreg(tt, i):
        return 64 + 4 * (4 * (tt % 12) + i)
    def issueV(tt):
        for i in range(4):
            r = vreg(tt, i)
            throttle()
            a(f"buffer_load_dwordx4 v[{r}:{r+3}], v5, s[52:55], s61 offen offset:{i*1024} {kvpol}")
            nissued[0] += 1
            pos[("v", tt, i)] = nissued[0]
        pos[("v", tt)] = nissued[0]
        if tt < 15: a(f"s_add_u32 s61, s{12+((tt+1)&3)}, {(tt+1)*16384}")
    def waitfor(key):
        if pos[key] <= covered[0]: return
        n = min(nissued[0] - pos[key], 63)
        a(f"s_waitcnt vmcnt({n})")
        covered[0] = nissued[0] - n

    issueK(0)
    if early: a("s_barrier")
    if sprio: a(f"s_setprio {sprio}")
    srd(44, 42, 0x10000000)
    a("v_and_b32 v8, 3, v7")
    a("v_lshlrev_b32 v8, 10, v8")
    a("v_lshrrev_b32 v9, 2, v7")
    a("v_lshl_add_u32 v8, v9, 8, v8")
    a("v_add_u32 v8, s62, v8")
    a("v_xor_b32 v9, v6, v7")
    a("v_and_b32 v44, 3, v7")
    a("v_lshlrev_b32 v44, 8, v44")
    a("v_lshl_add_u32 v44, v6, 4, v44")
    a(f"v_add_u32 v44, {Q_L:#x}, v44")
    a("v_xor_b32 v45, 4, v9")
    a("v_xor_b32 v46, 8, v9")
    a("v_xor_b32 v47, 12, v9")
    a("v_lshl_add_u32 v6, v9, 4, v8")
    a("v_lshl_add_u32 v7, v45, 4, v8")
    a("v_lshl_add_u32 v9, v47, 4, v8")
    a("v_lshl_add_u32 v8, v46, 4, v8")
    a("s_mov_b32 s64, 0x00f000f0"); a("s_mov_b32 s65, 0x00f000f0")
    a("s_mov_b32 s66, 0x0f000f00"); a("s_mov_b32 s67, 0x0f000f00")
    a("s_mov_b32 s70, 0xf000f000"); a("s_mov_b32 s71, 0xf000f000")
    MASK = {1: "s[64:65]", 2: "s[66:67]", 3: "s[70:71]"}
    a("s_mov_b32 s8, 0x05040100")
    a("s_mov_b32 s9, 0x07060302")
    a(f"s_mov_b32 s10, {f32(CSC)}")
    a(f"v_mov_b32 v45, {C_L:#x}")
    a("v_mov_b32 v46, 1")
    srd(56, 34, 1024)
    a("s_and_b32 s6, s11, 31")
    a("s_lshr_b32 s6, s6, 1")
    a("s_lshl_b32 s6, s6, 5")
    a("s_and_b32 s7, s11, 1")
    a("s_lshl_b32 s7, s7, 3")
    a("s_add_u32 s69, s6, s7")
    a("s_lshl_b32 s68, s69, 1")
    a("v_and_b32 v12, 7, v0")
    a("v_lshlrev_b32 v12, 1, v12")
    tagcalc()
    seqno = [1]
    def tick():
        if seqno[0] == qtrig:
            cnt_add(16, 45, 46)
        seqno[0] += 1
    for tt in range(1, 8):
        issueK(tt); tick()
        if st2 and tt == 1: stamp(7)
        if st2 and tt == 3: stamp(2)
    a("buffer_load_ushort v10, v12, s[56:59], s68 offen")
    a("buffer_load_ushort v11, v12, s[56:59], s68 offen offset:32")
    nissued[0] += 2
    vn = [0]
    def nextV():
        issueV(vn[0]); vn[0] += 1
        if vn[0] - 1 == trig:
            a(f"v_mov_b32 v1, {C_L:#x}")
            a("v_mov_b32 v2, 1")
            cnt_add(12, 1, 2)
    for tt in range(0, npre):
        nextV(); tick()
    stamp(1)
    cnt_wait(4, "L_wq", 45, 46, 63)
    if not st2: stamp(2)
    Dcur[0] = D2
    QFR, KT, DT, SD = 12, 28, 44, 48
    for j in range(4):
        a(f"ds_read_b128 v[{QFR+4*j}:{QFR+4*j+3}], v44 offset:{64*j}")
    a("s_waitcnt lgkmcnt(0)")
    def S(tt):
        waitfor(("k", tt))
        slot = tt & 7
        G = tt >> 1; t = G & 3; st = 2 * (G >> 2) + (tt & 1)
        dst = SD + 4 * st if t == 0 else DT
        for j in range(4):
            a(f"ds_read_b128 v[{KT+4*j}:{KT+4*j+3}], v{6+j} offset:{slot*4096}")
        for j in range(4):
            a(f"s_waitcnt lgkmcnt({3-j})")
            c = "0" if j == 0 else f"v[{dst}:{dst+3}]"
            a(f"v_mfma_f32_16x16x32_bf16 v[{dst}:{dst+3}], v[{KT+4*j}:{KT+4*j+3}], v[{QFR+4*j}:{QFR+4*j+3}], {c}")
        return (t, st)
    def Ssel(ts):
        t, st = ts
        if t != 0:
            for r in range(4):
                a(f"v_cndmask_b32 v{SD+4*st+r}, v{SD+4*st+r}, v{DT+r}, {MASK[t]}")
    for tt in range(8):
        ts = S(tt)
        issueK(tt + 8)
        Ssel(ts)
        if tt >= 2:
            Ssel(S(tt + 6))
    nextV(); Ssel(S(14))
    nextV(); Ssel(S(15))
    a(f"v_max3_f32 v44, v{SD}, v{SD+1}, v{SD+2}")
    a(f"v_max3_f32 v45, v{SD+3}, v{SD+4}, v{SD+5}")
    a(f"v_max3_f32 v46, v{SD+6}, v{SD+7}, v{SD+8}")
    a(f"v_max3_f32 v47, v{SD+9}, v{SD+10}, v{SD+11}")
    a(f"v_max3_f32 v44, v44, v{SD+12}, v{SD+13}")
    a(f"v_max3_f32 v45, v45, v{SD+14}, v{SD+15}")
    a(f"v_max3_f32 v44, v44, v46, v47")
    a(f"v_max_f32 v44, v44, v45")
    xlane("v_max_f32", 44, 45)
    a("v_mul_f32 v44, s10, v44")
    a("v_and_b32 v46, 3, v0")
    a("v_lshlrev_b32 v46, 4, v46")
    a("s_lshl_b32 s6, s3, 2")
    a(f"s_add_u32 s6, s6, {M_L:#x}")
    a("v_add_u32 v47, s6, v46")
    for i in range(16):
        a(f"v_fma_f32 v{SD+i}, v{SD+i}, s10, -v44")
    nextV()
    for i in range(16):
        a(f"v_exp_f32 v{SD+i}, v{SD+i}")
    a(f"v_add_f32 v28, v{SD}, v{SD+1}")
    a(f"v_add_f32 v29, v{SD+2}, v{SD+3}")
    a(f"v_add_f32 v30, v{SD+4}, v{SD+5}")
    a(f"v_add_f32 v31, v{SD+6}, v{SD+7}")
    for k in range(2):
        for q in range(4):
            a(f"v_add_f32 v{28+q}, v{28+q}, v{SD+8+4*k+q}")
    a("v_add_f32 v28, v28, v29")
    a("v_add_f32 v30, v30, v31")
    a("v_add_f32 v28, v28, v30")
    xlane("v_add_f32", 28, 29)
    a("s_mov_b64 exec, 15")
    a("ds_write_b32 v47, v44")
    a(f"ds_write_b32 v47, v28 offset:{L_L-M_L}")
    a("s_mov_b64 exec, -1")
    for i in range(8):
        a(f"v_cvt_pk_bf16_f32 v{SD+i}, v{SD+2*i}, v{SD+2*i+1}")
    a(f"v_mov_b32 v1, {C_L:#x}")
    a("v_mov_b32 v2, 1")
    a("s_waitcnt lgkmcnt(0)")
    cnt_add(8, 1, 2)
    if not st2: stamp(3)
    OA, AT, PT = 12, 44, 56
    def PV(G, last=False):
        t = G & 3; aa = G >> 2
        src = SD + 4 * aa
        if t != 0:
            for i in range(4):
                a(f"v_mov_b32_dpp v{AT+i}, v{src+i} row_shl:{4*t} row_mask:0xf bank_mask:0xf bound_ctrl:0")
            src = AT
        X, Y = 2 * G, 2 * G + 1
        def V(e, p):
            return vreg(X if e < 4 else Y, e & 3) + p
        if not last:
            waitfor(("v", Y))
            def perms(dd):
                p, sel = dd >> 1, ("s8" if (dd & 1) == 0 else "s9")
                tb = PT + 4 * (dd & 1)
                for q in range(4):
                    a(f"v_perm_b32 v{tb+q}, v{V(2*q+1, p)}, v{V(2*q, p)}, {sel}")
            def mf(dd):
                tb = PT + 4 * (dd & 1)
                c = "0" if G == 0 else f"v[{OA+4*dd}:{OA+4*dd+3}]"
                a(f"v_mfma_f32_16x16x32_bf16 v[{OA+4*dd}:{OA+4*dd+3}], v[{src}:{src+3}], v[{tb}:{tb+3}], {c}")
            perms(0)
            for dd in range(8):
                if dd + 1 < 8: perms(dd + 1)
                mf(dd)
        else:
            TB = vreg(4, 0)
            for q in range(4):
                key = ("v", X if q < 2 else Y, (2 * q + 1) & 3)
                waitfor(key)
                for dd in range(8):
                    p, sel = dd >> 1, ("s8" if (dd & 1) == 0 else "s9")
                    a(f"v_perm_b32 v{TB+4*dd+q}, v{V(2*q+1, p)}, v{V(2*q, p)}, {sel}")
            for dd in range(8):
                a(f"v_mfma_f32_16x16x32_bf16 v[{OA+4*dd}:{OA+4*dd+3}], v[{src}:{src+3}], v[{TB+4*dd}:{TB+4*dd+3}], v[{OA+4*dd}:{OA+4*dd+3}]")
    def factors():
        a(f"v_mov_b32 v1, {C_L:#x}")
        cnt_wait(8, "L_wml", 1, 2, 63, target=6)
        a("s_lshl_b32 s6, s3, 4")
        a(f"s_add_u32 s6, s6, {M_L:#x}")
        a("v_lshrrev_b32 v3, 5, v0")
        a("v_lshl_add_u32 v1, v3, 3, s6")
        a("ds_read_b64 v[6:7], v1")
        a("s_lshl_b32 s6, s3, 2")
        a(f"s_add_u32 s7, s6, {G_L+16:#x}")
        a("v_mov_b32 v1, s7")
        a("ds_read_b32 v8, v1")
        a(f"v_mov_b32 v1, {G_L:#x}")
        a("ds_read_b32 v4, v1")
        a("v_and_b32 v2, 1, v0")
        a("v_lshlrev_b32 v2, 10, v2")
        a("v_lshl_add_u32 v2, v3, 16, v2")
        a("v_bfe_u32 v3, v0, 1, 4")
        a("v_lshl_add_u32 v2, v3, 4, v2")
        a("v_add_u32 v2, s6, v2")
        a("v_add_u32 v3, s62, v5")
        a("s_waitcnt lgkmcnt(0)")
        a("v_sub_f32 v6, v6, v8")
        a("v_sub_f32 v7, v7, v8")
        a("v_exp_f32 v6, v6")
        a("v_exp_f32 v7, v7")
        a("v_sub_f32 v9, 1.0, v4")
        a("v_mul_f32 v6, v6, v4")
        a("v_mul_f32 v7, v7, v4")
        a("v_lshlrev_b32 v10, 16, v10")
        a("v_lshlrev_b32 v11, 16, v11")
        a("v_mul_f32 v10, v10, v9")
        a("v_mul_f32 v11, v11, v9")
        a("s_and_b32 s6, s11, 0x1c")
        a("s_add_u32 s6, s6, s3")
        a("s_lshl_b32 s63, s6, 14")
        a("s_lshr_b32 s6, s11, 5")
        a("s_lshl_b32 s6, s6, 11")
        a("s_add_u32 s63, s63, s6")
        a("s_and_b32 s6, s11, 3")
        a("s_lshl_b32 s6, s6, 9")
        a("s_add_u32 s63, s63, s6")
        a(f"s_add_u32 s63, s63, {OG:#x}")
        a(f"v_mov_b32 v1, {C_L:#x}")
        a("v_mov_b32 v4, 1")
    G = 0
    while vn[0] < 16:
        if vn[0] >= 12 and G <= (vn[0] - 12) // 2:
            PV(G); G += 1
            continue
        nextV()
        k = 0
        while vn[0] < 16 and 2 * G + 1 <= vn[0] - 3 and G < 6 and k < 2:
            PV(G); G += 1; k += 1
    if not st2: stamp(4)
    while G < 4:
        PV(G); G += 1
    factors()
    while G < 7:
        PV(G); G += 1
    PV(7, last=True)
    a("s_mov_b64 exec, 0xffff")
    for dd in range(8):
        a(f"ds_write_b128 v3, v[{OA+4*dd}:{OA+4*dd+3}] offset:{dd*256}")
    a("s_mov_b64 exec, 1")
    a("ds_add_u32 v1, v4 offset:20")
    a("s_mov_b64 exec, -1")
    a("v_mov_b32 v49, s5")
    a("v_mov_b32 v51, s5")
    a(f"s_mov_b32 s60, {spin_max*4}")
    a("L_wo:")
    a("ds_read_b32 v44, v1 offset:20")
    a("ds_read2st64_b32 v[52:53], v2 offset0:0 offset1:1")
    a("ds_read2st64_b32 v[54:55], v2 offset0:2 offset1:3")
    a("ds_read2st64_b32 v[56:57], v2 offset0:128 offset1:129")
    a("ds_read2st64_b32 v[58:59], v2 offset0:130 offset1:131")
    a("s_waitcnt lgkmcnt(4)")
    a("v_cmp_gt_u32 vcc, 4, v44")
    a("s_sub_u32 s60, s60, 1")
    a("s_cbranch_scc1 L_wo_go")
    a("s_cbranch_vccnz L_wo")
    a("L_wo_go:")
    a("s_waitcnt lgkmcnt(2)")
    for k in range(4):
        a(f"v_mul_f32 v{52+k}, v{52+k}, v6")
    a("s_waitcnt lgkmcnt(0)")
    for k in range(4):
        a(f"v_fma_f32 v{52+k}, v{56+k}, v7, v{52+k}")
    for k in range(4):
        a(f"v_mov_b32 v{56+k}, v{52+k}")
    for k in range(4):
        a(f"v_permlane32_swap_b32 v{52+k}, v{56+k}")
    for k in range(4):
        a(f"v_add_f32 v{52+k}, v{52+k}, v{56+k}")
    a("v_cvt_pk_bf16_f32 v48, v52, v53")
    a("v_cvt_pk_bf16_f32 v50, v54, v55")
    a("s_mov_b64 exec, 0xffffffff")
    a("buffer_store_dwordx4 v[48:51], v5, s[44:47], s63 offen sc1")
    a("s_mov_b64 exec, -1")
    stamp(5)
    a("s_cmp_lg_u32 s3, 0")
    a("s_cbranch_scc1 L_end")
    srd(48, 38, 8192)
    a("s_lshr_b32 s6, s11, 5")
    a("s_lshl_b32 s60, s11, 12")
    a(f"s_add_u32 s60, s60, {PG:#x}")
    a("s_lshl_b32 s6, s6, 9")
    a("s_add_u32 s6, s6, s69")
    a("s_lshl_b32 s61, s6, 1")
    a("v_lshlrev_b32 v2, 1, v0")
    a(f"s_mov_b32 s62, {spin_max}")
    a("L_fin_poll:")
    for t in range(4):
        a(f"buffer_load_dwordx4 v[{12+4*t}:{15+4*t}], v5, s[44:47], s60 offen offset:{t*1024} sc1")
    a("s_waitcnt vmcnt(2)")
    a("v_xor_b32 v28, s5, v13")
    a("v_xor_b32 v29, s5, v15")
    a("v_xor_b32 v30, s5, v17")
    a("v_xor_b32 v31, s5, v19")
    a("v_add_f32 v12, v12, v16")
    a("v_add_f32 v14, v14, v18")
    a("v_or3_b32 v28, v28, v29, v30")
    a("s_waitcnt vmcnt(0)")
    a("v_xor_b32 v29, s5, v21")
    a("v_xor_b32 v30, s5, v23")
    a("v_xor_b32 v32, s5, v25")
    a("v_xor_b32 v33, s5, v27")
    a("v_add_f32 v20, v20, v24")
    a("v_add_f32 v22, v22, v26")
    a("v_or3_b32 v28, v28, v31, v29")
    a("v_or3_b32 v30, v30, v32, v33")
    a("v_add_f32 v12, v12, v20")
    a("v_add_f32 v14, v14, v22")
    a("v_or_b32 v28, v28, v30")
    a("v_cmp_ne_u32 vcc, 0, v28")
    a("s_sub_u32 s62, s62, 1")
    a("s_cbranch_scc1 L_fin_go")
    a("s_cbranch_vccnz L_fin_poll")
    a("L_fin_go:")
    prs = ((12, 13), (14, 15))
    for r, tmp in prs: a(f"v_add_f32_dpp v{r}, v{r}, v{r} row_ror:8 row_mask:0xf bank_mask:0xf")
    for r, tmp in prs: a(f"v_mov_b32 v{tmp}, v{r}")
    for r, tmp in prs: a(f"v_permlane16_swap_b32 v{r}, v{tmp}")
    for r, tmp in prs: a(f"v_add_f32 v{r}, v{r}, v{tmp}")
    for r, tmp in prs: a(f"v_mov_b32 v{tmp}, v{r}")
    for r, tmp in prs: a(f"v_permlane32_swap_b32 v{r}, v{tmp}")
    a("v_add_f32 v12, v12, v13")
    a("v_add_f32 v14, v14, v15")
    a("v_add_f32 v12, v12, v10")
    a("v_add_f32 v14, v14, v11")
    a("v_cvt_pk_bf16_f32 v12, v12, v14")
    a("s_mov_b64 exec, 0xff")
    a(f"buffer_store_short v12, v2, s[48:51], s61 offen {outpol}")
    a(f"buffer_store_short_d16_hi v12, v2, s[48:51], s61 offen offset:32 {outpol}")
    a("s_cmp_lg_u32 s2, 0")
    a("s_cbranch_scc1 L_fin_done")
    a("s_mov_b64 exec, 1")
    a("v_mov_b32 v3, s5")
    a("v_mov_b32 v4, 0")
    a("buffer_store_dword v3, v4, s[44:47], 0 offen sc1")
    a("L_fin_done:")
    a("s_mov_b64 exec, -1")
    stamp(6)
    stamp_store(0)
    a("s_endpgm")

    a("L_helper2:")
    if touch == 2:
        a("s_cmp_lg_u32 s3, 2")
        a("s_cbranch_scc1 L_notouch")
        a("s_lshl_b32 s6, s11, 18")
        a("s_load_dword s88, s[20:21], s6")
        a("s_and_b32 s6, s2, 7")
        a("s_lshl_b32 s6, s6, 19")
        a("s_load_dword s89, s[24:25], s6")
        a("s_load_dword s90, s[32:33], 0")
        a("s_load_dword s91, s[30:31], 0")
        a("s_load_dword s92, s[34:35], 0")
        a(f"s_mov_b32 s6, {OG:#x}")
        a("s_load_dword s94, s[42:43], s6")
        a("s_load_dword s95, s[38:39], 0")
        a("s_waitcnt lgkmcnt(0)")
        a("L_notouch:")
    a("s_cmp_lg_u32 s3, 3")
    a("s_cbranch_scc1 L_nogate")
    srd(48, 36, 1024)
    a("s_lshr_b32 s60, s11, 5")
    a("s_lshl_b32 s62, s60, 10")
    a("buffer_load_dwordx4 v[32:35], v5, s[52:55], s62 offen")
    a("buffer_load_dwordx4 v[36:39], v5, s[48:51], 0 offen")
    a("v_mov_b32 v40, 0")
    a(f"v_mov_b32 v2, {G_L:#x}")
    a("s_waitcnt vmcnt(0)")
    for i in range(4):
        a(f"v_dot2_f32_bf16 v40, v{32+i}, v{36+i}, v40")
    a("v_add_f32_dpp v40, v40, v40 quad_perm:[1,0,3,2] row_mask:0xf bank_mask:0xf")
    a("v_add_f32_dpp v40, v40, v40 quad_perm:[2,3,0,1] row_mask:0xf bank_mask:0xf")
    xlane("v_add_f32", 40, 41)
    a(f"v_mul_f32 v40, {f32(-LOG2E)}, v40")
    a("v_exp_f32 v40, v40")
    a("v_add_f32 v40, 1.0, v40")
    a("v_rcp_f32 v40, v40")
    a("s_mov_b64 exec, 1")
    a("ds_write_b32 v2, v40")
    a("s_waitcnt lgkmcnt(0)")
    a("ds_add_u32 v10, v20 offset:8")
    a("s_and_b32 s6, s11, 31")
    a("s_cmp_lg_u32 s6, 0")
    a("s_cbranch_scc1 L_gate_done")
    a("v_sub_f32 v42, 1.0, v40")
    a("v_mov_b32 v43, s5")
    a("v_mov_b32 v44, 0")
    a("s_lshl_b32 s6, s60, 3")
    a(f"s_add_u32 s6, s6, {GG:#x}")
    a("buffer_store_dwordx2 v[42:43], v44, s[44:47], s6 offen sc1")
    a("L_gate_done:")
    a("s_mov_b64 exec, -1")
    a("L_nogate:")
    a("s_and_b32 s62, s11, 0xfc")
    a("s_add_u32 s62, s62, s3")
    a(f"s_mul_i32 s62, s62, {QSTR}")
    a(f"s_add_u32 s62, s62, {QP:#x}")
    a("s_lshl_b32 s6, s3, 8")
    a(f"s_add_u32 s6, s6, {Q_L:#x}")
    a("v_and_b32 v2, 31, v0")
    a("v_lshl_add_u32 v2, v2, 3, s6")
    cnt_wait(16, "L_qt", 10, 21, 65, sleep=4, target=1)
    a(f"s_mov_b32 s65, {spin_max}")
    if no_qp: a("s_branch L_qp_go")
    a("L_qp:")
    a("buffer_load_dwordx4 v[32:35], v5, s[44:47], s62 offen sc1")
    a("buffer_load_dwordx4 v[36:39], v5, s[44:47], s62 offen offset:1024 sc1")
    a("s_waitcnt vmcnt(0)")
    for k in range(4):
        a(f"v_xor_b32 v{33+2*k}, s5, v{33+2*k}")
    a("v_or3_b32 v33, v33, v35, v37")
    a("v_or_b32 v33, v33, v39")
    a("v_cmp_ne_u32 vcc, 0, v33")
    a("s_cbranch_vccz L_qp_go")
    if qsleep: a(f"s_sleep {qsleep}")
    a("s_sub_u32 s65, s65, 1")
    a("s_cbranch_scc0 L_qp")
    a("L_qp_go:")
    def unpack_sum(nk):
        for k in range(nk):
            for h in range(2):
                src = 32 + 4 * k + 2 * h
                if k == 0:
                    a(f"v_lshlrev_b32 v{12+2*h}, 16, v{src}")
                    a(f"v_and_b32 v{13+2*h}, 0xffff0000, v{src}")
                else:
                    a(f"v_lshlrev_b32 v{src+1}, 16, v{src}")
                    a(f"v_and_b32 v{src}, 0xffff0000, v{src}")
                    a(f"v_add_f32 v{12+2*h}, v{12+2*h}, v{src+1}")
                    a(f"v_add_f32 v{13+2*h}, v{13+2*h}, v{src}")
        for e in range(4): a(f"v_mov_b32 v{16+e}, v{12+e}")
        for e in range(4): a(f"v_permlane32_swap_b32 v{12+e}, v{16+e}")
        for e in range(4): a(f"v_add_f32 v{12+e}, v{12+e}, v{16+e}")
    unpack_sum(2)
    a("v_cvt_pk_bf16_f32 v12, v12, v13")
    a("v_cvt_pk_bf16_f32 v13, v14, v15")
    a("ds_write_b64 v2, v[12:13]")
    a("s_waitcnt lgkmcnt(0)")
    cnt_add(4, 10, 20)
    a(f"s_setprio {hprio}")
    stamp(2)
    a("s_lshr_b32 s60, s2, 5")
    a("s_and_b32 s61, s2, 7")
    a("s_lshl_b32 s61, s61, 2")
    a("s_bfe_u32 s6, s2, 0x20003")
    a("s_add_u32 s61, s61, s6")
    srd(48, 24, 0x400000)
    srd(56, 32, 1792 * 1024)
    srd(52, 30, 3584)
    a("s_lshl_b32 s64, s60, 7")
    a("s_lshl_b32 s62, s61, 17")
    a("s_add_u32 s62, s62, s64")
    a("s_lshl_b32 s6, s3, 15")
    a("s_add_u32 s62, s62, s6")
    a("s_lshl_b32 s66, s61, 16")
    a("s_add_u32 s66, s66, s64")
    a("s_lshl_b32 s6, s3, 14")
    a("s_add_u32 s66, s66, s6")
    a(f"s_mov_b32 s90, {WO_L:#x}")
    a("v_lshrrev_b32 v24, 3, v0")
    a("v_and_b32 v12, 2, v24")
    a("v_xor_b32 v12, v12, v8")
    a("v_lshlrev_b32 v24, 10, v24")
    a("v_lshl_add_u32 v24, v12, 4, v24")
    a("v_xor_b32 v25, 64, v24")
    a(f"v_add_u32 v26, {2*(8192-1024)}, v24")
    a(f"v_add_u32 v27, {3*(8192-1024)}, v25")
    a(f"v_add_u32 v25, {8192-1024}, v25")
    a("v_bfe_u32 v12, v0, 3, 2")
    a("v_lshlrev_b32 v12, 5, v12")
    a(f"v_add3_u32 v120, v11, v12, s90")
    a("v_xor_b32 v121, 32, v120")
    a("v_xor_b32 v122, 64, v120")
    a("v_xor_b32 v123, 96, v120")
    a("v_bfe_u32 v12, v7, 2, 1")
    a("v_mul_u32_u24 v4, 144, v12")
    a("v_lshl_add_u32 v4, v6, 4, v4")
    a("s_mul_i32 s6, s3, 288")
    a(f"s_add_u32 s6, s6, {HA_L:#x}")
    a("v_add_u32 v4, s6, v4")
    a("v_bfe_u32 v12, v0, 3, 2")
    a("v_lshlrev_b32 v53, 3, v12")
    a("v_mul_u32_u24 v1, 144, v8")
    a("s_lshl_b32 s6, s3, 5")
    a(f"s_add_u32 s6, s6, {HA_L:#x}")
    a("v_add3_u32 v1, v1, v53, s6")
    a("v_lshlrev_b32 v52, 3, v8")
    a("v_and_b32 v12, 1, v6")
    a("v_lshlrev_b32 v11, 10, v12")
    a("s_lshl_b32 s69, s3, 11")
    a("s_lshl_b32 s6, s61, 5")
    a("s_add_u32 s69, s69, s6")
    a(f"s_add_u32 s69, s69, {LG:#x}")
    a("s_lshl_b32 s70, s61, 14")
    a("s_lshl_b32 s6, s3, 12")
    a("s_add_u32 s70, s70, s6")
    a(f"s_mul_i32 s63, s61, {HSTR}")
    a("s_add_u32 s63, s63, s6")
    a(f"s_add_u32 s63, s63, {HP:#x}")
    a(f"s_add_u32 s70, s70, {OG:#x}")
    a("s_lshl_b32 s6, s3, 15")
    a(f"s_add_u32 s6, s6, {AS_OFF:#x}")
    a("v_lshrrev_b32 v13, 5, v0")
    a("v_and_b32 v14, 31, v0")
    a("v_mul_u32_u24 v13, 272, v13")
    a("v_lshl_add_u32 v13, v14, 3, v13")
    a("v_add_u32 v2, s6, v13")
    a("v_mul_u32_u24 v13, 272, v8")
    a("v_lshl_add_u32 v13, v6, 4, v13")
    a("v_add_u32 v58, s6, v13")
    a("v_lshlrev_b32 v59, 17, v12")
    a("v_lshrrev_b32 v12, 3, v7")
    a("v_lshl_add_u32 v59, v12, 12, v59")
    a("v_lshl_add_u32 v59, v8, 4, v59")
    a("s_lshl_b32 s71, s3, 18")
    a("s_lshl_b32 s6, s60, 14")
    a("s_add_u32 s71, s71, s6")
    a("s_lshl_b32 s6, s61, 7")
    a("s_add_u32 s71, s71, s6")
    a(f"s_add_u32 s71, s71, {PG:#x}")
    a("s_add_u32 s8, s71, 8192")
    if no_h: a("s_branch L_nohact")
    a("s_cmp_ge_u32 s61, 28")
    a("s_cbranch_scc1 L_nohact")
    a("s_lshl_b32 s6, s61, 7")
    a("s_lshl_b32 s7, s3, 5")
    a("s_add_u32 s6, s6, s7")
    a("buffer_load_dwordx2 v[54:55], v53, s[52:55], s6 offen")
    a(f"s_mov_b32 s64, {GG:#x}")
    a(f"s_mov_b32 s65, {spin_max}")
    a("L_hp:")
    for k in range(4):
        a(f"buffer_load_dwordx4 v[{32+4*k}:{35+4*k}], v5, s[44:47], s63 offen offset:{k*1024} sc1")
    a("buffer_load_dwordx2 v[56:57], v52, s[44:47], s64 offen sc1")
    a("s_waitcnt vmcnt(0)")
    for k in range(8):
        a(f"v_xor_b32 v{33+2*k}, s5, v{33+2*k}")
    a("v_xor_b32 v48, s5, v57")
    a("v_or3_b32 v33, v33, v35, v37")
    a("v_or3_b32 v39, v39, v41, v43")
    a("v_or3_b32 v45, v45, v47, v48")
    a("v_or3_b32 v33, v33, v39, v45")
    a("v_cmp_ne_u32 vcc, 0, v33")
    a("s_cbranch_vccz L_hp_go")
    a("s_sleep 16")
    a("s_sub_u32 s65, s65, 1")
    a("s_cbranch_scc0 L_hp")
    a("L_hp_go:")
    unpack_sum(4)
    a("v_lshlrev_b32 v16, 16, v54")
    a("v_and_b32 v17, 0xffff0000, v54")
    a("v_lshlrev_b32 v18, 16, v55")
    a("v_and_b32 v19, 0xffff0000, v55")
    for e in range(4): a(f"v_add_f32 v{12+e}, v{12+e}, v{16+e}")
    for e in range(4): a(f"v_max_f32 v{12+e}, 0, v{12+e}")
    for e in range(4): a(f"v_mul_f32 v{16+e}, v{12+e}, v56")
    for e in range(4): a(f"v_mul_f32 v{12+e}, v{12+e}, v{16+e}")
    a("v_cvt_pk_bf16_f32 v12, v12, v13")
    a("v_cvt_pk_bf16_f32 v13, v14, v15")
    a("ds_write_b64 v1, v[12:13]")
    a("L_nohact:")
    a("s_cmp_lg_u32 s3, 0")
    a("s_cbranch_scc1 L_nolse")
    cnt_wait(8, "L_hml", 10, 21, 65, sleep=8, target=5)
    a("v_lshlrev_b32 v12, 4, v9")
    a(f"v_add_u32 v12, {M_L:#x}, v12")
    a("ds_read_b128 v[16:19], v12")
    a(f"ds_read_b128 v[32:35], v12 offset:{L_L-M_L}")
    a("s_and_b32 s6, s11, 0xfc")
    a("s_lshl_b32 s6, s6, 5")
    a("s_and_b32 s7, s11, 3")
    a("s_lshl_b32 s7, s7, 3")
    a("s_add_u32 s6, s6, s7")
    a(f"s_add_u32 s6, s6, {LG:#x}")
    a("v_lshlrev_b32 v13, 5, v9")
    a("s_waitcnt lgkmcnt(0)")
    a("v_max3_f32 v14, v16, v17, v18")
    a("v_max_f32 v14, v14, v19")
    for w in range(4): a(f"v_sub_f32 v{16+w}, v{16+w}, v14")
    for w in range(4): a(f"v_exp_f32 v{16+w}, v{16+w}")
    a("v_mul_f32 v36, v16, v32")
    for w in range(1, 4): a(f"v_fma_f32 v36, v{16+w}, v{32+w}, v36")
    a("v_log_f32 v36, v36")
    a("v_mov_b32 v15, s5")
    a("v_add_f32 v14, v14, v36")
    a("s_mov_b64 exec, 15")
    a("buffer_store_dwordx2 v[14:15], v13, s[44:47], s6 offen sc1")
    a("s_mov_b64 exec, -1")
    a("s_sub_u32 s6, s6, s7")
    a(f"s_mov_b32 s65, {spin_max}")
    a("L_lp:")
    a("s_sleep 8")
    a("buffer_load_dwordx4 v[28:31], v13, s[44:47], s6 offen sc1")
    a("buffer_load_dwordx4 v[32:35], v13, s[44:47], s6 offen offset:16 sc1")
    a("s_waitcnt vmcnt(0)")
    for k in range(4):
        a(f"v_xor_b32 v{29+2*k}, s5, v{29+2*k}")
    a("v_or3_b32 v29, v29, v31, v33")
    a("v_or_b32 v29, v29, v35")
    a("v_cmp_ne_u32 vcc, 0, v29")
    a("s_sub_u32 s65, s65, 1")
    a("s_cbranch_scc1 L_lp_go")
    a("s_cbranch_vccnz L_lp")
    a("L_lp_go:")
    a("v_max3_f32 v44, v28, v30, v32")
    a("v_max_f32 v44, v44, v34")
    for k in range(4):
        a(f"v_sub_f32 v{48+k}, v{28+2*k}, v44")
    for k in range(4):
        a(f"v_exp_f32 v{48+k}, v{48+k}")
    a("v_add_f32 v48, v48, v49")
    a("v_add_f32 v50, v50, v51")
    a("v_add_f32 v48, v48, v50")
    a("v_log_f32 v48, v48")
    a("v_lshlrev_b32 v12, 2, v9")
    a(f"v_add_u32 v12, {G_L+16:#x}, v12")
    a("v_add_f32 v48, v48, v44")
    a("s_mov_b64 exec, 15")
    a("ds_write_b32 v12, v48")
    a("s_mov_b64 exec, 1")
    a("ds_add_u32 v10, v20 offset:8")
    a("s_mov_b64 exec, -1")
    a("L_nolse:")
    cnt_wait(12, "L_trig", 10, 21, 65, sleep=2, target=ttarget)
    if no_wo: a("s_branch L_now2")
    a("s_mov_b32 m0, s67")
    a("s_nop 0")
    for i in range(4):
        a(f"buffer_load_dwordx4 v{24+i}, s[48:51], s62 offen offset:{i*1024} {wpol} lds")
    a("s_cmp_ge_u32 s61, 28")
    a("s_cbranch_scc1 L_now2")
    a("s_mov_b32 m0, s68")
    a("s_nop 0")
    for i in range(2):
        a(f"buffer_load_dwordx4 v{24+i}, s[56:59], s66 offen offset:{i*1024} {wpol} lds")
    a("L_now2:")
    for k in range(4):
        a(f"v_mov_b32 v{65+2*k}, s5")
    a("v_add_u32 v9, 1088, v2")
    a("v_mov_b32 v36, 1")
    stamp(3)
    WOF, W2F, AF, ACC = 128, 192, 72, 96
    for k in range(4):
        a(f"v_mov_b32 v{60+k}, 0")
    a("s_waitcnt vmcnt(0)")
    cnt_add(0, 10, 36)
    def p2_loads():
        for k in range(4):
            a(f"buffer_load_dwordx4 v[{12+4*k}:{15+4*k}], v5, s[44:47], s70 offen offset:{k*1024} sc1")
    cnt_wait(0, "L_s2", 10, 37, 65, sleep=1, target=8)
    stamp(6)
    for j in range(4):
        for aa in range(4):
            for eh in range(2):
                r = WOF + 16 * j + 4 * aa + 2 * eh
                a(f"ds_read_b64_tr_b16 v[{r}:{r+1}], v{120+aa} offset:{j*4096 + eh*512}")
        a("s_waitcnt lgkmcnt(4)")
    p2_loads()
    a("s_cmp_ge_u32 s61, 28")
    a("s_cbranch_scc1 L_nomlp")
    for j in range(2):
        for aa in range(4):
            for eh in range(2):
                r = W2F + 16 * j + 4 * aa + 2 * eh
                a(f"ds_read_b64_tr_b16 v[{r}:{r+1}], v{120+aa} offset:{W2_L-WO_L + j*4096 + eh*512}")
        a("s_waitcnt lgkmcnt(4)")
    a("ds_read_b128 v[88:91], v4")
    a("ds_read_b128 v[92:95], v4 offset:64")
    a("s_waitcnt lgkmcnt(0)")
    for j in range(2):
        for aa in range(4):
            c = "0" if j == 0 else f"v[{ACC+4*aa}:{ACC+4*aa+3}]"
            a(f"v_mfma_f32_16x16x32_bf16 v[{ACC+4*aa}:{ACC+4*aa+3}], v[{88+4*j}:{91+4*j}], v[{W2F+16*j+4*aa}:{W2F+16*j+4*aa+3}], {c}")
    for aa in range(4):
        a(f"v_mov_b32 v{60+aa}, v{ACC+4*aa}")
    a("L_nomlp:")
    a(f"s_mov_b32 s64, {spin_max}")
    stamp(4)
    a("s_branch L_p2_body")
    a("L_p2_poll:")
    p2_loads()
    a("L_p2_body:")
    for k in range(4):
        a(f"s_waitcnt vmcnt({3-k})")
        va = "v2" if k < 2 else "v9"
        o = (k & 1) * 136
        a(f"ds_write2_b32 {va}, v{12+4*k}, v{14+4*k} offset0:{o} offset1:{o+1}")
        a(f"v_xor_b32 v{28+2*k}, s5, v{13+4*k}")
        a(f"v_xor_b32 v{29+2*k}, s5, v{15+4*k}")
    a("v_or3_b32 v28, v28, v29, v30")
    a("v_or3_b32 v31, v31, v32, v33")
    a("v_or3_b32 v28, v28, v34, v35")
    a("v_or_b32 v28, v28, v31")
    a("v_cmp_ne_u32 vcc, 0, v28")
    a("s_sub_u32 s64, s64, 1")
    a("s_waitcnt lgkmcnt(0)")
    a("s_cbranch_scc1 L_p2_go")
    a("s_cbranch_vccnz L_p2_poll")
    a("L_p2_go:")
    for j in range(4):
        a(f"ds_read_b128 v[{AF+4*j}:{AF+4*j+3}], v58 offset:{j*64}")
    for j in range(4):
        a(f"s_waitcnt lgkmcnt({3-j})")
        for aa in range(4):
            c = "0" if j == 0 else f"v[{ACC+4*aa}:{ACC+4*aa+3}]"
            a(f"v_mfma_f32_16x16x32_bf16 v[{ACC+4*aa}:{ACC+4*aa+3}], v[{AF+4*j}:{AF+4*j+3}], v[{WOF+16*j+4*aa}:{WOF+16*j+4*aa+3}], {c}")
    a("s_mov_b64 exec, 0xffffffff")
    for aa in range(4):
        a(f"v_add_f32 v{60+aa}, v{60+aa}, v{ACC+4*aa}")
        a(f"v_add_f32 v{48+aa}, v{ACC+4*aa+1}, v{ACC+4*aa+2}")
        a(f"v_add_f32 v{60+aa}, v{60+aa}, v{ACC+4*aa+3}")
        a(f"v_add_f32 v{64+2*aa}, v{60+aa}, v{48+aa}")
        if aa == 1: a("buffer_store_dwordx4 v[64:67], v59, s[44:47], s71 offen sc1")
    a("buffer_store_dwordx4 v[68:71], v59, s[44:47], s8 offen sc1")
    a("s_mov_b64 exec, -1")
    stamp(5)
    if stamps:
        a("s_add_u32 s3, s3, 1")
        stamp_store("s3")
    a("L_end:")
    a("s_endpgm")
    a.raw('.section .rodata,"a"')
    a.raw(".p2align 6")
    a.raw(f".amdhsa_kernel {NAME}_kernel")
    a.raw("  .amdhsa_next_free_vgpr 256")
    a.raw("  .amdhsa_next_free_sgpr 96")
    a.raw("  .amdhsa_accum_offset 256")
    a.raw("  .amdhsa_group_segment_fixed_size 0")
    a.raw("  .amdhsa_kernarg_size 112")
    a.raw("  .amdhsa_user_sgpr_count 2")
    a.raw("  .amdhsa_user_sgpr_kernarg_segment_ptr 1")
    a.raw("  .amdhsa_system_sgpr_workgroup_id_x 1")
    a.raw(".end_amdhsa_kernel")
    return a.text()

if __name__ == "__main__":
    out = sys.argv[1]
    kw = json.loads(sys.argv[2]) if len(sys.argv) > 2 else {}
    open(out, "w").write(gen(**kw))
```

```python
import sys, json, math, struct
from asmdsl import Asm
NAME = "gated_mix__gqa_block_cached__dense_activation_squared_relu__decode"

GG, LG = 0x3000, 0x10000
QP, HP, OG, PG = 0x100000, 0x80000, 0x200000, 0x300000
STAMP = 0x8000000
def f32(x): return "0x%08x" % struct.unpack("<I", struct.pack("<f", x))[0]
CSC = math.log2(math.e) / math.sqrt(128.0)
LOG2E = math.log2(math.e)
HEADER = open("cdna_kernels/" + NAME + ".s.ref").read().split("; Override launch geometry")[0]

def gen(stamps=False, kvpol="nt", wpol="nt", spin_max=400000, D1=6, D2=6, qsleep=4, qtrig=6,
        trig=15, npre=4, rot=False, ttarget=4, early=True, st2=False, spread=False, pad=0, amap=2, hprio=0, sprio=2, w2early=False, outpol="", touch=0, no_h=False, no_wo=False, no_qp=False, no_st=False, no_gate=False):
    a = Asm()
    NST = 8
    QSTR, HSTR = (67584, 540672) if spread else (2048, 16384)
    QP, HP = (0x1000000, 0x3000000) if spread else (0x100000, 0x80000)
    WQ_L, W1_L = 0x20000, 0x24000
    WO_L, W2_L = WQ_L, W1_L
    Q_L, M_L, L_L, G_L, C_L, HA_L = 0x26000, 0x26400, 0x26440, 0x26480, 0x264c0, 0x26500
    LDS_TOTAL = HA_L + 8 * 144
    AS_OFF = 0x1000
    a.raw(HEADER.rstrip())
    a.raw(f"; @launch grid=(256,1,1) block=(512,1,1) lds={LDS_TOTAL}")
    a.raw('.amdgcn_target "amdgcn-amd-amdhsa--gfx950"')
    a.raw(".text")
    a.raw(f".globl {NAME}_kernel")
    a.raw(".p2align 8")
    a.raw(f".type {NAME}_kernel,@function")
    a.label(f"{NAME}_kernel")

    def srd(d, base, size):
        a(f"s_mov_b32 s{d}, s{base}")
        a(f"s_mov_b32 s{d+1}, s{base+1}")
        a(f"s_mov_b32 s{d+2}, {size:#x}")
        a(f"s_mov_b32 s{d+3}, 0x00020000")
    def stamp(i):
        if stamps:
            a(f"s_memrealtime s[{72+2*i}:{73+2*i}]")
            a("s_waitcnt lgkmcnt(0)")
    def stamp_store(slot):
        if not stamps: return
        a(f"s_lshl_b32 s6, s2, 3")
        a(f"s_add_u32 s6, s6, {slot}")
        a(f"s_mul_i32 s6, s6, {NST*8}")
        a(f"s_add_u32 s6, s6, {STAMP:#x}")
        a("s_mov_b64 exec, 1")
        a("v_mov_b32 v1, 0")
        for i in range(0, NST, 2):
            for k in range(4):
                a(f"v_mov_b32 v{4+k}, s{72+2*i+k}")
            a(f"buffer_store_dwordx4 v[4:7], v1, s[44:47], s6 offen offset:{i*8}")
            a("s_nop 1")
        a("s_mov_b64 exec, -1")
    def tagcalc():
        a("s_waitcnt lgkmcnt(0)")
        a("s_mul_i32 s5, s4, 1664525")
        a("s_add_u32 s5, s5, 1013904223")
    def xlane(op, r, tmp):
        a(f"{op}_dpp v{r}, v{r}, v{r} row_ror:4 row_mask:0xf bank_mask:0xf")
        a(f"{op}_dpp v{r}, v{r}, v{r} row_ror:8 row_mask:0xf bank_mask:0xf")
        a(f"v_mov_b32 v{tmp}, v{r}")
        a(f"v_permlane16_swap_b32 v{r}, v{tmp}")
        a(f"{op} v{r}, v{r}, v{tmp}")
        a(f"v_mov_b32 v{tmp}, v{r}")
        a(f"v_permlane32_swap_b32 v{r}, v{tmp}")
        a(f"{op} v{r}, v{r}, v{tmp}")
    def cnt_add(off, vaddr, vone):
        a("s_mov_b64 exec, 1")
        a(f"ds_add_u32 v{vaddr}, v{vone} offset:{off}")
        a("s_mov_b64 exec, -1")
    def cnt_wait(off, lbl, vaddr, vtmp, sreg, sleep=0, target=4):
        a(f"s_mov_b32 s{sreg}, {spin_max*4}")
        a(f"{lbl}:")
        a(f"ds_read_b32 v{vtmp}, v{vaddr} offset:{off}")
        a("s_waitcnt lgkmcnt(0)")
        a(f"v_cmp_gt_u32 vcc, {target}, v{vtmp}")
        a(f"s_cbranch_vccz {lbl}_go")
        if sleep: a(f"s_sleep {sleep}")
        a(f"s_sub_u32 s{sreg}, s{sreg}, 1")
        a(f"s_cbranch_scc0 {lbl}")
        a(f"{lbl}_go:")
    def unit_id():
        if amap == 1:
            a("s_and_b32 s11, s2, 0xe0")
            a("s_and_b32 s6, s2, 7")
            a("s_lshl_b32 s6, s6, 2")
            a("s_add_u32 s11, s11, s6")
            a("s_bfe_u32 s6, s2, 0x20003")
            a("s_add_u32 s11, s11, s6")
        elif amap == 2:
            a("s_and_b32 s11, s2, 7")
            a("s_lshl_b32 s11, s11, 5")
            a("s_lshr_b32 s6, s2, 3")
            a("s_add_u32 s11, s11, s6")
        else:
            a("s_mov_b32 s11, s2")

    a("s_cmp_ge_u32 s2, 256")
    a("s_cbranch_scc1 L_end")
    if stamps:
        for i in range(NST):
            a(f"s_mov_b64 s[{72+2*i}:{73+2*i}], 0")
        a("s_memrealtime s[72:73]")
    if pad: a("s_memrealtime s[72:73]")
    a("s_load_dwordx16 s[16:31], s[0:1], 0")
    a("s_load_dwordx8 s[32:39], s[0:1], 64")
    a("s_load_dwordx4 s[40:43], s[0:1], 96")
    a("v_lshrrev_b32 v1, 6, v0")
    a("v_and_b32 v0, 63, v0")
    a("v_readfirstlane_b32 s3, v1")
    a("v_lshrrev_b32 v6, 4, v0")
    a("v_and_b32 v7, 15, v0")
    a("v_lshlrev_b32 v5, 4, v0")
    unit_id()
    a("s_cmp_lt_u32 s3, 4")
    a("s_cbranch_scc1 L_stream")

    a("s_setprio 3")
    a(f"v_mov_b32 v10, {C_L:#x}")
    for k in range(4): a(f"v_mov_b32 v{12+k}, 0")
    a("ds_write_b128 v10, v[12:15]")
    a("ds_write_b64 v10, v[12:13] offset:16")
    a("s_sub_u32 s3, s3, 4")
    a("v_lshrrev_b32 v16, 3, v0")
    a("v_and_b32 v8, 7, v0")
    a("v_lshlrev_b32 v1, 13, v16")
    a("v_lshl_add_u32 v1, v8, 4, v1")
    for i in range(1, 4):
        a(f"v_add_u32 v{1+i}, {i*(65536-1024)}, v1")
    a("v_mul_u32_u24 v16, 3584, v16")
    a("v_lshl_add_u32 v16, v8, 4, v16")
    a(f"v_add_u32 v17, {8*3584-1024}, v16")
    a("v_lshlrev_b32 v18, 10, v8")
    a("v_lshl_add_u32 v19, v6, 3, v18")
    a("v_lshl_add_u32 v18, v6, 4, v18")
    a("s_bfe_u32 s61, s2, 0x20003")
    a("s_and_b32 s60, s2, 7")
    a("s_lshl_b32 s60, s60, 3")
    a("s_lshr_b32 s6, s2, 5")
    a("s_add_u32 s60, s60, s6")
    a("s_lshl_b32 s62, s61, 20")
    a("s_lshl_b32 s6, s60, 7")
    a("s_add_u32 s62, s62, s6")
    a("s_lshl_b32 s6, s3, 18")
    a("s_add_u32 s62, s62, s6")
    a("s_lshl_b32 s6, s3, 12")
    a(f"s_add_u32 s67, s6, {WQ_L:#x}")
    a("s_lshl_b32 s6, s3, 11")
    a(f"s_add_u32 s68, s6, {W1_L:#x}")
    a("s_lshl_b32 s63, s61, 8")
    a("s_lshl_b32 s6, s3, 6")
    a("s_add_u32 s63, s63, s6")
    a("s_lshr_b32 s66, s60, 1")
    a("s_and_b32 s69, s60, 1")
    a("s_lshl_b32 s70, s61, 1")
    a("s_add_u32 s70, s70, s69")
    a("s_lshl_b32 s6, s70, 2")
    a("s_add_u32 s6, s6, s3")
    a(f"s_mul_i32 s65, s6, {16*3584}")
    a("s_lshl_b32 s64, s6, 5")
    a("s_lshl_b32 s6, s66, 7")
    a("s_add_u32 s65, s65, s6")
    a("s_mov_b32 m0, s67")
    a("s_waitcnt lgkmcnt(0)")
    srd(48, 22, 0x400000)
    srd(52, 16, 8192)
    XF, BF, AC = 64, 128, 80
    for i in range(4):
        a(f"buffer_load_dwordx4 v{1+i}, s[48:51], s62 offen offset:{i*1024} {wpol} lds")
    a(f"buffer_load_dwordx4 v[{XF}:{XF+3}], v18, s[52:55], s63 offen")
    a("s_mov_b32 m0, s68")
    srd(56, 28, 512 * 3584)
    a("s_cmp_ge_u32 s66, 28")
    a("s_cbranch_scc1 L_now1a")
    a(f"buffer_load_dwordx4 v16, s[56:59], s65 offen {wpol} lds")
    a(f"buffer_load_dwordx4 v17, s[56:59], s65 offen offset:1024 {wpol} lds")
    a(f"buffer_load_dwordx2 v[{XF+4}:{XF+5}], v19, s[52:55], s64 offen")
    a("L_now1a:")
    a("s_load_dword s4, s[42:43], 0")
    a("s_barrier")
    srd(44, 42, 0x10000000)
    a("v_lshrrev_b32 v16, 2, v7")
    a("v_and_b32 v9, 3, v0")
    a("v_lshl_add_u32 v17, v6, 3, v16")
    a("v_lshlrev_b32 v11, 7, v17")
    a("v_lshl_add_u32 v11, v9, 3, v11")
    a("v_add_u32 v3, s67, v11")
    a("v_lshl_add_u32 v17, v6, 2, v16")
    a("v_lshlrev_b32 v2, 7, v17")
    a("v_lshl_add_u32 v2, v9, 3, v2")
    a("v_add_u32 v2, s68, v2")
    a("v_mov_b32 v20, 1")
    a("v_xor_b32 v1, v6, v8")
    a("v_lshlrev_b32 v1, 4, v1")
    a("v_lshl_add_u32 v1, v8, 8, v1")
    a("v_add_u32 v1, s67, v1")
    a("v_xor_b32 v19, 64, v1")
    a("v_and_b32 v16, 1, v6")
    a("s_lshl_b32 s6, s3, 1")
    a("v_add_u32 v16, s6, v16")
    a("v_xor_b32 v17, v16, v7")
    a("v_lshlrev_b32 v17, 4, v17")
    a("v_lshl_add_u32 v16, v16, 8, v17")
    a("v_bfe_u32 v17, v0, 3, 2")
    a("s_lshl_b32 s6, s3, 2")
    a("v_add_u32 v17, s6, v17")
    a("v_xor_b32 v17, v17, v8")
    a("v_lshlrev_b32 v17, 4, v17")
    a("v_lshl_add_u32 v18, v8, 8, v17")
    a("v_add_u32 v18, 2048, v18")
    a("s_mov_b32 s6, 0")
    a("s_mov_b32 s7, -1")
    a("v_cndmask_b32 v16, v16, v18, s[6:7]")
    a(f"v_add_u32 v16, {WQ_L:#x}, v16")
    a("v_and_b32 v17, 1, v6")
    a(f"v_mul_u32_u24 v17, {32*QSTR}, v17")
    a("v_lshl_add_u32 v17, v7, 4, v17")
    a("s_lshl_b32 s63, s3, 6")
    a("s_lshr_b32 s8, s60, 1")
    a("s_add_u32 s63, s63, s8")
    a(f"s_mul_i32 s63, s63, {QSTR}")
    a("s_lshl_b32 s8, s61, 9")
    a("s_add_u32 s63, s63, s8")
    a("s_lshl_b32 s8, s69, 8")
    a("s_add_u32 s63, s63, s8")
    a(f"s_add_u32 s63, s63, {QP:#x}")
    a("v_add_u32 v17, s63, v17")
    a(f"s_mul_i32 s64, s66, {HSTR}")
    a("s_lshl_b32 s8, s70, 9")
    a("s_add_u32 s64, s64, s8")
    a("s_lshl_b32 s8, s3, 12")
    a("s_add_u32 s64, s64, s8")
    a(f"s_add_u32 s64, s64, {HP-512:#x}")
    a("v_add_u32 v18, s64, v5")
    a("v_cndmask_b32 v4, v17, v18, s[6:7]")
    a("s_cmp_lt_u32 s66, 28")
    a("s_cselect_b32 s9, -1, 0")
    tagcalc()
    a("v_mov_b32 v25, s5")
    a("v_mov_b32 v27, s5")
    a("s_waitcnt vmcnt(0)")
    for aa in range(4):
        for eh in range(2):
            r = BF + 4 * aa + 2 * eh
            a(f"ds_read_b64_tr_b16 v[{r}:{r+1}], v3 offset:{eh*512 + aa*32}")
    for aa in range(4):
        r = BF + 16 + 2 * aa
        a(f"ds_read_b64_tr_b16 v[{r}:{r+1}], v2 offset:{aa*32}")
    for aa in range(4):
        a(f"s_waitcnt lgkmcnt({10-2*aa})")
        a(f"v_mfma_f32_16x16x32_bf16 v[{AC+4*aa}:{AC+4*aa+3}], v[{BF+4*aa}:{BF+4*aa+3}], v[{XF}:{XF+3}], 0")
    for aa in range(4):
        a(f"s_waitcnt lgkmcnt({3-aa})")
        a(f"v_mfma_f32_16x16x16_bf16 v[{AC+16+4*aa}:{AC+16+4*aa+3}], v[{BF+16+2*aa}:{BF+16+2*aa+1}], v[{XF+4}:{XF+5}], 0")
    a("s_mov_b32 exec_lo, 0x00ff00ff")
    a("s_mov_b32 exec_hi, 0x00ff00ff")
    for part in range(2):
        for aa in range(4):
            r = AC + 16 * part + 4 * aa
            a(f"ds_write_b128 v{1 if aa % 2 == 0 else 19}, v[{r}:{r+3}] offset:{part*2048 + (aa>>1)*128}")
    a("s_mov_b64 exec, 1")
    a("s_waitcnt lgkmcnt(0)")
    a("ds_add_u32 v10, v20")
    a("s_mov_b64 exec, -1")
    cnt_wait(0, "L_s1", 10, 21, 65)
    for j in range(4):
        a(f"ds_read_b128 v[{32+4*j}:{35+4*j}], v16 offset:{j*4096}")
    a("s_waitcnt lgkmcnt(2)")
    for e in range(4): a(f"v_add_f32 v{32+e}, v{32+e}, v{36+e}")
    a("s_waitcnt lgkmcnt(0)")
    for e in range(4): a(f"v_add_f32 v{40+e}, v{40+e}, v{44+e}")
    for e in range(4): a(f"v_add_f32 v{32+e}, v{32+e}, v{40+e}")
    a("v_cvt_pk_bf16_f32 v24, v32, v33")
    a("v_cvt_pk_bf16_f32 v26, v34, v35")
    a("s_mov_b32 exec_hi, s9")
    if not no_st: a("buffer_store_dwordx4 v[24:27], v4, s[44:47], 0 offen sc1")
    a("s_mov_b64 exec, -1")
    stamp(1)
    a("s_branch L_helper2")

    a("L_stream:")
    a("v_lshlrev_b32 v1, 2, v6")
    a("v_xor_b32 v1, v1, v7")
    a("v_xor_b32 v2, 1, v1")
    a("v_xor_b32 v3, 2, v1")
    a("v_xor_b32 v4, 3, v1")
    a("v_lshlrev_b32 v8, 8, v6")
    for i in range(4):
        a(f"v_lshl_add_u32 v{1+i}, v{1+i}, 4, v8")
    a("s_lshl_b32 s7, s11, 18")
    for r in range(4):
        a(f"s_add_u32 s6, s3, {r if rot else 0}")
        a("s_and_b32 s6, s6, 3")
        a("s_lshl_b32 s6, s6, 12")
        a(f"s_add_u32 s{12+r}, s7, s6")
    a("s_mov_b32 s60, s12")
    a("s_mov_b32 s61, s12")
    a("s_lshl_b32 s62, s3, 15")
    a("s_waitcnt lgkmcnt(0)")
    if st2: stamp(3)
    srd(48, 18, 0x4000000)
    srd(52, 20, 0x4000000)
    a("s_load_dword s4, s[42:43], 0")
    if touch == 1:
        a("s_load_dword s88, s[20:21], s60")
        a("s_and_b32 s6, s2, 7")
        a("s_lshl_b32 s6, s6, 19")
        a("s_load_dword s89, s[24:25], s6")
        a("s_load_dword s90, s[32:33], 0")
        a("s_load_dword s91, s[30:31], 0")
        a("s_load_dword s92, s[34:35], 0")
        a("s_load_dword s93, s[36:37], 0")
        a(f"s_mov_b32 s6, {OG:#x}")
        a("s_load_dword s94, s[42:43], s6")
        a("s_load_dword s95, s[38:39], 0")
    if not early: a("s_barrier")
    if st2: stamp(4)

    nissued = [0]
    pos = {}
    covered = [0]
    Dcur = [D1]
    def throttle():
        D = Dcur[0]
        if D >= 63: return
        if nissued[0] - covered[0] > D - 1:
            a(f"s_waitcnt vmcnt({D-1})")
            covered[0] = nissued[0] - (D - 1)
    def issueK(tt):
        a(f"s_add_u32 m0, s62, {(tt & 7) * 4096}")
        for i in range(4):
            throttle()
            a(f"buffer_load_dwordx4 v{1+i}, s[48:51], s60 offen offset:{i*1024} {kvpol} lds")
            nissued[0] += 1
        pos[("k", tt)] = nissued[0]
        if tt < 15: a(f"s_add_u32 s60, s{12+((tt+1)&3)}, {(tt+1)*16384}")
    def vreg(tt, i):
        return 64 + 4 * (4 * (tt % 12) + i)
    def issueV(tt):
        for i in range(4):
            r = vreg(tt, i)
            throttle()
            a(f"buffer_load_dwordx4 v[{r}:{r+3}], v5, s[52:55], s61 offen offset:{i*1024} {kvpol}")
            nissued[0] += 1
            pos[("v", tt, i)] = nissued[0]
        pos[("v", tt)] = nissued[0]
        if tt < 15: a(f"s_add_u32 s61, s{12+((tt+1)&3)}, {(tt+1)*16384}")
    def waitfor(key):
        if pos[key] <= covered[0]: return
        n = min(nissued[0] - pos[key], 63)
        a(f"s_waitcnt vmcnt({n})")
        covered[0] = nissued[0] - n

    issueK(0)
    if early: a("s_barrier")
    if sprio: a(f"s_setprio {sprio}")
    srd(44, 42, 0x10000000)
    a("v_and_b32 v8, 3, v7")
    a("v_lshlrev_b32 v8, 10, v8")
    a("v_lshrrev_b32 v9, 2, v7")
    a("v_lshl_add_u32 v8, v9, 8, v8")
    a("v_add_u32 v8, s62, v8")
    a("v_xor_b32 v9, v6, v7")
    a("v_and_b32 v44, 3, v7")
    a("v_lshlrev_b32 v44, 8, v44")
    a("v_lshl_add_u32 v44, v6, 4, v44")
    a(f"v_add_u32 v44, {Q_L:#x}, v44")
    a("v_xor_b32 v45, 4, v9")
    a("v_xor_b32 v46, 8, v9")
    a("v_xor_b32 v47, 12, v9")
    a("v_lshl_add_u32 v6, v9, 4, v8")
    a("v_lshl_add_u32 v7, v45, 4, v8")
    a("v_lshl_add_u32 v9, v47, 4, v8")
    a("v_lshl_add_u32 v8, v46, 4, v8")
    a("s_mov_b32 s64, 0x00f000f0"); a("s_mov_b32 s65, 0x00f000f0")
    a("s_mov_b32 s66, 0x0f000f00"); a("s_mov_b32 s67, 0x0f000f00")
    a("s_mov_b32 s70, 0xf000f000"); a("s_mov_b32 s71, 0xf000f000")
    MASK = {1: "s[64:65]", 2: "s[66:67]", 3: "s[70:71]"}
    a("s_mov_b32 s8, 0x05040100")
    a("s_mov_b32 s9, 0x07060302")
    a(f"s_mov_b32 s10, {f32(CSC)}")
    a(f"v_mov_b32 v45, {C_L:#x}")
    a("v_mov_b32 v46, 1")
    srd(56, 34, 1024)
    a("s_and_b32 s6, s11, 31")
    a("s_lshr_b32 s6, s6, 1")
    a("s_lshl_b32 s6, s6, 5")
    a("s_and_b32 s7, s11, 1")
    a("s_lshl_b32 s7, s7, 3")
    a("s_add_u32 s69, s6, s7")
    a("s_lshl_b32 s68, s69, 1")
    a("v_and_b32 v12, 7, v0")
    a("v_lshlrev_b32 v12, 1, v12")
    tagcalc()
    seqno = [1]
    def tick():
        if seqno[0] == qtrig:
            cnt_add(16, 45, 46)
        seqno[0] += 1
    for tt in range(1, 8):
        issueK(tt); tick()
        if st2 and tt == 1: stamp(7)
        if st2 and tt == 3: stamp(2)
    a("buffer_load_ushort v10, v12, s[56:59], s68 offen")
    a("buffer_load_ushort v11, v12, s[56:59], s68 offen offset:32")
    nissued[0] += 2
    vn = [0]
    def nextV():
        issueV(vn[0]); vn[0] += 1
        if vn[0] - 1 == trig:
            a(f"v_mov_b32 v1, {C_L:#x}")
            a("v_mov_b32 v2, 1")
            cnt_add(12, 1, 2)
    for tt in range(0, npre):
        nextV(); tick()
    stamp(1)
    cnt_wait(4, "L_wq", 45, 46, 63)
    if not st2: stamp(2)
    Dcur[0] = D2
    QFR, KT, DT, SD = 12, 28, 44, 48
    for j in range(4):
        a(f"ds_read_b128 v[{QFR+4*j}:{QFR+4*j+3}], v44 offset:{64*j}")
    a("s_waitcnt lgkmcnt(0)")
    def S(tt):
        waitfor(("k", tt))
        slot = tt & 7
        G = tt >> 1; t = G & 3; st = 2 * (G >> 2) + (tt & 1)
        dst = SD + 4 * st if t == 0 else DT
        for j in range(4):
            a(f"ds_read_b128 v[{KT+4*j}:{KT+4*j+3}], v{6+j} offset:{slot*4096}")
        for j in range(4):
            a(f"s_waitcnt lgkmcnt({3-j})")
            c = "0" if j == 0 else f"v[{dst}:{dst+3}]"
            a(f"v_mfma_f32_16x16x32_bf16 v[{dst}:{dst+3}], v[{KT+4*j}:{KT+4*j+3}], v[{QFR+4*j}:{QFR+4*j+3}], {c}")
        return (t, st)
    def Ssel(ts):
        t, st = ts
        if t != 0:
            for r in range(4):
                a(f"v_cndmask_b32 v{SD+4*st+r}, v{SD+4*st+r}, v{DT+r}, {MASK[t]}")
    for tt in range(8):
        ts = S(tt)
        issueK(tt + 8)
        Ssel(ts)
        if tt >= 2:
            Ssel(S(tt + 6))
    nextV(); Ssel(S(14))
    nextV(); Ssel(S(15))
    a(f"v_max3_f32 v44, v{SD}, v{SD+1}, v{SD+2}")
    a(f"v_max3_f32 v45, v{SD+3}, v{SD+4}, v{SD+5}")
    a(f"v_max3_f32 v46, v{SD+6}, v{SD+7}, v{SD+8}")
    a(f"v_max3_f32 v47, v{SD+9}, v{SD+10}, v{SD+11}")
    a(f"v_max3_f32 v44, v44, v{SD+12}, v{SD+13}")
    a(f"v_max3_f32 v45, v45, v{SD+14}, v{SD+15}")
    a(f"v_max3_f32 v44, v44, v46, v47")
    a(f"v_max_f32 v44, v44, v45")
    xlane("v_max_f32", 44, 45)
    a("v_mul_f32 v44, s10, v44")
    a("v_and_b32 v46, 3, v0")
    a("v_lshlrev_b32 v46, 4, v46")
    a("s_lshl_b32 s6, s3, 2")
    a(f"s_add_u32 s6, s6, {M_L:#x}")
    a("v_add_u32 v47, s6, v46")
    for i in range(16):
        a(f"v_fma_f32 v{SD+i}, v{SD+i}, s10, -v44")
    nextV()
    for i in range(16):
        a(f"v_exp_f32 v{SD+i}, v{SD+i}")
    a(f"v_add_f32 v28, v{SD}, v{SD+1}")
    a(f"v_add_f32 v29, v{SD+2}, v{SD+3}")
    a(f"v_add_f32 v30, v{SD+4}, v{SD+5}")
    a(f"v_add_f32 v31, v{SD+6}, v{SD+7}")
    for k in range(2):
        for q in range(4):
            a(f"v_add_f32 v{28+q}, v{28+q}, v{SD+8+4*k+q}")
    a("v_add_f32 v28, v28, v29")
    a("v_add_f32 v30, v30, v31")
    a("v_add_f32 v28, v28, v30")
    xlane("v_add_f32", 28, 29)
    a("s_mov_b64 exec, 15")
    a("ds_write_b32 v47, v44")
    a(f"ds_write_b32 v47, v28 offset:{L_L-M_L}")
    a("s_mov_b64 exec, -1")
    for i in range(8):
        a(f"v_cvt_pk_bf16_f32 v{SD+i}, v{SD+2*i}, v{SD+2*i+1}")
    a(f"v_mov_b32 v1, {C_L:#x}")
    a("v_mov_b32 v2, 1")
    a("s_waitcnt lgkmcnt(0)")
    cnt_add(8, 1, 2)
    if not st2: stamp(3)
    OA, AT, PT = 12, 44, 56
    def PV(G, last=False):
        t = G & 3; aa = G >> 2
        src = SD + 4 * aa
        if t != 0:
            for i in range(4):
                a(f"v_mov_b32_dpp v{AT+i}, v{src+i} row_shl:{4*t} row_mask:0xf bank_mask:0xf bound_ctrl:0")
            src = AT
        X, Y = 2 * G, 2 * G + 1
        def V(e, p):
            return vreg(X if e < 4 else Y, e & 3) + p
        if not last:
            waitfor(("v", Y))
            def perms(dd):
                p, sel = dd >> 1, ("s8" if (dd & 1) == 0 else "s9")
                tb = PT + 4 * (dd & 1)
                for q in range(4):
                    a(f"v_perm_b32 v{tb+q}, v{V(2*q+1, p)}, v{V(2*q, p)}, {sel}")
            def mf(dd):
                tb = PT + 4 * (dd & 1)
                c = "0" if G == 0 else f"v[{OA+4*dd}:{OA+4*dd+3}]"
                a(f"v_mfma_f32_16x16x32_bf16 v[{OA+4*dd}:{OA+4*dd+3}], v[{src}:{src+3}], v[{tb}:{tb+3}], {c}")
            perms(0)
            for dd in range(8):
                if dd + 1 < 8: perms(dd + 1)
                mf(dd)
        else:
            TB = vreg(4, 0)
            for q in range(4):
                key = ("v", X if q < 2 else Y, (2 * q + 1) & 3)
                waitfor(key)
                for dd in range(8):
                    p, sel = dd >> 1, ("s8" if (dd & 1) == 0 else "s9")
                    a(f"v_perm_b32 v{TB+4*dd+q}, v{V(2*q+1, p)}, v{V(2*q, p)}, {sel}")
            for dd in range(8):
                a(f"v_mfma_f32_16x16x32_bf16 v[{OA+4*dd}:{OA+4*dd+3}], v[{src}:{src+3}], v[{TB+4*dd}:{TB+4*dd+3}], v[{OA+4*dd}:{OA+4*dd+3}]")
    def factors():
        a(f"v_mov_b32 v1, {C_L:#x}")
        cnt_wait(8, "L_wml", 1, 2, 63, target=6)
        a("s_lshl_b32 s6, s3, 4")
        a(f"s_add_u32 s6, s6, {M_L:#x}")
        a("v_lshrrev_b32 v3, 5, v0")
        a("v_lshl_add_u32 v1, v3, 3, s6")
        a("ds_read_b64 v[6:7], v1")
        a("s_lshl_b32 s6, s3, 2")
        a(f"s_add_u32 s7, s6, {G_L+16:#x}")
        a("v_mov_b32 v1, s7")
        a("ds_read_b32 v8, v1")
        a(f"v_mov_b32 v1, {G_L:#x}")
        a("ds_read_b32 v4, v1")
        a("v_and_b32 v2, 1, v0")
        a("v_lshlrev_b32 v2, 10, v2")
        a("v_lshl_add_u32 v2, v3, 16, v2")
        a("v_bfe_u32 v3, v0, 1, 4")
        a("v_lshl_add_u32 v2, v3, 4, v2")
        a("v_add_u32 v2, s6, v2")
        a("v_add_u32 v3, s62, v5")
        a("s_waitcnt lgkmcnt(0)")
        a("v_sub_f32 v6, v6, v8")
        a("v_sub_f32 v7, v7, v8")
        a("v_exp_f32 v6, v6")
        a("v_exp_f32 v7, v7")
        a("v_sub_f32 v9, 1.0, v4")
        a("v_mul_f32 v6, v6, v4")
        a("v_mul_f32 v7, v7, v4")
        a("v_lshlrev_b32 v10, 16, v10")
        a("v_lshlrev_b32 v11, 16, v11")
        a("v_mul_f32 v10, v10, v9")
        a("v_mul_f32 v11, v11, v9")
        a("s_and_b32 s6, s11, 0x1c")
        a("s_add_u32 s6, s6, s3")
        a("s_lshl_b32 s63, s6, 14")
        a("s_lshr_b32 s6, s11, 5")
        a("s_lshl_b32 s6, s6, 11")
        a("s_add_u32 s63, s63, s6")
        a("s_and_b32 s6, s11, 3")
        a("s_lshl_b32 s6, s6, 9")
        a("s_add_u32 s63, s63, s6")
        a(f"s_add_u32 s63, s63, {OG:#x}")
        a(f"v_mov_b32 v1, {C_L:#x}")
        a("v_mov_b32 v4, 1")
    G = 0
    while vn[0] < 16:
        if vn[0] >= 12 and G <= (vn[0] - 12) // 2:
            PV(G); G += 1
            continue
        nextV()
        k = 0
        while vn[0] < 16 and 2 * G + 1 <= vn[0] - 3 and G < 6 and k < 2:
            PV(G); G += 1; k += 1
    if not st2: stamp(4)
    while G < 4:
        PV(G); G += 1
    factors()
    while G < 7:
        PV(G); G += 1
    PV(7, last=True)
    a("s_mov_b64 exec, 0xffff")
    for dd in range(8):
        a(f"ds_write_b128 v3, v[{OA+4*dd}:{OA+4*dd+3}] offset:{dd*256}")
    a("s_mov_b64 exec, 1")
    a("ds_add_u32 v1, v4 offset:20")
    a("s_mov_b64 exec, -1")
    a("v_mov_b32 v49, s5")
    a("v_mov_b32 v51, s5")
    a(f"s_mov_b32 s60, {spin_max*4}")
    a("L_wo:")
    a("ds_read_b32 v44, v1 offset:20")
    a("ds_read2st64_b32 v[52:53], v2 offset0:0 offset1:1")
    a("ds_read2st64_b32 v[54:55], v2 offset0:2 offset1:3")
    a("ds_read2st64_b32 v[56:57], v2 offset0:128 offset1:129")
    a("ds_read2st64_b32 v[58:59], v2 offset0:130 offset1:131")
    a("s_waitcnt lgkmcnt(4)")
    a("v_cmp_gt_u32 vcc, 4, v44")
    a("s_sub_u32 s60, s60, 1")
    a("s_cbranch_scc1 L_wo_go")
    a("s_cbranch_vccnz L_wo")
    a("L_wo_go:")
    a("s_waitcnt lgkmcnt(2)")
    for k in range(4):
        a(f"v_mul_f32 v{52+k}, v{52+k}, v6")
    a("s_waitcnt lgkmcnt(0)")
    for k in range(4):
        a(f"v_fma_f32 v{52+k}, v{56+k}, v7, v{52+k}")
    for k in range(4):
        a(f"v_mov_b32 v{56+k}, v{52+k}")
    for k in range(4):
        a(f"v_permlane32_swap_b32 v{52+k}, v{56+k}")
    for k in range(4):
        a(f"v_add_f32 v{52+k}, v{52+k}, v{56+k}")
    a("v_cvt_pk_bf16_f32 v48, v52, v53")
    a("v_cvt_pk_bf16_f32 v50, v54, v55")
    a("s_mov_b64 exec, 0xffffffff")
    a("buffer_store_dwordx4 v[48:51], v5, s[44:47], s63 offen sc1")
    a("s_mov_b64 exec, -1")
    stamp(5)
    a("s_cmp_lg_u32 s3, 0")
    a("s_cbranch_scc1 L_end")
    srd(48, 38, 8192)
    a("s_lshr_b32 s6, s11, 5")
    a("s_lshl_b32 s60, s11, 12")
    a(f"s_add_u32 s60, s60, {PG:#x}")
    a("s_lshl_b32 s6, s6, 9")
    a("s_add_u32 s6, s6, s69")
    a("s_lshl_b32 s61, s6, 1")
    a("v_lshlrev_b32 v2, 1, v0")
    a(f"s_mov_b32 s62, {spin_max}")
    a("L_fin_poll:")
    for t in range(4):
        a(f"buffer_load_dwordx4 v[{12+4*t}:{15+4*t}], v5, s[44:47], s60 offen offset:{t*1024} sc1")
    a("s_waitcnt vmcnt(2)")
    a("v_xor_b32 v28, s5, v13")
    a("v_xor_b32 v29, s5, v15")
    a("v_xor_b32 v30, s5, v17")
    a("v_xor_b32 v31, s5, v19")
    a("v_add_f32 v12, v12, v16")
    a("v_add_f32 v14, v14, v18")
    a("v_or3_b32 v28, v28, v29, v30")
    a("s_waitcnt vmcnt(0)")
    a("v_xor_b32 v29, s5, v21")
    a("v_xor_b32 v30, s5, v23")
    a("v_xor_b32 v32, s5, v25")
    a("v_xor_b32 v33, s5, v27")
    a("v_add_f32 v20, v20, v24")
    a("v_add_f32 v22, v22, v26")
    a("v_or3_b32 v28, v28, v31, v29")
    a("v_or3_b32 v30, v30, v32, v33")
    a("v_add_f32 v12, v12, v20")
    a("v_add_f32 v14, v14, v22")
    a("v_or_b32 v28, v28, v30")
    a("v_cmp_ne_u32 vcc, 0, v28")
    a("s_sub_u32 s62, s62, 1")
    a("s_cbranch_scc1 L_fin_go")
    a("s_cbranch_vccnz L_fin_poll")
    a("L_fin_go:")
    prs = ((12, 13), (14, 15))
    for r, tmp in prs: a(f"v_add_f32_dpp v{r}, v{r}, v{r} row_ror:8 row_mask:0xf bank_mask:0xf")
    for r, tmp in prs: a(f"v_mov_b32 v{tmp}, v{r}")
    for r, tmp in prs: a(f"v_permlane16_swap_b32 v{r}, v{tmp}")
    for r, tmp in prs: a(f"v_add_f32 v{r}, v{r}, v{tmp}")
    for r, tmp in prs: a(f"v_mov_b32 v{tmp}, v{r}")
    for r, tmp in prs: a(f"v_permlane32_swap_b32 v{r}, v{tmp}")
    a("v_add_f32 v12, v12, v13")
    a("v_add_f32 v14, v14, v15")
    a("v_add_f32 v12, v12, v10")
    a("v_add_f32 v14, v14, v11")
    a("v_cvt_pk_bf16_f32 v12, v12, v14")
    a("s_mov_b64 exec, 0xff")
    a(f"buffer_store_short v12, v2, s[48:51], s61 offen {outpol}")
    a(f"buffer_store_short_d16_hi v12, v2, s[48:51], s61 offen offset:32 {outpol}")
    a("s_cmp_lg_u32 s2, 0")
    a("s_cbranch_scc1 L_fin_done")
    a("s_mov_b64 exec, 1")
    a("v_mov_b32 v3, s5")
    a("v_mov_b32 v4, 0")
    a("buffer_store_dword v3, v4, s[44:47], 0 offen sc1")
    a("L_fin_done:")
    a("s_mov_b64 exec, -1")
    if pad:
        a("L_pad:")
        a("s_memrealtime s[74:75]")
        a("s_waitcnt lgkmcnt(0)")
        a("s_sub_u32 s76, s74, s72")
        a(f"s_cmp_lt_u32 s76, {pad*100}")
        a("s_cbranch_scc1 L_pad")
    stamp(6)
    stamp_store(0)
    a("s_endpgm")

    a("L_helper2:")
    if touch == 2:
        a("s_cmp_lg_u32 s3, 2")
        a("s_cbranch_scc1 L_notouch")
        a("s_lshl_b32 s6, s11, 18")
        a("s_load_dword s88, s[20:21], s6")
        a("s_and_b32 s6, s2, 7")
        a("s_lshl_b32 s6, s6, 19")
        a("s_load_dword s89, s[24:25], s6")
        a("s_load_dword s90, s[32:33], 0")
        a("s_load_dword s91, s[30:31], 0")
        a("s_load_dword s92, s[34:35], 0")
        a(f"s_mov_b32 s6, {OG:#x}")
        a("s_load_dword s94, s[42:43], s6")
        a("s_load_dword s95, s[38:39], 0")
        a("s_waitcnt lgkmcnt(0)")
        a("L_notouch:")
    a("s_cmp_lg_u32 s3, 3")
    a("s_cbranch_scc1 L_nogate")
    srd(48, 36, 1024)
    a("s_lshr_b32 s60, s11, 5")
    a("s_lshl_b32 s62, s60, 10")
    a("buffer_load_dwordx4 v[32:35], v5, s[52:55], s62 offen")
    a("buffer_load_dwordx4 v[36:39], v5, s[48:51], 0 offen")
    a("v_mov_b32 v40, 0")
    a(f"v_mov_b32 v2, {G_L:#x}")
    a("s_waitcnt vmcnt(0)")
    for i in range(4):
        a(f"v_dot2_f32_bf16 v40, v{32+i}, v{36+i}, v40")
    a("v_add_f32_dpp v40, v40, v40 quad_perm:[1,0,3,2] row_mask:0xf bank_mask:0xf")
    a("v_add_f32_dpp v40, v40, v40 quad_perm:[2,3,0,1] row_mask:0xf bank_mask:0xf")
    xlane("v_add_f32", 40, 41)
    a(f"v_mul_f32 v40, {f32(-LOG2E)}, v40")
    a("v_exp_f32 v40, v40")
    a("v_add_f32 v40, 1.0, v40")
    a("v_rcp_f32 v40, v40")
    a("s_mov_b64 exec, 1")
    a("ds_write_b32 v2, v40")
    a("s_waitcnt lgkmcnt(0)")
    a("ds_add_u32 v10, v20 offset:8")
    a("s_and_b32 s6, s11, 31")
    a("s_cmp_lg_u32 s6, 0")
    a("s_cbranch_scc1 L_gate_done")
    a("v_sub_f32 v42, 1.0, v40")
    a("v_mov_b32 v43, s5")
    a("v_mov_b32 v44, 0")
    a("s_lshl_b32 s6, s60, 3")
    a(f"s_add_u32 s6, s6, {GG:#x}")
    a("buffer_store_dwordx2 v[42:43], v44, s[44:47], s6 offen sc1")
    a("L_gate_done:")
    a("s_mov_b64 exec, -1")
    a("L_nogate:")
    a("s_and_b32 s62, s11, 0xfc")
    a("s_add_u32 s62, s62, s3")
    a(f"s_mul_i32 s62, s62, {QSTR}")
    a(f"s_add_u32 s62, s62, {QP:#x}")
    a("s_lshl_b32 s6, s3, 8")
    a(f"s_add_u32 s6, s6, {Q_L:#x}")
    a("v_and_b32 v2, 31, v0")
    a("v_lshl_add_u32 v2, v2, 3, s6")
    cnt_wait(16, "L_qt", 10, 21, 65, sleep=4, target=1)
    a(f"s_mov_b32 s65, {spin_max}")
    if no_qp: a("s_branch L_qp_go")
    a("L_qp:")
    a("buffer_load_dwordx4 v[32:35], v5, s[44:47], s62 offen sc1")
    a("buffer_load_dwordx4 v[36:39], v5, s[44:47], s62 offen offset:1024 sc1")
    a("s_waitcnt vmcnt(0)")
    for k in range(4):
        a(f"v_xor_b32 v{33+2*k}, s5, v{33+2*k}")
    a("v_or3_b32 v33, v33, v35, v37")
    a("v_or_b32 v33, v33, v39")
    a("v_cmp_ne_u32 vcc, 0, v33")
    a("s_cbranch_vccz L_qp_go")
    if qsleep: a(f"s_sleep {qsleep}")
    a("s_sub_u32 s65, s65, 1")
    a("s_cbranch_scc0 L_qp")
    a("L_qp_go:")
    def unpack_sum(nk):
        for k in range(nk):
            for h in range(2):
                src = 32 + 4 * k + 2 * h
                if k == 0:
                    a(f"v_lshlrev_b32 v{12+2*h}, 16, v{src}")
                    a(f"v_and_b32 v{13+2*h}, 0xffff0000, v{src}")
                else:
                    a(f"v_lshlrev_b32 v{src+1}, 16, v{src}")
                    a(f"v_and_b32 v{src}, 0xffff0000, v{src}")
                    a(f"v_add_f32 v{12+2*h}, v{12+2*h}, v{src+1}")
                    a(f"v_add_f32 v{13+2*h}, v{13+2*h}, v{src}")
        for e in range(4): a(f"v_mov_b32 v{16+e}, v{12+e}")
        for e in range(4): a(f"v_permlane32_swap_b32 v{12+e}, v{16+e}")
        for e in range(4): a(f"v_add_f32 v{12+e}, v{12+e}, v{16+e}")
    unpack_sum(2)
    a("v_cvt_pk_bf16_f32 v12, v12, v13")
    a("v_cvt_pk_bf16_f32 v13, v14, v15")
    a("ds_write_b64 v2, v[12:13]")
    a("s_waitcnt lgkmcnt(0)")
    cnt_add(4, 10, 20)
    a(f"s_setprio {hprio}")
    stamp(2)
    a("s_lshr_b32 s60, s2, 5")
    a("s_and_b32 s61, s2, 7")
    a("s_lshl_b32 s61, s61, 2")
    a("s_bfe_u32 s6, s2, 0x20003")
    a("s_add_u32 s61, s61, s6")
    srd(48, 24, 0x400000)
    srd(56, 32, 1792 * 1024)
    srd(52, 30, 3584)
    a("s_lshl_b32 s64, s60, 7")
    a("s_lshl_b32 s62, s61, 17")
    a("s_add_u32 s62, s62, s64")
    a("s_lshl_b32 s6, s3, 15")
    a("s_add_u32 s62, s62, s6")
    a("s_lshl_b32 s66, s61, 16")
    a("s_add_u32 s66, s66, s64")
    a("s_lshl_b32 s6, s3, 14")
    a("s_add_u32 s66, s66, s6")
    a(f"s_mov_b32 s90, {WO_L:#x}")
    a("v_lshrrev_b32 v24, 3, v0")
    a("v_and_b32 v12, 2, v24")
    a("v_xor_b32 v12, v12, v8")
    a("v_lshlrev_b32 v24, 10, v24")
    a("v_lshl_add_u32 v24, v12, 4, v24")
    a("v_xor_b32 v25, 64, v24")
    a(f"v_add_u32 v26, {2*(8192-1024)}, v24")
    a(f"v_add_u32 v27, {3*(8192-1024)}, v25")
    a(f"v_add_u32 v25, {8192-1024}, v25")
    a("v_bfe_u32 v12, v0, 3, 2")
    a("v_lshlrev_b32 v12, 5, v12")
    a(f"v_add3_u32 v120, v11, v12, s90")
    a("v_xor_b32 v121, 32, v120")
    a("v_xor_b32 v122, 64, v120")
    a("v_xor_b32 v123, 96, v120")
    a("v_bfe_u32 v12, v7, 2, 1")
    a("v_mul_u32_u24 v4, 144, v12")
    a("v_lshl_add_u32 v4, v6, 4, v4")
    a("s_mul_i32 s6, s3, 288")
    a(f"s_add_u32 s6, s6, {HA_L:#x}")
    a("v_add_u32 v4, s6, v4")
    a("v_bfe_u32 v12, v0, 3, 2")
    a("v_lshlrev_b32 v53, 3, v12")
    a("v_mul_u32_u24 v1, 144, v8")
    a("s_lshl_b32 s6, s3, 5")
    a(f"s_add_u32 s6, s6, {HA_L:#x}")
    a("v_add3_u32 v1, v1, v53, s6")
    a("v_lshlrev_b32 v52, 3, v8")
    a("v_and_b32 v12, 1, v6")
    a("v_lshlrev_b32 v11, 10, v12")
    a("s_lshl_b32 s69, s3, 11")
    a("s_lshl_b32 s6, s61, 5")
    a("s_add_u32 s69, s69, s6")
    a(f"s_add_u32 s69, s69, {LG:#x}")
    a("s_lshl_b32 s70, s61, 14")
    a("s_lshl_b32 s6, s3, 12")
    a("s_add_u32 s70, s70, s6")
    a(f"s_mul_i32 s63, s61, {HSTR}")
    a("s_add_u32 s63, s63, s6")
    a(f"s_add_u32 s63, s63, {HP:#x}")
    a(f"s_add_u32 s70, s70, {OG:#x}")
    a("s_lshl_b32 s6, s3, 15")
    a(f"s_add_u32 s6, s6, {AS_OFF:#x}")
    a("v_lshrrev_b32 v13, 5, v0")
    a("v_and_b32 v14, 31, v0")
    a("v_mul_u32_u24 v13, 272, v13")
    a("v_lshl_add_u32 v13, v14, 3, v13")
    a("v_add_u32 v2, s6, v13")
    a("v_mul_u32_u24 v13, 272, v8")
    a("v_lshl_add_u32 v13, v6, 4, v13")
    a("v_add_u32 v58, s6, v13")
    a("v_lshlrev_b32 v59, 17, v12")
    a("v_lshrrev_b32 v12, 3, v7")
    a("v_lshl_add_u32 v59, v12, 12, v59")
    a("v_lshl_add_u32 v59, v8, 4, v59")
    a("s_lshl_b32 s71, s3, 18")
    a("s_lshl_b32 s6, s60, 14")
    a("s_add_u32 s71, s71, s6")
    a("s_lshl_b32 s6, s61, 7")
    a("s_add_u32 s71, s71, s6")
    a(f"s_add_u32 s71, s71, {PG:#x}")
    a("s_add_u32 s8, s71, 8192")
    if no_h: a("s_branch L_nohact")
    a("s_cmp_ge_u32 s61, 28")
    a("s_cbranch_scc1 L_nohact")
    a("s_lshl_b32 s6, s61, 7")
    a("s_lshl_b32 s7, s3, 5")
    a("s_add_u32 s6, s6, s7")
    a("buffer_load_dwordx2 v[54:55], v53, s[52:55], s6 offen")
    a(f"s_mov_b32 s64, {GG:#x}")
    a(f"s_mov_b32 s65, {spin_max}")
    a("L_hp:")
    for k in range(4):
        a(f"buffer_load_dwordx4 v[{32+4*k}:{35+4*k}], v5, s[44:47], s63 offen offset:{k*1024} sc1")
    a("buffer_load_dwordx2 v[56:57], v52, s[44:47], s64 offen sc1")
    a("s_waitcnt vmcnt(0)")
    for k in range(8):
        a(f"v_xor_b32 v{33+2*k}, s5, v{33+2*k}")
    a("v_xor_b32 v48, s5, v57")
    a("v_or3_b32 v33, v33, v35, v37")
    a("v_or3_b32 v39, v39, v41, v43")
    a("v_or3_b32 v45, v45, v47, v48")
    a("v_or3_b32 v33, v33, v39, v45")
    a("v_cmp_ne_u32 vcc, 0, v33")
    a("s_cbranch_vccz L_hp_go")
    a("s_sleep 16")
    a("s_sub_u32 s65, s65, 1")
    a("s_cbranch_scc0 L_hp")
    a("L_hp_go:")
    unpack_sum(4)
    a("v_lshlrev_b32 v16, 16, v54")
    a("v_and_b32 v17, 0xffff0000, v54")
    a("v_lshlrev_b32 v18, 16, v55")
    a("v_and_b32 v19, 0xffff0000, v55")
    for e in range(4): a(f"v_add_f32 v{12+e}, v{12+e}, v{16+e}")
    for e in range(4): a(f"v_max_f32 v{12+e}, 0, v{12+e}")
    for e in range(4): a(f"v_mul_f32 v{16+e}, v{12+e}, v56")
    for e in range(4): a(f"v_mul_f32 v{12+e}, v{12+e}, v{16+e}")
    a("v_cvt_pk_bf16_f32 v12, v12, v13")
    a("v_cvt_pk_bf16_f32 v13, v14, v15")
    a("ds_write_b64 v1, v[12:13]")
    a("L_nohact:")
    a("s_cmp_lg_u32 s3, 0")
    a("s_cbranch_scc1 L_nolse")
    cnt_wait(8, "L_hml", 10, 21, 65, sleep=8, target=5)
    a("v_lshlrev_b32 v12, 4, v9")
    a(f"v_add_u32 v12, {M_L:#x}, v12")
    a("ds_read_b128 v[16:19], v12")
    a(f"ds_read_b128 v[32:35], v12 offset:{L_L-M_L}")
    a("s_and_b32 s6, s11, 0xfc")
    a("s_lshl_b32 s6, s6, 5")
    a("s_and_b32 s7, s11, 3")
    a("s_lshl_b32 s7, s7, 3")
    a("s_add_u32 s6, s6, s7")
    a(f"s_add_u32 s6, s6, {LG:#x}")
    a("v_lshlrev_b32 v13, 5, v9")
    a("s_waitcnt lgkmcnt(0)")
    a("v_max3_f32 v14, v16, v17, v18")
    a("v_max_f32 v14, v14, v19")
    for w in range(4): a(f"v_sub_f32 v{16+w}, v{16+w}, v14")
    for w in range(4): a(f"v_exp_f32 v{16+w}, v{16+w}")
    a("v_mul_f32 v36, v16, v32")
    for w in range(1, 4): a(f"v_fma_f32 v36, v{16+w}, v{32+w}, v36")
    a("v_log_f32 v36, v36")
    a("v_mov_b32 v15, s5")
    a("v_add_f32 v14, v14, v36")
    a("s_mov_b64 exec, 15")
    a("buffer_store_dwordx2 v[14:15], v13, s[44:47], s6 offen sc1")
    a("s_mov_b64 exec, -1")
    a("s_sub_u32 s6, s6, s7")
    a(f"s_mov_b32 s65, {spin_max}")
    a("L_lp:")
    a("s_sleep 8")
    a("buffer_load_dwordx4 v[28:31], v13, s[44:47], s6 offen sc1")
    a("buffer_load_dwordx4 v[32:35], v13, s[44:47], s6 offen offset:16 sc1")
    a("s_waitcnt vmcnt(0)")
    for k in range(4):
        a(f"v_xor_b32 v{29+2*k}, s5, v{29+2*k}")
    a("v_or3_b32 v29, v29, v31, v33")
    a("v_or_b32 v29, v29, v35")
    a("v_cmp_ne_u32 vcc, 0, v29")
    a("s_sub_u32 s65, s65, 1")
    a("s_cbranch_scc1 L_lp_go")
    a("s_cbranch_vccnz L_lp")
    a("L_lp_go:")
    a("v_max3_f32 v44, v28, v30, v32")
    a("v_max_f32 v44, v44, v34")
    for k in range(4):
        a(f"v_sub_f32 v{48+k}, v{28+2*k}, v44")
    for k in range(4):
        a(f"v_exp_f32 v{48+k}, v{48+k}")
    a("v_add_f32 v48, v48, v49")
    a("v_add_f32 v50, v50, v51")
    a("v_add_f32 v48, v48, v50")
    a("v_log_f32 v48, v48")
    a("v_lshlrev_b32 v12, 2, v9")
    a(f"v_add_u32 v12, {G_L+16:#x}, v12")
    a("v_add_f32 v48, v48, v44")
    a("s_mov_b64 exec, 15")
    a("ds_write_b32 v12, v48")
    a("s_mov_b64 exec, 1")
    a("ds_add_u32 v10, v20 offset:8")
    a("s_mov_b64 exec, -1")
    a("L_nolse:")
    cnt_wait(12, "L_trig", 10, 21, 65, sleep=2, target=ttarget)
    if no_wo: a("s_branch L_now2")
    a("s_mov_b32 m0, s67")
    a("s_nop 0")
    for i in range(4):
        a(f"buffer_load_dwordx4 v{24+i}, s[48:51], s62 offen offset:{i*1024} {wpol} lds")
    a("s_cmp_ge_u32 s61, 28")
    a("s_cbranch_scc1 L_now2")
    a("s_mov_b32 m0, s68")
    a("s_nop 0")
    for i in range(2):
        a(f"buffer_load_dwordx4 v{24+i}, s[56:59], s66 offen offset:{i*1024} {wpol} lds")
    a("L_now2:")
    for k in range(4):
        a(f"v_mov_b32 v{65+2*k}, s5")
    a("v_add_u32 v9, 1088, v2")
    a("v_mov_b32 v36, 1")
    stamp(3)
    WOF, W2F, AF, ACC = 128, 192, 72, 96
    for k in range(4):
        a(f"v_mov_b32 v{60+k}, 0")
    a("s_waitcnt vmcnt(0)")
    cnt_add(0, 10, 36)
    def p2_loads():
        for k in range(4):
            a(f"buffer_load_dwordx4 v[{12+4*k}:{15+4*k}], v5, s[44:47], s70 offen offset:{k*1024} sc1")
    cnt_wait(0, "L_s2", 10, 37, 65, sleep=1, target=8)
    stamp(6)
    for j in range(4):
        for aa in range(4):
            for eh in range(2):
                r = WOF + 16 * j + 4 * aa + 2 * eh
                a(f"ds_read_b64_tr_b16 v[{r}:{r+1}], v{120+aa} offset:{j*4096 + eh*512}")
        a("s_waitcnt lgkmcnt(4)")
    p2_loads()
    a("s_cmp_ge_u32 s61, 28")
    a("s_cbranch_scc1 L_nomlp")
    for j in range(2):
        for aa in range(4):
            for eh in range(2):
                r = W2F + 16 * j + 4 * aa + 2 * eh
                a(f"ds_read_b64_tr_b16 v[{r}:{r+1}], v{120+aa} offset:{W2_L-WO_L + j*4096 + eh*512}")
        a("s_waitcnt lgkmcnt(4)")
    a("ds_read_b128 v[88:91], v4")
    a("ds_read_b128 v[92:95], v4 offset:64")
    a("s_waitcnt lgkmcnt(0)")
    for j in range(2):
        for aa in range(4):
            c = "0" if j == 0 else f"v[{ACC+4*aa}:{ACC+4*aa+3}]"
            a(f"v_mfma_f32_16x16x32_bf16 v[{ACC+4*aa}:{ACC+4*aa+3}], v[{88+4*j}:{91+4*j}], v[{W2F+16*j+4*aa}:{W2F+16*j+4*aa+3}], {c}")
    for aa in range(4):
        a(f"v_mov_b32 v{60+aa}, v{ACC+4*aa}")
    a("L_nomlp:")
    a(f"s_mov_b32 s64, {spin_max}")
    stamp(4)
    a("s_branch L_p2_body")
    a("L_p2_poll:")
    p2_loads()
    a("L_p2_body:")
    for k in range(4):
        a(f"s_waitcnt vmcnt({3-k})")
        va = "v2" if k < 2 else "v9"
        o = (k & 1) * 136
        a(f"ds_write2_b32 {va}, v{12+4*k}, v{14+4*k} offset0:{o} offset1:{o+1}")
        a(f"v_xor_b32 v{28+2*k}, s5, v{13+4*k}")
        a(f"v_xor_b32 v{29+2*k}, s5, v{15+4*k}")
    a("v_or3_b32 v28, v28, v29, v30")
    a("v_or3_b32 v31, v31, v32, v33")
    a("v_or3_b32 v28, v28, v34, v35")
    a("v_or_b32 v28, v28, v31")
    a("v_cmp_ne_u32 vcc, 0, v28")
    a("s_sub_u32 s64, s64, 1")
    a("s_waitcnt lgkmcnt(0)")
    a("s_cbranch_scc1 L_p2_go")
    a("s_cbranch_vccnz L_p2_poll")
    a("L_p2_go:")
    for j in range(4):
        a(f"ds_read_b128 v[{AF+4*j}:{AF+4*j+3}], v58 offset:{j*64}")
    for j in range(4):
        a(f"s_waitcnt lgkmcnt({3-j})")
        for aa in range(4):
            c = "0" if j == 0 else f"v[{ACC+4*aa}:{ACC+4*aa+3}]"
            a(f"v_mfma_f32_16x16x32_bf16 v[{ACC+4*aa}:{ACC+4*aa+3}], v[{AF+4*j}:{AF+4*j+3}], v[{WOF+16*j+4*aa}:{WOF+16*j+4*aa+3}], {c}")
    a("s_mov_b64 exec, 0xffffffff")
    for aa in range(4):
        a(f"v_add_f32 v{60+aa}, v{60+aa}, v{ACC+4*aa}")
        a(f"v_add_f32 v{48+aa}, v{ACC+4*aa+1}, v{ACC+4*aa+2}")
        a(f"v_add_f32 v{60+aa}, v{60+aa}, v{ACC+4*aa+3}")
        a(f"v_add_f32 v{64+2*aa}, v{60+aa}, v{48+aa}")
        if aa == 1: a("buffer_store_dwordx4 v[64:67], v59, s[44:47], s71 offen sc1")
    a("buffer_store_dwordx4 v[68:71], v59, s[44:47], s8 offen sc1")
    a("s_mov_b64 exec, -1")
    stamp(5)
    if stamps:
        a("s_add_u32 s3, s3, 1")
        stamp_store("s3")
    a("L_end:")
    a("s_endpgm")
    a.raw('.section .rodata,"a"')
    a.raw(".p2align 6")
    a.raw(f".amdhsa_kernel {NAME}_kernel")
    a.raw("  .amdhsa_next_free_vgpr 256")
    a.raw("  .amdhsa_next_free_sgpr 96")
    a.raw("  .amdhsa_accum_offset 256")
    a.raw("  .amdhsa_group_segment_fixed_size 0")
    a.raw("  .amdhsa_kernarg_size 112")
    a.raw("  .amdhsa_user_sgpr_count 2")
    a.raw("  .amdhsa_user_sgpr_kernarg_segment_ptr 1")
    a.raw("  .amdhsa_system_sgpr_workgroup_id_x 1")
    a.raw(".end_amdhsa_kernel")
    return a.text()

if __name__ == "__main__":
    out = sys.argv[1]
    kw = json.loads(sys.argv[2]) if len(sys.argv) > 2 else {}
    open(out, "w").write(gen(**kw))
```

```python
import sys, json, math, struct
from asmdsl import Asm
NAME = "gated_mix__gqa_block_cached__dense_activation_squared_relu__decode"

GG, LG = 0x3000, 0x10000
QP, HP, OG, PG = 0x100000, 0x80000, 0x200000, 0x300000
STAMP = 0x8000000
def f32(x): return "0x%08x" % struct.unpack("<I", struct.pack("<f", x))[0]
CSC = math.log2(math.e) / math.sqrt(128.0)
LOG2E = math.log2(math.e)
HEADER = open("cdna_kernels/" + NAME + ".s.ref").read().split("; Override launch geometry")[0]

def gen(stamps=False, kvpol="nt", wpol="nt", spin_max=400000, D1=6, D2=6, qsleep=4, qtrig=6,
        trig=15, npre=4, rot=False, ttarget=4, early=True, st2=False, spread=False, pad=0, padwg=-1, amap=2, hprio=0, sprio=2, w2early=False, outpol="", touch=0, no_h=False, no_wo=False, no_qp=False, no_st=False, no_gate=False):
    a = Asm()
    NST = 8
    QSTR, HSTR = (67584, 540672) if spread else (2048, 16384)
    QP, HP = (0x1000000, 0x3000000) if spread else (0x100000, 0x80000)
    WQ_L, W1_L = 0x20000, 0x24000
    WO_L, W2_L = WQ_L, W1_L
    Q_L, M_L, L_L, G_L, C_L, HA_L = 0x26000, 0x26400, 0x26440, 0x26480, 0x264c0, 0x26500
    LDS_TOTAL = HA_L + 8 * 144
    AS_OFF = 0x1000
    a.raw(HEADER.rstrip())
    a.raw(f"; @launch grid=(256,1,1) block=(512,1,1) lds={LDS_TOTAL}")
    a.raw('.amdgcn_target "amdgcn-amd-amdhsa--gfx950"')
    a.raw(".text")
    a.raw(f".globl {NAME}_kernel")
    a.raw(".p2align 8")
    a.raw(f".type {NAME}_kernel,@function")
    a.label(f"{NAME}_kernel")

    def srd(d, base, size):
        a(f"s_mov_b32 s{d}, s{base}")
        a(f"s_mov_b32 s{d+1}, s{base+1}")
        a(f"s_mov_b32 s{d+2}, {size:#x}")
        a(f"s_mov_b32 s{d+3}, 0x00020000")
    def stamp(i):
        if stamps:
            a(f"s_memrealtime s[{72+2*i}:{73+2*i}]")
            a("s_waitcnt lgkmcnt(0)")
    def stamp_store(slot):
        if not stamps: return
        a(f"s_lshl_b32 s6, s2, 3")
        a(f"s_add_u32 s6, s6, {slot}")
        a(f"s_mul_i32 s6, s6, {NST*8}")
        a(f"s_add_u32 s6, s6, {STAMP:#x}")
        a("s_mov_b64 exec, 1")
        a("v_mov_b32 v1, 0")
        for i in range(0, NST, 2):
            for k in range(4):
                a(f"v_mov_b32 v{4+k}, s{72+2*i+k}")
            a(f"buffer_store_dwordx4 v[4:7], v1, s[44:47], s6 offen offset:{i*8}")
            a("s_nop 1")
        a("s_mov_b64 exec, -1")
    def tagcalc():
        a("s_waitcnt lgkmcnt(0)")
        a("s_mul_i32 s5, s4, 1664525")
        a("s_add_u32 s5, s5, 1013904223")
    def xlane(op, r, tmp):
        a(f"{op}_dpp v{r}, v{r}, v{r} row_ror:4 row_mask:0xf bank_mask:0xf")
        a(f"{op}_dpp v{r}, v{r}, v{r} row_ror:8 row_mask:0xf bank_mask:0xf")
        a(f"v_mov_b32 v{tmp}, v{r}")
        a(f"v_permlane16_swap_b32 v{r}, v{tmp}")
        a(f"{op} v{r}, v{r}, v{tmp}")
        a(f"v_mov_b32 v{tmp}, v{r}")
        a(f"v_permlane32_swap_b32 v{r}, v{tmp}")
        a(f"{op} v{r}, v{r}, v{tmp}")
    def cnt_add(off, vaddr, vone):
        a("s_mov_b64 exec, 1")
        a(f"ds_add_u32 v{vaddr}, v{vone} offset:{off}")
        a("s_mov_b64 exec, -1")
    def cnt_wait(off, lbl, vaddr, vtmp, sreg, sleep=0, target=4):
        a(f"s_mov_b32 s{sreg}, {spin_max*4}")
        a(f"{lbl}:")
        a(f"ds_read_b32 v{vtmp}, v{vaddr} offset:{off}")
        a("s_waitcnt lgkmcnt(0)")
        a(f"v_cmp_gt_u32 vcc, {target}, v{vtmp}")
        a(f"s_cbranch_vccz {lbl}_go")
        if sleep: a(f"s_sleep {sleep}")
        a(f"s_sub_u32 s{sreg}, s{sreg}, 1")
        a(f"s_cbranch_scc0 {lbl}")
        a(f"{lbl}_go:")
    def unit_id():
        if amap == 1:
            a("s_and_b32 s11, s2, 0xe0")
            a("s_and_b32 s6, s2, 7")
            a("s_lshl_b32 s6, s6, 2")
            a("s_add_u32 s11, s11, s6")
            a("s_bfe_u32 s6, s2, 0x20003")
            a("s_add_u32 s11, s11, s6")
        elif amap == 2:
            a("s_and_b32 s11, s2, 7")
            a("s_lshl_b32 s11, s11, 5")
            a("s_lshr_b32 s6, s2, 3")
            a("s_add_u32 s11, s11, s6")
        else:
            a("s_mov_b32 s11, s2")

    a("s_cmp_ge_u32 s2, 256")
    a("s_cbranch_scc1 L_end")
    if stamps:
        for i in range(NST):
            a(f"s_mov_b64 s[{72+2*i}:{73+2*i}], 0")
        a("s_memrealtime s[72:73]")
    if pad: a("s_memrealtime s[72:73]")
    a("s_load_dwordx16 s[16:31], s[0:1], 0")
    a("s_load_dwordx8 s[32:39], s[0:1], 64")
    a("s_load_dwordx4 s[40:43], s[0:1], 96")
    a("v_lshrrev_b32 v1, 6, v0")
    a("v_and_b32 v0, 63, v0")
    a("v_readfirstlane_b32 s3, v1")
    a("v_lshrrev_b32 v6, 4, v0")
    a("v_and_b32 v7, 15, v0")
    a("v_lshlrev_b32 v5, 4, v0")
    unit_id()
    a("s_cmp_lt_u32 s3, 4")
    a("s_cbranch_scc1 L_stream")

    a("s_setprio 3")
    a(f"v_mov_b32 v10, {C_L:#x}")
    for k in range(4): a(f"v_mov_b32 v{12+k}, 0")
    a("ds_write_b128 v10, v[12:15]")
    a("ds_write_b64 v10, v[12:13] offset:16")
    a("s_sub_u32 s3, s3, 4")
    a("v_lshrrev_b32 v16, 3, v0")
    a("v_and_b32 v8, 7, v0")
    a("v_lshlrev_b32 v1, 13, v16")
    a("v_lshl_add_u32 v1, v8, 4, v1")
    for i in range(1, 4):
        a(f"v_add_u32 v{1+i}, {i*(65536-1024)}, v1")
    a("v_mul_u32_u24 v16, 3584, v16")
    a("v_lshl_add_u32 v16, v8, 4, v16")
    a(f"v_add_u32 v17, {8*3584-1024}, v16")
    a("v_lshlrev_b32 v18, 10, v8")
    a("v_lshl_add_u32 v19, v6, 3, v18")
    a("v_lshl_add_u32 v18, v6, 4, v18")
    a("s_bfe_u32 s61, s2, 0x20003")
    a("s_and_b32 s60, s2, 7")
    a("s_lshl_b32 s60, s60, 3")
    a("s_lshr_b32 s6, s2, 5")
    a("s_add_u32 s60, s60, s6")
    a("s_lshl_b32 s62, s61, 20")
    a("s_lshl_b32 s6, s60, 7")
    a("s_add_u32 s62, s62, s6")
    a("s_lshl_b32 s6, s3, 18")
    a("s_add_u32 s62, s62, s6")
    a("s_lshl_b32 s6, s3, 12")
    a(f"s_add_u32 s67, s6, {WQ_L:#x}")
    a("s_lshl_b32 s6, s3, 11")
    a(f"s_add_u32 s68, s6, {W1_L:#x}")
    a("s_lshl_b32 s63, s61, 8")
    a("s_lshl_b32 s6, s3, 6")
    a("s_add_u32 s63, s63, s6")
    a("s_lshr_b32 s66, s60, 1")
    a("s_and_b32 s69, s60, 1")
    a("s_lshl_b32 s70, s61, 1")
    a("s_add_u32 s70, s70, s69")
    a("s_lshl_b32 s6, s70, 2")
    a("s_add_u32 s6, s6, s3")
    a(f"s_mul_i32 s65, s6, {16*3584}")
    a("s_lshl_b32 s64, s6, 5")
    a("s_lshl_b32 s6, s66, 7")
    a("s_add_u32 s65, s65, s6")
    a("s_mov_b32 m0, s67")
    a("s_waitcnt lgkmcnt(0)")
    srd(48, 22, 0x400000)
    srd(52, 16, 8192)
    XF, BF, AC = 64, 128, 80
    for i in range(4):
        a(f"buffer_load_dwordx4 v{1+i}, s[48:51], s62 offen offset:{i*1024} {wpol} lds")
    a(f"buffer_load_dwordx4 v[{XF}:{XF+3}], v18, s[52:55], s63 offen")
    a("s_mov_b32 m0, s68")
    srd(56, 28, 512 * 3584)
    a("s_cmp_ge_u32 s66, 28")
    a("s_cbranch_scc1 L_now1a")
    a(f"buffer_load_dwordx4 v16, s[56:59], s65 offen {wpol} lds")
    a(f"buffer_load_dwordx4 v17, s[56:59], s65 offen offset:1024 {wpol} lds")
    a(f"buffer_load_dwordx2 v[{XF+4}:{XF+5}], v19, s[52:55], s64 offen")
    a("L_now1a:")
    a("s_load_dword s4, s[42:43], 0")
    a("s_barrier")
    srd(44, 42, 0x10000000)
    a("v_lshrrev_b32 v16, 2, v7")
    a("v_and_b32 v9, 3, v0")
    a("v_lshl_add_u32 v17, v6, 3, v16")
    a("v_lshlrev_b32 v11, 7, v17")
    a("v_lshl_add_u32 v11, v9, 3, v11")
    a("v_add_u32 v3, s67, v11")
    a("v_lshl_add_u32 v17, v6, 2, v16")
    a("v_lshlrev_b32 v2, 7, v17")
    a("v_lshl_add_u32 v2, v9, 3, v2")
    a("v_add_u32 v2, s68, v2")
    a("v_mov_b32 v20, 1")
    a("v_xor_b32 v1, v6, v8")
    a("v_lshlrev_b32 v1, 4, v1")
    a("v_lshl_add_u32 v1, v8, 8, v1")
    a("v_add_u32 v1, s67, v1")
    a("v_xor_b32 v19, 64, v1")
    a("v_and_b32 v16, 1, v6")
    a("s_lshl_b32 s6, s3, 1")
    a("v_add_u32 v16, s6, v16")
    a("v_xor_b32 v17, v16, v7")
    a("v_lshlrev_b32 v17, 4, v17")
    a("v_lshl_add_u32 v16, v16, 8, v17")
    a("v_bfe_u32 v17, v0, 3, 2")
    a("s_lshl_b32 s6, s3, 2")
    a("v_add_u32 v17, s6, v17")
    a("v_xor_b32 v17, v17, v8")
    a("v_lshlrev_b32 v17, 4, v17")
    a("v_lshl_add_u32 v18, v8, 8, v17")
    a("v_add_u32 v18, 2048, v18")
    a("s_mov_b32 s6, 0")
    a("s_mov_b32 s7, -1")
    a("v_cndmask_b32 v16, v16, v18, s[6:7]")
    a(f"v_add_u32 v16, {WQ_L:#x}, v16")
    a("v_and_b32 v17, 1, v6")
    a(f"v_mul_u32_u24 v17, {32*QSTR}, v17")
    a("v_lshl_add_u32 v17, v7, 4, v17")
    a("s_lshl_b32 s63, s3, 6")
    a("s_lshr_b32 s8, s60, 1")
    a("s_add_u32 s63, s63, s8")
    a(f"s_mul_i32 s63, s63, {QSTR}")
    a("s_lshl_b32 s8, s61, 9")
    a("s_add_u32 s63, s63, s8")
    a("s_lshl_b32 s8, s69, 8")
    a("s_add_u32 s63, s63, s8")
    a(f"s_add_u32 s63, s63, {QP:#x}")
    a("v_add_u32 v17, s63, v17")
    a(f"s_mul_i32 s64, s66, {HSTR}")
    a("s_lshl_b32 s8, s70, 9")
    a("s_add_u32 s64, s64, s8")
    a("s_lshl_b32 s8, s3, 12")
    a("s_add_u32 s64, s64, s8")
    a(f"s_add_u32 s64, s64, {HP-512:#x}")
    a("v_add_u32 v18, s64, v5")
    a("v_cndmask_b32 v4, v17, v18, s[6:7]")
    a("s_cmp_lt_u32 s66, 28")
    a("s_cselect_b32 s9, -1, 0")
    tagcalc()
    a("v_mov_b32 v25, s5")
    a("v_mov_b32 v27, s5")
    a("s_waitcnt vmcnt(0)")
    for aa in range(4):
        for eh in range(2):
            r = BF + 4 * aa + 2 * eh
            a(f"ds_read_b64_tr_b16 v[{r}:{r+1}], v3 offset:{eh*512 + aa*32}")
    for aa in range(4):
        r = BF + 16 + 2 * aa
        a(f"ds_read_b64_tr_b16 v[{r}:{r+1}], v2 offset:{aa*32}")
    for aa in range(4):
        a(f"s_waitcnt lgkmcnt({10-2*aa})")
        a(f"v_mfma_f32_16x16x32_bf16 v[{AC+4*aa}:{AC+4*aa+3}], v[{BF+4*aa}:{BF+4*aa+3}], v[{XF}:{XF+3}], 0")
    for aa in range(4):
        a(f"s_waitcnt lgkmcnt({3-aa})")
        a(f"v_mfma_f32_16x16x16_bf16 v[{AC+16+4*aa}:{AC+16+4*aa+3}], v[{BF+16+2*aa}:{BF+16+2*aa+1}], v[{XF+4}:{XF+5}], 0")
    a("s_mov_b32 exec_lo, 0x00ff00ff")
    a("s_mov_b32 exec_hi, 0x00ff00ff")
    for part in range(2):
        for aa in range(4):
            r = AC + 16 * part + 4 * aa
            a(f"ds_write_b128 v{1 if aa % 2 == 0 else 19}, v[{r}:{r+3}] offset:{part*2048 + (aa>>1)*128}")
    a("s_mov_b64 exec, 1")
    a("s_waitcnt lgkmcnt(0)")
    a("ds_add_u32 v10, v20")
    a("s_mov_b64 exec, -1")
    cnt_wait(0, "L_s1", 10, 21, 65)
    for j in range(4):
        a(f"ds_read_b128 v[{32+4*j}:{35+4*j}], v16 offset:{j*4096}")
    a("s_waitcnt lgkmcnt(2)")
    for e in range(4): a(f"v_add_f32 v{32+e}, v{32+e}, v{36+e}")
    a("s_waitcnt lgkmcnt(0)")
    for e in range(4): a(f"v_add_f32 v{40+e}, v{40+e}, v{44+e}")
    for e in range(4): a(f"v_add_f32 v{32+e}, v{32+e}, v{40+e}")
    a("v_cvt_pk_bf16_f32 v24, v32, v33")
    a("v_cvt_pk_bf16_f32 v26, v34, v35")
    a("s_mov_b32 exec_hi, s9")
    if not no_st: a("buffer_store_dwordx4 v[24:27], v4, s[44:47], 0 offen sc1")
    a("s_mov_b64 exec, -1")
    stamp(1)
    a("s_branch L_helper2")

    a("L_stream:")
    a("v_lshlrev_b32 v1, 2, v6")
    a("v_xor_b32 v1, v1, v7")
    a("v_xor_b32 v2, 1, v1")
    a("v_xor_b32 v3, 2, v1")
    a("v_xor_b32 v4, 3, v1")
    a("v_lshlrev_b32 v8, 8, v6")
    for i in range(4):
        a(f"v_lshl_add_u32 v{1+i}, v{1+i}, 4, v8")
    a("s_lshl_b32 s7, s11, 18")
    for r in range(4):
        a(f"s_add_u32 s6, s3, {r if rot else 0}")
        a("s_and_b32 s6, s6, 3")
        a("s_lshl_b32 s6, s6, 12")
        a(f"s_add_u32 s{12+r}, s7, s6")
    a("s_mov_b32 s60, s12")
    a("s_mov_b32 s61, s12")
    a("s_lshl_b32 s62, s3, 15")
    a("s_waitcnt lgkmcnt(0)")
    if st2: stamp(3)
    srd(48, 18, 0x4000000)
    srd(52, 20, 0x4000000)
    a("s_load_dword s4, s[42:43], 0")
    if touch == 1:
        a("s_load_dword s88, s[20:21], s60")
        a("s_and_b32 s6, s2, 7")
        a("s_lshl_b32 s6, s6, 19")
        a("s_load_dword s89, s[24:25], s6")
        a("s_load_dword s90, s[32:33], 0")
        a("s_load_dword s91, s[30:31], 0")
        a("s_load_dword s92, s[34:35], 0")
        a("s_load_dword s93, s[36:37], 0")
        a(f"s_mov_b32 s6, {OG:#x}")
        a("s_load_dword s94, s[42:43], s6")
        a("s_load_dword s95, s[38:39], 0")
    if not early: a("s_barrier")
    if st2: stamp(4)

    nissued = [0]
    pos = {}
    covered = [0]
    Dcur = [D1]
    def throttle():
        D = Dcur[0]
        if D >= 63: return
        if nissued[0] - covered[0] > D - 1:
            a(f"s_waitcnt vmcnt({D-1})")
            covered[0] = nissued[0] - (D - 1)
    def issueK(tt):
        a(f"s_add_u32 m0, s62, {(tt & 7) * 4096}")
        for i in range(4):
            throttle()
            a(f"buffer_load_dwordx4 v{1+i}, s[48:51], s60 offen offset:{i*1024} {kvpol} lds")
            nissued[0] += 1
        pos[("k", tt)] = nissued[0]
        if tt < 15: a(f"s_add_u32 s60, s{12+((tt+1)&3)}, {(tt+1)*16384}")
    def vreg(tt, i):
        return 64 + 4 * (4 * (tt % 12) + i)
    def issueV(tt):
        for i in range(4):
            r = vreg(tt, i)
            throttle()
            a(f"buffer_load_dwordx4 v[{r}:{r+3}], v5, s[52:55], s61 offen offset:{i*1024} {kvpol}")
            nissued[0] += 1
            pos[("v", tt, i)] = nissued[0]
        pos[("v", tt)] = nissued[0]
        if tt < 15: a(f"s_add_u32 s61, s{12+((tt+1)&3)}, {(tt+1)*16384}")
    def waitfor(key):
        if pos[key] <= covered[0]: return
        n = min(nissued[0] - pos[key], 63)
        a(f"s_waitcnt vmcnt({n})")
        covered[0] = nissued[0] - n

    issueK(0)
    if early: a("s_barrier")
    if sprio: a(f"s_setprio {sprio}")
    srd(44, 42, 0x10000000)
    a("v_and_b32 v8, 3, v7")
    a("v_lshlrev_b32 v8, 10, v8")
    a("v_lshrrev_b32 v9, 2, v7")
    a("v_lshl_add_u32 v8, v9, 8, v8")
    a("v_add_u32 v8, s62, v8")
    a("v_xor_b32 v9, v6, v7")
    a("v_and_b32 v44, 3, v7")
    a("v_lshlrev_b32 v44, 8, v44")
    a("v_lshl_add_u32 v44, v6, 4, v44")
    a(f"v_add_u32 v44, {Q_L:#x}, v44")
    a("v_xor_b32 v45, 4, v9")
    a("v_xor_b32 v46, 8, v9")
    a("v_xor_b32 v47, 12, v9")
    a("v_lshl_add_u32 v6, v9, 4, v8")
    a("v_lshl_add_u32 v7, v45, 4, v8")
    a("v_lshl_add_u32 v9, v47, 4, v8")
    a("v_lshl_add_u32 v8, v46, 4, v8")
    a("s_mov_b32 s64, 0x00f000f0"); a("s_mov_b32 s65, 0x00f000f0")
    a("s_mov_b32 s66, 0x0f000f00"); a("s_mov_b32 s67, 0x0f000f00")
    a("s_mov_b32 s70, 0xf000f000"); a("s_mov_b32 s71, 0xf000f000")
    MASK = {1: "s[64:65]", 2: "s[66:67]", 3: "s[70:71]"}
    a("s_mov_b32 s8, 0x05040100")
    a("s_mov_b32 s9, 0x07060302")
    a(f"s_mov_b32 s10, {f32(CSC)}")
    a(f"v_mov_b32 v45, {C_L:#x}")
    a("v_mov_b32 v46, 1")
    srd(56, 34, 1024)
    a("s_and_b32 s6, s11, 31")
    a("s_lshr_b32 s6, s6, 1")
    a("s_lshl_b32 s6, s6, 5")
    a("s_and_b32 s7, s11, 1")
    a("s_lshl_b32 s7, s7, 3")
    a("s_add_u32 s69, s6, s7")
    a("s_lshl_b32 s68, s69, 1")
    a("v_and_b32 v12, 7, v0")
    a("v_lshlrev_b32 v12, 1, v12")
    tagcalc()
    seqno = [1]
    def tick():
        if seqno[0] == qtrig:
            cnt_add(16, 45, 46)
        seqno[0] += 1
    for tt in range(1, 8):
        issueK(tt); tick()
        if st2 and tt == 1: stamp(7)
        if st2 and tt == 3: stamp(2)
    a("buffer_load_ushort v10, v12, s[56:59], s68 offen")
    a("buffer_load_ushort v11, v12, s[56:59], s68 offen offset:32")
    nissued[0] += 2
    vn = [0]
    def nextV():
        issueV(vn[0]); vn[0] += 1
        if vn[0] - 1 == trig:
            a(f"v_mov_b32 v1, {C_L:#x}")
            a("v_mov_b32 v2, 1")
            cnt_add(12, 1, 2)
    for tt in range(0, npre):
        nextV(); tick()
    stamp(1)
    cnt_wait(4, "L_wq", 45, 46, 63)
    if not st2: stamp(2)
    Dcur[0] = D2
    QFR, KT, DT, SD = 12, 28, 44, 48
    for j in range(4):
        a(f"ds_read_b128 v[{QFR+4*j}:{QFR+4*j+3}], v44 offset:{64*j}")
    a("s_waitcnt lgkmcnt(0)")
    def S(tt):
        waitfor(("k", tt))
        slot = tt & 7
        G = tt >> 1; t = G & 3; st = 2 * (G >> 2) + (tt & 1)
        dst = SD + 4 * st if t == 0 else DT
        for j in range(4):
            a(f"ds_read_b128 v[{KT+4*j}:{KT+4*j+3}], v{6+j} offset:{slot*4096}")
        for j in range(4):
            a(f"s_waitcnt lgkmcnt({3-j})")
            c = "0" if j == 0 else f"v[{dst}:{dst+3}]"
            a(f"v_mfma_f32_16x16x32_bf16 v[{dst}:{dst+3}], v[{KT+4*j}:{KT+4*j+3}], v[{QFR+4*j}:{QFR+4*j+3}], {c}")
        return (t, st)
    def Ssel(ts):
        t, st = ts
        if t != 0:
            for r in range(4):
                a(f"v_cndmask_b32 v{SD+4*st+r}, v{SD+4*st+r}, v{DT+r}, {MASK[t]}")
    for tt in range(8):
        ts = S(tt)
        issueK(tt + 8)
        Ssel(ts)
        if tt >= 2:
            Ssel(S(tt + 6))
    nextV(); Ssel(S(14))
    nextV(); Ssel(S(15))
    a(f"v_max3_f32 v44, v{SD}, v{SD+1}, v{SD+2}")
    a(f"v_max3_f32 v45, v{SD+3}, v{SD+4}, v{SD+5}")
    a(f"v_max3_f32 v46, v{SD+6}, v{SD+7}, v{SD+8}")
    a(f"v_max3_f32 v47, v{SD+9}, v{SD+10}, v{SD+11}")
    a(f"v_max3_f32 v44, v44, v{SD+12}, v{SD+13}")
    a(f"v_max3_f32 v45, v45, v{SD+14}, v{SD+15}")
    a(f"v_max3_f32 v44, v44, v46, v47")
    a(f"v_max_f32 v44, v44, v45")
    xlane("v_max_f32", 44, 45)
    a("v_mul_f32 v44, s10, v44")
    a("v_and_b32 v46, 3, v0")
    a("v_lshlrev_b32 v46, 4, v46")
    a("s_lshl_b32 s6, s3, 2")
    a(f"s_add_u32 s6, s6, {M_L:#x}")
    a("v_add_u32 v47, s6, v46")
    for i in range(16):
        a(f"v_fma_f32 v{SD+i}, v{SD+i}, s10, -v44")
    nextV()
    for i in range(16):
        a(f"v_exp_f32 v{SD+i}, v{SD+i}")
    a(f"v_add_f32 v28, v{SD}, v{SD+1}")
    a(f"v_add_f32 v29, v{SD+2}, v{SD+3}")
    a(f"v_add_f32 v30, v{SD+4}, v{SD+5}")
    a(f"v_add_f32 v31, v{SD+6}, v{SD+7}")
    for k in range(2):
        for q in range(4):
            a(f"v_add_f32 v{28+q}, v{28+q}, v{SD+8+4*k+q}")
    a("v_add_f32 v28, v28, v29")
    a("v_add_f32 v30, v30, v31")
    a("v_add_f32 v28, v28, v30")
    xlane("v_add_f32", 28, 29)
    a("s_mov_b64 exec, 15")
    a("ds_write_b32 v47, v44")
    a(f"ds_write_b32 v47, v28 offset:{L_L-M_L}")
    a("s_mov_b64 exec, -1")
    for i in range(8):
        a(f"v_cvt_pk_bf16_f32 v{SD+i}, v{SD+2*i}, v{SD+2*i+1}")
    a(f"v_mov_b32 v1, {C_L:#x}")
    a("v_mov_b32 v2, 1")
    a("s_waitcnt lgkmcnt(0)")
    cnt_add(8, 1, 2)
    if not st2: stamp(3)
    OA, AT, PT = 12, 44, 56
    def PV(G, last=False):
        t = G & 3; aa = G >> 2
        src = SD + 4 * aa
        if t != 0:
            for i in range(4):
                a(f"v_mov_b32_dpp v{AT+i}, v{src+i} row_shl:{4*t} row_mask:0xf bank_mask:0xf bound_ctrl:0")
            src = AT
        X, Y = 2 * G, 2 * G + 1
        def V(e, p):
            return vreg(X if e < 4 else Y, e & 3) + p
        if not last:
            waitfor(("v", Y))
            def perms(dd):
                p, sel = dd >> 1, ("s8" if (dd & 1) == 0 else "s9")
                tb = PT + 4 * (dd & 1)
                for q in range(4):
                    a(f"v_perm_b32 v{tb+q}, v{V(2*q+1, p)}, v{V(2*q, p)}, {sel}")
            def mf(dd):
                tb = PT + 4 * (dd & 1)
                c = "0" if G == 0 else f"v[{OA+4*dd}:{OA+4*dd+3}]"
                a(f"v_mfma_f32_16x16x32_bf16 v[{OA+4*dd}:{OA+4*dd+3}], v[{src}:{src+3}], v[{tb}:{tb+3}], {c}")
            perms(0)
            for dd in range(8):
                if dd + 1 < 8: perms(dd + 1)
                mf(dd)
        else:
            TB = vreg(4, 0)
            for q in range(4):
                key = ("v", X if q < 2 else Y, (2 * q + 1) & 3)
                waitfor(key)
                for dd in range(8):
                    p, sel = dd >> 1, ("s8" if (dd & 1) == 0 else "s9")
                    a(f"v_perm_b32 v{TB+4*dd+q}, v{V(2*q+1, p)}, v{V(2*q, p)}, {sel}")
            for dd in range(8):
                a(f"v_mfma_f32_16x16x32_bf16 v[{OA+4*dd}:{OA+4*dd+3}], v[{src}:{src+3}], v[{TB+4*dd}:{TB+4*dd+3}], v[{OA+4*dd}:{OA+4*dd+3}]")
    def factors():
        a(f"v_mov_b32 v1, {C_L:#x}")
        cnt_wait(8, "L_wml", 1, 2, 63, target=6)
        a("s_lshl_b32 s6, s3, 4")
        a(f"s_add_u32 s6, s6, {M_L:#x}")
        a("v_lshrrev_b32 v3, 5, v0")
        a("v_lshl_add_u32 v1, v3, 3, s6")
        a("ds_read_b64 v[6:7], v1")
        a("s_lshl_b32 s6, s3, 2")
        a(f"s_add_u32 s7, s6, {G_L+16:#x}")
        a("v_mov_b32 v1, s7")
        a("ds_read_b32 v8, v1")
        a(f"v_mov_b32 v1, {G_L:#x}")
        a("ds_read_b32 v4, v1")
        a("v_and_b32 v2, 1, v0")
        a("v_lshlrev_b32 v2, 10, v2")
        a("v_lshl_add_u32 v2, v3, 16, v2")
        a("v_bfe_u32 v3, v0, 1, 4")
        a("v_lshl_add_u32 v2, v3, 4, v2")
        a("v_add_u32 v2, s6, v2")
        a("v_add_u32 v3, s62, v5")
        a("s_waitcnt lgkmcnt(0)")
        a("v_sub_f32 v6, v6, v8")
        a("v_sub_f32 v7, v7, v8")
        a("v_exp_f32 v6, v6")
        a("v_exp_f32 v7, v7")
        a("v_sub_f32 v9, 1.0, v4")
        a("v_mul_f32 v6, v6, v4")
        a("v_mul_f32 v7, v7, v4")
        a("v_lshlrev_b32 v10, 16, v10")
        a("v_lshlrev_b32 v11, 16, v11")
        a("v_mul_f32 v10, v10, v9")
        a("v_mul_f32 v11, v11, v9")
        a("s_and_b32 s6, s11, 0x1c")
        a("s_add_u32 s6, s6, s3")
        a("s_lshl_b32 s63, s6, 14")
        a("s_lshr_b32 s6, s11, 5")
        a("s_lshl_b32 s6, s6, 11")
        a("s_add_u32 s63, s63, s6")
        a("s_and_b32 s6, s11, 3")
        a("s_lshl_b32 s6, s6, 9")
        a("s_add_u32 s63, s63, s6")
        a(f"s_add_u32 s63, s63, {OG:#x}")
        a(f"v_mov_b32 v1, {C_L:#x}")
        a("v_mov_b32 v4, 1")
    G = 0
    while vn[0] < 16:
        if vn[0] >= 12 and G <= (vn[0] - 12) // 2:
            PV(G); G += 1
            continue
        nextV()
        k = 0
        while vn[0] < 16 and 2 * G + 1 <= vn[0] - 3 and G < 6 and k < 2:
            PV(G); G += 1; k += 1
    if not st2: stamp(4)
    while G < 4:
        PV(G); G += 1
    factors()
    while G < 7:
        PV(G); G += 1
    PV(7, last=True)
    a("s_mov_b64 exec, 0xffff")
    for dd in range(8):
        a(f"ds_write_b128 v3, v[{OA+4*dd}:{OA+4*dd+3}] offset:{dd*256}")
    a("s_mov_b64 exec, 1")
    a("ds_add_u32 v1, v4 offset:20")
    a("s_mov_b64 exec, -1")
    a("v_mov_b32 v49, s5")
    a("v_mov_b32 v51, s5")
    a(f"s_mov_b32 s60, {spin_max*4}")
    a("L_wo:")
    a("ds_read_b32 v44, v1 offset:20")
    a("ds_read2st64_b32 v[52:53], v2 offset0:0 offset1:1")
    a("ds_read2st64_b32 v[54:55], v2 offset0:2 offset1:3")
    a("ds_read2st64_b32 v[56:57], v2 offset0:128 offset1:129")
    a("ds_read2st64_b32 v[58:59], v2 offset0:130 offset1:131")
    a("s_waitcnt lgkmcnt(4)")
    a("v_cmp_gt_u32 vcc, 4, v44")
    a("s_sub_u32 s60, s60, 1")
    a("s_cbranch_scc1 L_wo_go")
    a("s_cbranch_vccnz L_wo")
    a("L_wo_go:")
    a("s_waitcnt lgkmcnt(2)")
    for k in range(4):
        a(f"v_mul_f32 v{52+k}, v{52+k}, v6")
    a("s_waitcnt lgkmcnt(0)")
    for k in range(4):
        a(f"v_fma_f32 v{52+k}, v{56+k}, v7, v{52+k}")
    for k in range(4):
        a(f"v_mov_b32 v{56+k}, v{52+k}")
    for k in range(4):
        a(f"v_permlane32_swap_b32 v{52+k}, v{56+k}")
    for k in range(4):
        a(f"v_add_f32 v{52+k}, v{52+k}, v{56+k}")
    a("v_cvt_pk_bf16_f32 v48, v52, v53")
    a("v_cvt_pk_bf16_f32 v50, v54, v55")
    a("s_mov_b64 exec, 0xffffffff")
    a("buffer_store_dwordx4 v[48:51], v5, s[44:47], s63 offen sc1")
    a("s_mov_b64 exec, -1")
    stamp(5)
    a("s_cmp_lg_u32 s3, 0")
    a("s_cbranch_scc1 L_end")
    srd(48, 38, 8192)
    a("s_lshr_b32 s6, s11, 5")
    a("s_lshl_b32 s60, s11, 12")
    a(f"s_add_u32 s60, s60, {PG:#x}")
    a("s_lshl_b32 s6, s6, 9")
    a("s_add_u32 s6, s6, s69")
    a("s_lshl_b32 s61, s6, 1")
    a("v_lshlrev_b32 v2, 1, v0")
    a(f"s_mov_b32 s62, {spin_max}")
    a("L_fin_poll:")
    for t in range(4):
        a(f"buffer_load_dwordx4 v[{12+4*t}:{15+4*t}], v5, s[44:47], s60 offen offset:{t*1024} sc1")
    a("s_waitcnt vmcnt(2)")
    a("v_xor_b32 v28, s5, v13")
    a("v_xor_b32 v29, s5, v15")
    a("v_xor_b32 v30, s5, v17")
    a("v_xor_b32 v31, s5, v19")
    a("v_add_f32 v12, v12, v16")
    a("v_add_f32 v14, v14, v18")
    a("v_or3_b32 v28, v28, v29, v30")
    a("s_waitcnt vmcnt(0)")
    a("v_xor_b32 v29, s5, v21")
    a("v_xor_b32 v30, s5, v23")
    a("v_xor_b32 v32, s5, v25")
    a("v_xor_b32 v33, s5, v27")
    a("v_add_f32 v20, v20, v24")
    a("v_add_f32 v22, v22, v26")
    a("v_or3_b32 v28, v28, v31, v29")
    a("v_or3_b32 v30, v30, v32, v33")
    a("v_add_f32 v12, v12, v20")
    a("v_add_f32 v14, v14, v22")
    a("v_or_b32 v28, v28, v30")
    a("v_cmp_ne_u32 vcc, 0, v28")
    a("s_sub_u32 s62, s62, 1")
    a("s_cbranch_scc1 L_fin_go")
    a("s_cbranch_vccnz L_fin_poll")
    a("L_fin_go:")
    prs = ((12, 13), (14, 15))
    for r, tmp in prs: a(f"v_add_f32_dpp v{r}, v{r}, v{r} row_ror:8 row_mask:0xf bank_mask:0xf")
    for r, tmp in prs: a(f"v_mov_b32 v{tmp}, v{r}")
    for r, tmp in prs: a(f"v_permlane16_swap_b32 v{r}, v{tmp}")
    for r, tmp in prs: a(f"v_add_f32 v{r}, v{r}, v{tmp}")
    for r, tmp in prs: a(f"v_mov_b32 v{tmp}, v{r}")
    for r, tmp in prs: a(f"v_permlane32_swap_b32 v{r}, v{tmp}")
    a("v_add_f32 v12, v12, v13")
    a("v_add_f32 v14, v14, v15")
    a("v_add_f32 v12, v12, v10")
    a("v_add_f32 v14, v14, v11")
    a("v_cvt_pk_bf16_f32 v12, v12, v14")
    a("s_mov_b64 exec, 0xff")
    a(f"buffer_store_short v12, v2, s[48:51], s61 offen {outpol}")
    a(f"buffer_store_short_d16_hi v12, v2, s[48:51], s61 offen offset:32 {outpol}")
    a("s_cmp_lg_u32 s2, 0")
    a("s_cbranch_scc1 L_fin_done")
    a("s_mov_b64 exec, 1")
    a("v_mov_b32 v3, s5")
    a("v_mov_b32 v4, 0")
    a("buffer_store_dword v3, v4, s[44:47], 0 offen sc1")
    a("L_fin_done:")
    a("s_mov_b64 exec, -1")
    if pad:
        if padwg >= 0:
            a(f"s_cmp_lg_u32 s2, {padwg}")
            a("s_cbranch_scc1 L_end")
        a("L_pad:")
        a("s_memrealtime s[74:75]")
        a("s_waitcnt lgkmcnt(0)")
        a("s_sub_u32 s76, s74, s72")
        a(f"s_cmp_lt_u32 s76, {pad*100}")
        a("s_cbranch_scc1 L_pad")
    stamp(6)
    stamp_store(0)
    a("s_endpgm")

    a("L_helper2:")
    if touch == 2:
        a("s_cmp_lg_u32 s3, 2")
        a("s_cbranch_scc1 L_notouch")
        a("s_lshl_b32 s6, s11, 18")
        a("s_load_dword s88, s[20:21], s6")
        a("s_and_b32 s6, s2, 7")
        a("s_lshl_b32 s6, s6, 19")
        a("s_load_dword s89, s[24:25], s6")
        a("s_load_dword s90, s[32:33], 0")
        a("s_load_dword s91, s[30:31], 0")
        a("s_load_dword s92, s[34:35], 0")
        a(f"s_mov_b32 s6, {OG:#x}")
        a("s_load_dword s94, s[42:43], s6")
        a("s_load_dword s95, s[38:39], 0")
        a("s_waitcnt lgkmcnt(0)")
        a("L_notouch:")
    a("s_cmp_lg_u32 s3, 3")
    a("s_cbranch_scc1 L_nogate")
    srd(48, 36, 1024)
    a("s_lshr_b32 s60, s11, 5")
    a("s_lshl_b32 s62, s60, 10")
    a("buffer_load_dwordx4 v[32:35], v5, s[52:55], s62 offen")
    a("buffer_load_dwordx4 v[36:39], v5, s[48:51], 0 offen")
    a("v_mov_b32 v40, 0")
    a(f"v_mov_b32 v2, {G_L:#x}")
    a("s_waitcnt vmcnt(0)")
    for i in range(4):
        a(f"v_dot2_f32_bf16 v40, v{32+i}, v{36+i}, v40")
    a("v_add_f32_dpp v40, v40, v40 quad_perm:[1,0,3,2] row_mask:0xf bank_mask:0xf")
    a("v_add_f32_dpp v40, v40, v40 quad_perm:[2,3,0,1] row_mask:0xf bank_mask:0xf")
    xlane("v_add_f32", 40, 41)
    a(f"v_mul_f32 v40, {f32(-LOG2E)}, v40")
    a("v_exp_f32 v40, v40")
    a("v_add_f32 v40, 1.0, v40")
    a("v_rcp_f32 v40, v40")
    a("s_mov_b64 exec, 1")
    a("ds_write_b32 v2, v40")
    a("s_waitcnt lgkmcnt(0)")
    a("ds_add_u32 v10, v20 offset:8")
    a("s_and_b32 s6, s11, 31")
    a("s_cmp_lg_u32 s6, 0")
    a("s_cbranch_scc1 L_gate_done")
    a("v_sub_f32 v42, 1.0, v40")
    a("v_mov_b32 v43, s5")
    a("v_mov_b32 v44, 0")
    a("s_lshl_b32 s6, s60, 3")
    a(f"s_add_u32 s6, s6, {GG:#x}")
    a("buffer_store_dwordx2 v[42:43], v44, s[44:47], s6 offen sc1")
    a("L_gate_done:")
    a("s_mov_b64 exec, -1")
    a("L_nogate:")
    a("s_and_b32 s62, s11, 0xfc")
    a("s_add_u32 s62, s62, s3")
    a(f"s_mul_i32 s62, s62, {QSTR}")
    a(f"s_add_u32 s62, s62, {QP:#x}")
    a("s_lshl_b32 s6, s3, 8")
    a(f"s_add_u32 s6, s6, {Q_L:#x}")
    a("v_and_b32 v2, 31, v0")
    a("v_lshl_add_u32 v2, v2, 3, s6")
    cnt_wait(16, "L_qt", 10, 21, 65, sleep=4, target=1)
    a(f"s_mov_b32 s65, {spin_max}")
    if no_qp: a("s_branch L_qp_go")
    a("L_qp:")
    a("buffer_load_dwordx4 v[32:35], v5, s[44:47], s62 offen sc1")
    a("buffer_load_dwordx4 v[36:39], v5, s[44:47], s62 offen offset:1024 sc1")
    a("s_waitcnt vmcnt(0)")
    for k in range(4):
        a(f"v_xor_b32 v{33+2*k}, s5, v{33+2*k}")
    a("v_or3_b32 v33, v33, v35, v37")
    a("v_or_b32 v33, v33, v39")
    a("v_cmp_ne_u32 vcc, 0, v33")
    a("s_cbranch_vccz L_qp_go")
    if qsleep: a(f"s_sleep {qsleep}")
    a("s_sub_u32 s65, s65, 1")
    a("s_cbranch_scc0 L_qp")
    a("L_qp_go:")
    def unpack_sum(nk):
        for k in range(nk):
            for h in range(2):
                src = 32 + 4 * k + 2 * h
                if k == 0:
                    a(f"v_lshlrev_b32 v{12+2*h}, 16, v{src}")
                    a(f"v_and_b32 v{13+2*h}, 0xffff0000, v{src}")
                else:
                    a(f"v_lshlrev_b32 v{src+1}, 16, v{src}")
                    a(f"v_and_b32 v{src}, 0xffff0000, v{src}")
                    a(f"v_add_f32 v{12+2*h}, v{12+2*h}, v{src+1}")
                    a(f"v_add_f32 v{13+2*h}, v{13+2*h}, v{src}")
        for e in range(4): a(f"v_mov_b32 v{16+e}, v{12+e}")
        for e in range(4): a(f"v_permlane32_swap_b32 v{12+e}, v{16+e}")
        for e in range(4): a(f"v_add_f32 v{12+e}, v{12+e}, v{16+e}")
    unpack_sum(2)
    a("v_cvt_pk_bf16_f32 v12, v12, v13")
    a("v_cvt_pk_bf16_f32 v13, v14, v15")
    a("ds_write_b64 v2, v[12:13]")
    a("s_waitcnt lgkmcnt(0)")
    cnt_add(4, 10, 20)
    a(f"s_setprio {hprio}")
    stamp(2)
    a("s_lshr_b32 s60, s2, 5")
    a("s_and_b32 s61, s2, 7")
    a("s_lshl_b32 s61, s61, 2")
    a("s_bfe_u32 s6, s2, 0x20003")
    a("s_add_u32 s61, s61, s6")
    srd(48, 24, 0x400000)
    srd(56, 32, 1792 * 1024)
    srd(52, 30, 3584)
    a("s_lshl_b32 s64, s60, 7")
    a("s_lshl_b32 s62, s61, 17")
    a("s_add_u32 s62, s62, s64")
    a("s_lshl_b32 s6, s3, 15")
    a("s_add_u32 s62, s62, s6")
    a("s_lshl_b32 s66, s61, 16")
    a("s_add_u32 s66, s66, s64")
    a("s_lshl_b32 s6, s3, 14")
    a("s_add_u32 s66, s66, s6")
    a(f"s_mov_b32 s90, {WO_L:#x}")
    a("v_lshrrev_b32 v24, 3, v0")
    a("v_and_b32 v12, 2, v24")
    a("v_xor_b32 v12, v12, v8")
    a("v_lshlrev_b32 v24, 10, v24")
    a("v_lshl_add_u32 v24, v12, 4, v24")
    a("v_xor_b32 v25, 64, v24")
    a(f"v_add_u32 v26, {2*(8192-1024)}, v24")
    a(f"v_add_u32 v27, {3*(8192-1024)}, v25")
    a(f"v_add_u32 v25, {8192-1024}, v25")
    a("v_bfe_u32 v12, v0, 3, 2")
    a("v_lshlrev_b32 v12, 5, v12")
    a(f"v_add3_u32 v120, v11, v12, s90")
    a("v_xor_b32 v121, 32, v120")
    a("v_xor_b32 v122, 64, v120")
    a("v_xor_b32 v123, 96, v120")
    a("v_bfe_u32 v12, v7, 2, 1")
    a("v_mul_u32_u24 v4, 144, v12")
    a("v_lshl_add_u32 v4, v6, 4, v4")
    a("s_mul_i32 s6, s3, 288")
    a(f"s_add_u32 s6, s6, {HA_L:#x}")
    a("v_add_u32 v4, s6, v4")
    a("v_bfe_u32 v12, v0, 3, 2")
    a("v_lshlrev_b32 v53, 3, v12")
    a("v_mul_u32_u24 v1, 144, v8")
    a("s_lshl_b32 s6, s3, 5")
    a(f"s_add_u32 s6, s6, {HA_L:#x}")
    a("v_add3_u32 v1, v1, v53, s6")
    a("v_lshlrev_b32 v52, 3, v8")
    a("v_and_b32 v12, 1, v6")
    a("v_lshlrev_b32 v11, 10, v12")
    a("s_lshl_b32 s69, s3, 11")
    a("s_lshl_b32 s6, s61, 5")
    a("s_add_u32 s69, s69, s6")
    a(f"s_add_u32 s69, s69, {LG:#x}")
    a("s_lshl_b32 s70, s61, 14")
    a("s_lshl_b32 s6, s3, 12")
    a("s_add_u32 s70, s70, s6")
    a(f"s_mul_i32 s63, s61, {HSTR}")
    a("s_add_u32 s63, s63, s6")
    a(f"s_add_u32 s63, s63, {HP:#x}")
    a(f"s_add_u32 s70, s70, {OG:#x}")
    a("s_lshl_b32 s6, s3, 15")
    a(f"s_add_u32 s6, s6, {AS_OFF:#x}")
    a("v_lshrrev_b32 v13, 5, v0")
    a("v_and_b32 v14, 31, v0")
    a("v_mul_u32_u24 v13, 272, v13")
    a("v_lshl_add_u32 v13, v14, 3, v13")
    a("v_add_u32 v2, s6, v13")
    a("v_mul_u32_u24 v13, 272, v8")
    a("v_lshl_add_u32 v13, v6, 4, v13")
    a("v_add_u32 v58, s6, v13")
    a("v_lshlrev_b32 v59, 17, v12")
    a("v_lshrrev_b32 v12, 3, v7")
    a("v_lshl_add_u32 v59, v12, 12, v59")
    a("v_lshl_add_u32 v59, v8, 4, v59")
    a("s_lshl_b32 s71, s3, 18")
    a("s_lshl_b32 s6, s60, 14")
    a("s_add_u32 s71, s71, s6")
    a("s_lshl_b32 s6, s61, 7")
    a("s_add_u32 s71, s71, s6")
    a(f"s_add_u32 s71, s71, {PG:#x}")
    a("s_add_u32 s8, s71, 8192")
    if no_h: a("s_branch L_nohact")
    a("s_cmp_ge_u32 s61, 28")
    a("s_cbranch_scc1 L_nohact")
    a("s_lshl_b32 s6, s61, 7")
    a("s_lshl_b32 s7, s3, 5")
    a("s_add_u32 s6, s6, s7")
    a("buffer_load_dwordx2 v[54:55], v53, s[52:55], s6 offen")
    a(f"s_mov_b32 s64, {GG:#x}")
    a(f"s_mov_b32 s65, {spin_max}")
    a("L_hp:")
    for k in range(4):
        a(f"buffer_load_dwordx4 v[{32+4*k}:{35+4*k}], v5, s[44:47], s63 offen offset:{k*1024} sc1")
    a("buffer_load_dwordx2 v[56:57], v52, s[44:47], s64 offen sc1")
    a("s_waitcnt vmcnt(0)")
    for k in range(8):
        a(f"v_xor_b32 v{33+2*k}, s5, v{33+2*k}")
    a("v_xor_b32 v48, s5, v57")
    a("v_or3_b32 v33, v33, v35, v37")
    a("v_or3_b32 v39, v39, v41, v43")
    a("v_or3_b32 v45, v45, v47, v48")
    a("v_or3_b32 v33, v33, v39, v45")
    a("v_cmp_ne_u32 vcc, 0, v33")
    a("s_cbranch_vccz L_hp_go")
    a("s_sleep 16")
    a("s_sub_u32 s65, s65, 1")
    a("s_cbranch_scc0 L_hp")
    a("L_hp_go:")
    unpack_sum(4)
    a("v_lshlrev_b32 v16, 16, v54")
    a("v_and_b32 v17, 0xffff0000, v54")
    a("v_lshlrev_b32 v18, 16, v55")
    a("v_and_b32 v19, 0xffff0000, v55")
    for e in range(4): a(f"v_add_f32 v{12+e}, v{12+e}, v{16+e}")
    for e in range(4): a(f"v_max_f32 v{12+e}, 0, v{12+e}")
    for e in range(4): a(f"v_mul_f32 v{16+e}, v{12+e}, v56")
    for e in range(4): a(f"v_mul_f32 v{12+e}, v{12+e}, v{16+e}")
    a("v_cvt_pk_bf16_f32 v12, v12, v13")
    a("v_cvt_pk_bf16_f32 v13, v14, v15")
    a("ds_write_b64 v1, v[12:13]")
    a("L_nohact:")
    a("s_cmp_lg_u32 s3, 0")
    a("s_cbranch_scc1 L_nolse")
    cnt_wait(8, "L_hml", 10, 21, 65, sleep=8, target=5)
    a("v_lshlrev_b32 v12, 4, v9")
    a(f"v_add_u32 v12, {M_L:#x}, v12")
    a("ds_read_b128 v[16:19], v12")
    a(f"ds_read_b128 v[32:35], v12 offset:{L_L-M_L}")
    a("s_and_b32 s6, s11, 0xfc")
    a("s_lshl_b32 s6, s6, 5")
    a("s_and_b32 s7, s11, 3")
    a("s_lshl_b32 s7, s7, 3")
    a("s_add_u32 s6, s6, s7")
    a(f"s_add_u32 s6, s6, {LG:#x}")
    a("v_lshlrev_b32 v13, 5, v9")
    a("s_waitcnt lgkmcnt(0)")
    a("v_max3_f32 v14, v16, v17, v18")
    a("v_max_f32 v14, v14, v19")
    for w in range(4): a(f"v_sub_f32 v{16+w}, v{16+w}, v14")
    for w in range(4): a(f"v_exp_f32 v{16+w}, v{16+w}")
    a("v_mul_f32 v36, v16, v32")
    for w in range(1, 4): a(f"v_fma_f32 v36, v{16+w}, v{32+w}, v36")
    a("v_log_f32 v36, v36")
    a("v_mov_b32 v15, s5")
    a("v_add_f32 v14, v14, v36")
    a("s_mov_b64 exec, 15")
    a("buffer_store_dwordx2 v[14:15], v13, s[44:47], s6 offen sc1")
    a("s_mov_b64 exec, -1")
    a("s_sub_u32 s6, s6, s7")
    a(f"s_mov_b32 s65, {spin_max}")
    a("L_lp:")
    a("s_sleep 8")
    a("buffer_load_dwordx4 v[28:31], v13, s[44:47], s6 offen sc1")
    a("buffer_load_dwordx4 v[32:35], v13, s[44:47], s6 offen offset:16 sc1")
    a("s_waitcnt vmcnt(0)")
    for k in range(4):
        a(f"v_xor_b32 v{29+2*k}, s5, v{29+2*k}")
    a("v_or3_b32 v29, v29, v31, v33")
    a("v_or_b32 v29, v29, v35")
    a("v_cmp_ne_u32 vcc, 0, v29")
    a("s_sub_u32 s65, s65, 1")
    a("s_cbranch_scc1 L_lp_go")
    a("s_cbranch_vccnz L_lp")
    a("L_lp_go:")
    a("v_max3_f32 v44, v28, v30, v32")
    a("v_max_f32 v44, v44, v34")
    for k in range(4):
        a(f"v_sub_f32 v{48+k}, v{28+2*k}, v44")
    for k in range(4):
        a(f"v_exp_f32 v{48+k}, v{48+k}")
    a("v_add_f32 v48, v48, v49")
    a("v_add_f32 v50, v50, v51")
    a("v_add_f32 v48, v48, v50")
    a("v_log_f32 v48, v48")
    a("v_lshlrev_b32 v12, 2, v9")
    a(f"v_add_u32 v12, {G_L+16:#x}, v12")
    a("v_add_f32 v48, v48, v44")
    a("s_mov_b64 exec, 15")
    a("ds_write_b32 v12, v48")
    a("s_mov_b64 exec, 1")
    a("ds_add_u32 v10, v20 offset:8")
    a("s_mov_b64 exec, -1")
    a("L_nolse:")
    cnt_wait(12, "L_trig", 10, 21, 65, sleep=2, target=ttarget)
    if no_wo: a("s_branch L_now2")
    a("s_mov_b32 m0, s67")
    a("s_nop 0")
    for i in range(4):
        a(f"buffer_load_dwordx4 v{24+i}, s[48:51], s62 offen offset:{i*1024} {wpol} lds")
    a("s_cmp_ge_u32 s61, 28")
    a("s_cbranch_scc1 L_now2")
    a("s_mov_b32 m0, s68")
    a("s_nop 0")
    for i in range(2):
        a(f"buffer_load_dwordx4 v{24+i}, s[56:59], s66 offen offset:{i*1024} {wpol} lds")
    a("L_now2:")
    for k in range(4):
        a(f"v_mov_b32 v{65+2*k}, s5")
    a("v_add_u32 v9, 1088, v2")
    a("v_mov_b32 v36, 1")
    stamp(3)
    WOF, W2F, AF, ACC = 128, 192, 72, 96
    for k in range(4):
        a(f"v_mov_b32 v{60+k}, 0")
    a("s_waitcnt vmcnt(0)")
    cnt_add(0, 10, 36)
    def p2_loads():
        for k in range(4):
            a(f"buffer_load_dwordx4 v[{12+4*k}:{15+4*k}], v5, s[44:47], s70 offen offset:{k*1024} sc1")
    cnt_wait(0, "L_s2", 10, 37, 65, sleep=1, target=8)
    stamp(6)
    for j in range(4):
        for aa in range(4):
            for eh in range(2):
                r = WOF + 16 * j + 4 * aa + 2 * eh
                a(f"ds_read_b64_tr_b16 v[{r}:{r+1}], v{120+aa} offset:{j*4096 + eh*512}")
        a("s_waitcnt lgkmcnt(4)")
    p2_loads()
    a("s_cmp_ge_u32 s61, 28")
    a("s_cbranch_scc1 L_nomlp")
    for j in range(2):
        for aa in range(4):
            for eh in range(2):
                r = W2F + 16 * j + 4 * aa + 2 * eh
                a(f"ds_read_b64_tr_b16 v[{r}:{r+1}], v{120+aa} offset:{W2_L-WO_L + j*4096 + eh*512}")
        a("s_waitcnt lgkmcnt(4)")
    a("ds_read_b128 v[88:91], v4")
    a("ds_read_b128 v[92:95], v4 offset:64")
    a("s_waitcnt lgkmcnt(0)")
    for j in range(2):
        for aa in range(4):
            c = "0" if j == 0 else f"v[{ACC+4*aa}:{ACC+4*aa+3}]"
            a(f"v_mfma_f32_16x16x32_bf16 v[{ACC+4*aa}:{ACC+4*aa+3}], v[{88+4*j}:{91+4*j}], v[{W2F+16*j+4*aa}:{W2F+16*j+4*aa+3}], {c}")
    for aa in range(4):
        a(f"v_mov_b32 v{60+aa}, v{ACC+4*aa}")
    a("L_nomlp:")
    a(f"s_mov_b32 s64, {spin_max}")
    stamp(4)
    a("s_branch L_p2_body")
    a("L_p2_poll:")
    p2_loads()
    a("L_p2_body:")
    for k in range(4):
        a(f"s_waitcnt vmcnt({3-k})")
        va = "v2" if k < 2 else "v9"
        o = (k & 1) * 136
        a(f"ds_write2_b32 {va}, v{12+4*k}, v{14+4*k} offset0:{o} offset1:{o+1}")
        a(f"v_xor_b32 v{28+2*k}, s5, v{13+4*k}")
        a(f"v_xor_b32 v{29+2*k}, s5, v{15+4*k}")
    a("v_or3_b32 v28, v28, v29, v30")
    a("v_or3_b32 v31, v31, v32, v33")
    a("v_or3_b32 v28, v28, v34, v35")
    a("v_or_b32 v28, v28, v31")
    a("v_cmp_ne_u32 vcc, 0, v28")
    a("s_sub_u32 s64, s64, 1")
    a("s_waitcnt lgkmcnt(0)")
    a("s_cbranch_scc1 L_p2_go")
    a("s_cbranch_vccnz L_p2_poll")
    a("L_p2_go:")
    for j in range(4):
        a(f"ds_read_b128 v[{AF+4*j}:{AF+4*j+3}], v58 offset:{j*64}")
    for j in range(4):
        a(f"s_waitcnt lgkmcnt({3-j})")
        for aa in range(4):
            c = "0" if j == 0 else f"v[{ACC+4*aa}:{ACC+4*aa+3}]"
            a(f"v_mfma_f32_16x16x32_bf16 v[{ACC+4*aa}:{ACC+4*aa+3}], v[{AF+4*j}:{AF+4*j+3}], v[{WOF+16*j+4*aa}:{WOF+16*j+4*aa+3}], {c}")
    a("s_mov_b64 exec, 0xffffffff")
    for aa in range(4):
        a(f"v_add_f32 v{60+aa}, v{60+aa}, v{ACC+4*aa}")
        a(f"v_add_f32 v{48+aa}, v{ACC+4*aa+1}, v{ACC+4*aa+2}")
        a(f"v_add_f32 v{60+aa}, v{60+aa}, v{ACC+4*aa+3}")
        a(f"v_add_f32 v{64+2*aa}, v{60+aa}, v{48+aa}")
        if aa == 1: a("buffer_store_dwordx4 v[64:67], v59, s[44:47], s71 offen sc1")
    a("buffer_store_dwordx4 v[68:71], v59, s[44:47], s8 offen sc1")
    a("s_mov_b64 exec, -1")
    stamp(5)
    if stamps:
        a("s_add_u32 s3, s3, 1")
        stamp_store("s3")
    a("L_end:")
    a("s_endpgm")
    a.raw('.section .rodata,"a"')
    a.raw(".p2align 6")
    a.raw(f".amdhsa_kernel {NAME}_kernel")
    a.raw("  .amdhsa_next_free_vgpr 256")
    a.raw("  .amdhsa_next_free_sgpr 96")
    a.raw("  .amdhsa_accum_offset 256")
    a.raw("  .amdhsa_group_segment_fixed_size 0")
    a.raw("  .amdhsa_kernarg_size 112")
    a.raw("  .amdhsa_user_sgpr_count 2")
    a.raw("  .amdhsa_user_sgpr_kernarg_segment_ptr 1")
    a.raw("  .amdhsa_system_sgpr_workgroup_id_x 1")
    a.raw(".end_amdhsa_kernel")
    return a.text()

if __name__ == "__main__":
    out = sys.argv[1]
    kw = json.loads(sys.argv[2]) if len(sys.argv) > 2 else {}
    open(out, "w").write(gen(**kw))
```

```python
import sys, json, math, struct
from asmdsl import Asm
NAME = "gated_mix__gqa_block_cached__dense_activation_squared_relu__decode"

GG, LG = 0x3000, 0x10000
QP, HP, OG, PG = 0x100000, 0x80000, 0x200000, 0x300000
STAMP = 0x8000000
def f32(x): return "0x%08x" % struct.unpack("<I", struct.pack("<f", x))[0]
CSC = math.log2(math.e) / math.sqrt(128.0)
LOG2E = math.log2(math.e)
HEADER = open("cdna_kernels/" + NAME + ".s.ref").read().split("; Override launch geometry")[0]

def gen(stamps=False, kvpol="nt", wpol="nt", spin_max=400000, D1=6, D2=6, qsleep=4, qtrig=6,
        trig=15, npre=4, rot=False, qfail=12, force_slow=False, ttarget=4, early=True, st2=False, spread=False, estpol='sc1', ostpol='sc1', D3=0, n3=4, pad=0, padwg=-1, amap=1, hprio=0, sprio=2, w2early=False, outpol="", touch=0, no_h=False, no_wo=False, no_qp=False, no_st=False, no_gate=False):
    a = Asm()
    NST = 8
    QSTR, HSTR = (67584, 540672) if spread else (2048, 16384)
    QP, HP = (0x1000000, 0x3000000) if spread else (0x100000, 0x80000)
    WQ_L, W1_L = 0x20000, 0x24000
    WO_L, W2_L = WQ_L, W1_L
    Q_L, M_L, L_L, G_L, C_L, HA_L = 0x26000, 0x26400, 0x26440, 0x26480, 0x264c0, 0x26500
    LDS_TOTAL = HA_L + 8 * 144
    AS_OFF = 0x1000
    a.raw(HEADER.rstrip())
    a.raw(f"; @launch grid=(256,1,1) block=(512,1,1) lds={LDS_TOTAL}")
    a.raw('.amdgcn_target "amdgcn-amd-amdhsa--gfx950"')
    a.raw(".text")
    a.raw(f".globl {NAME}_kernel")
    a.raw(".p2align 8")
    a.raw(f".type {NAME}_kernel,@function")
    a.label(f"{NAME}_kernel")

    def srd(d, base, size):
        a(f"s_mov_b32 s{d}, s{base}")
        a(f"s_mov_b32 s{d+1}, s{base+1}")
        a(f"s_mov_b32 s{d+2}, {size:#x}")
        a(f"s_mov_b32 s{d+3}, 0x00020000")
    def stamp(i):
        if stamps:
            a(f"s_memrealtime s[{72+2*i}:{73+2*i}]")
            a("s_waitcnt lgkmcnt(0)")
    def stamp_store(slot):
        if not stamps: return
        a(f"s_lshl_b32 s6, s2, 3")
        a(f"s_add_u32 s6, s6, {slot}")
        a(f"s_mul_i32 s6, s6, {NST*8}")
        a(f"s_add_u32 s6, s6, {STAMP:#x}")
        a("s_mov_b64 exec, 1")
        a("v_mov_b32 v1, 0")
        for i in range(0, NST, 2):
            for k in range(4):
                a(f"v_mov_b32 v{4+k}, s{72+2*i+k}")
            a(f"buffer_store_dwordx4 v[4:7], v1, s[44:47], s6 offen offset:{i*8}")
            a("s_nop 1")
        a("s_mov_b64 exec, -1")
    def tagcalc():
        a("s_waitcnt lgkmcnt(0)")
        a("s_and_b32 s5, s4, 0xfffffff8")
        a("s_add_u32 s5, s5, 0x9abcde8")
    def xlane(op, r, tmp):
        a(f"{op}_dpp v{r}, v{r}, v{r} row_ror:4 row_mask:0xf bank_mask:0xf")
        a(f"{op}_dpp v{r}, v{r}, v{r} row_ror:8 row_mask:0xf bank_mask:0xf")
        a(f"v_mov_b32 v{tmp}, v{r}")
        a(f"v_permlane16_swap_b32 v{r}, v{tmp}")
        a(f"{op} v{r}, v{r}, v{tmp}")
        a(f"v_mov_b32 v{tmp}, v{r}")
        a(f"v_permlane32_swap_b32 v{r}, v{tmp}")
        a(f"{op} v{r}, v{r}, v{tmp}")
    def cnt_add(off, vaddr, vone):
        a("s_mov_b64 exec, 1")
        a(f"ds_add_u32 v{vaddr}, v{vone} offset:{off}")
        a("s_mov_b64 exec, -1")
    def cnt_wait(off, lbl, vaddr, vtmp, sreg, sleep=0, target=4):
        a(f"s_mov_b32 s{sreg}, {spin_max*4}")
        a(f"{lbl}:")
        a(f"ds_read_b32 v{vtmp}, v{vaddr} offset:{off}")
        a("s_waitcnt lgkmcnt(0)")
        a(f"v_cmp_gt_u32 vcc, {target}, v{vtmp}")
        a(f"s_cbranch_vccz {lbl}_go")
        if sleep: a(f"s_sleep {sleep}")
        a(f"s_sub_u32 s{sreg}, s{sreg}, 1")
        a(f"s_cbranch_scc0 {lbl}")
        a(f"{lbl}_go:")
    def unit_id():
        if amap == 1:
            a("s_and_b32 s11, s2, 0xe0")
            a("s_and_b32 s6, s2, 7")
            a("s_lshl_b32 s6, s6, 2")
            a("s_add_u32 s11, s11, s6")
            a("s_bfe_u32 s6, s2, 0x20003")
            a("s_add_u32 s11, s11, s6")
        elif amap == 2:
            a("s_and_b32 s11, s2, 7")
            a("s_lshl_b32 s11, s11, 5")
            a("s_lshr_b32 s6, s2, 3")
            a("s_add_u32 s11, s11, s6")
        else:
            a("s_mov_b32 s11, s2")

    a("s_cmp_ge_u32 s2, 256")
    a("s_cbranch_scc1 L_end")
    if stamps:
        for i in range(NST):
            a(f"s_mov_b64 s[{72+2*i}:{73+2*i}], 0")
        a("s_memrealtime s[72:73]")
    if pad: a("s_memrealtime s[72:73]")
    a("s_load_dwordx16 s[16:31], s[0:1], 0")
    a("s_load_dwordx8 s[32:39], s[0:1], 64")
    a("s_load_dwordx4 s[40:43], s[0:1], 96")
    a("v_lshrrev_b32 v1, 6, v0")
    a("v_and_b32 v0, 63, v0")
    a("v_readfirstlane_b32 s3, v1")
    a("v_lshrrev_b32 v6, 4, v0")
    a("v_and_b32 v7, 15, v0")
    a("v_lshlrev_b32 v5, 4, v0")
    unit_id()
    a("s_cmp_lt_u32 s3, 4")
    a("s_cbranch_scc1 L_stream")

    a("s_setprio 3")
    a(f"v_mov_b32 v10, {C_L:#x}")
    for k in range(4): a(f"v_mov_b32 v{12+k}, 0")
    a("ds_write_b128 v10, v[12:15]")
    a("ds_write_b128 v10, v[12:15] offset:16")
    a("s_getreg_b32 s91, hwreg(HW_REG_XCC_ID)")
    a("s_sub_u32 s3, s3, 4")
    a("v_lshrrev_b32 v16, 3, v0")
    a("v_and_b32 v8, 7, v0")
    a("v_lshlrev_b32 v1, 13, v16")
    a("v_lshl_add_u32 v1, v8, 4, v1")
    for i in range(1, 4):
        a(f"v_add_u32 v{1+i}, {i*(65536-1024)}, v1")
    a("v_mul_u32_u24 v16, 3584, v16")
    a("v_lshl_add_u32 v16, v8, 4, v16")
    a(f"v_add_u32 v17, {8*3584-1024}, v16")
    a("v_lshlrev_b32 v18, 10, v8")
    a("v_lshl_add_u32 v19, v6, 3, v18")
    a("v_lshl_add_u32 v18, v6, 4, v18")
    a("s_bfe_u32 s61, s2, 0x20003")
    a("s_and_b32 s60, s2, 7")
    a("s_lshl_b32 s60, s60, 3")
    a("s_lshr_b32 s6, s2, 5")
    a("s_add_u32 s60, s60, s6")
    a("s_lshl_b32 s62, s61, 20")
    a("s_lshl_b32 s6, s60, 7")
    a("s_add_u32 s62, s62, s6")
    a("s_lshl_b32 s6, s3, 18")
    a("s_add_u32 s62, s62, s6")
    a("s_lshl_b32 s6, s3, 12")
    a(f"s_add_u32 s67, s6, {WQ_L:#x}")
    a("s_lshl_b32 s6, s3, 11")
    a(f"s_add_u32 s68, s6, {W1_L:#x}")
    a("s_lshl_b32 s63, s61, 8")
    a("s_lshl_b32 s6, s3, 6")
    a("s_add_u32 s63, s63, s6")
    a("s_lshr_b32 s66, s60, 1")
    a("s_and_b32 s69, s60, 1")
    a("s_lshl_b32 s70, s61, 1")
    a("s_add_u32 s70, s70, s69")
    a("s_lshl_b32 s6, s70, 2")
    a("s_add_u32 s6, s6, s3")
    a(f"s_mul_i32 s65, s6, {16*3584}")
    a("s_lshl_b32 s64, s6, 5")
    a("s_lshl_b32 s6, s66, 7")
    a("s_add_u32 s65, s65, s6")
    a("s_mov_b32 m0, s67")
    a("s_waitcnt lgkmcnt(0)")
    srd(48, 22, 0x400000)
    srd(52, 16, 8192)
    XF, BF, AC = 64, 128, 80
    for i in range(4):
        a(f"buffer_load_dwordx4 v{1+i}, s[48:51], s62 offen offset:{i*1024} {wpol} lds")
    a(f"buffer_load_dwordx4 v[{XF}:{XF+3}], v18, s[52:55], s63 offen")
    a("s_mov_b32 m0, s68")
    srd(56, 28, 512 * 3584)
    a("s_cmp_ge_u32 s66, 28")
    a("s_cbranch_scc1 L_now1a")
    a(f"buffer_load_dwordx4 v16, s[56:59], s65 offen {wpol} lds")
    a(f"buffer_load_dwordx4 v17, s[56:59], s65 offen offset:1024 {wpol} lds")
    a(f"buffer_load_dwordx2 v[{XF+4}:{XF+5}], v19, s[52:55], s64 offen")
    a("L_now1a:")
    a("s_load_dword s4, s[42:43], 0")
    a("s_barrier")
    srd(44, 42, 0x10000000)
    a("v_lshrrev_b32 v16, 2, v7")
    a("v_and_b32 v9, 3, v0")
    a("v_lshl_add_u32 v17, v6, 3, v16")
    a("v_lshlrev_b32 v11, 7, v17")
    a("v_lshl_add_u32 v11, v9, 3, v11")
    a("v_add_u32 v3, s67, v11")
    a("v_lshl_add_u32 v17, v6, 2, v16")
    a("v_lshlrev_b32 v2, 7, v17")
    a("v_lshl_add_u32 v2, v9, 3, v2")
    a("v_add_u32 v2, s68, v2")
    a("v_mov_b32 v20, 1")
    a("v_xor_b32 v1, v6, v8")
    a("v_lshlrev_b32 v1, 4, v1")
    a("v_lshl_add_u32 v1, v8, 8, v1")
    a("v_add_u32 v1, s67, v1")
    a("v_xor_b32 v19, 64, v1")
    a("v_and_b32 v16, 1, v6")
    a("s_lshl_b32 s6, s3, 1")
    a("v_add_u32 v16, s6, v16")
    a("v_xor_b32 v17, v16, v7")
    a("v_lshlrev_b32 v17, 4, v17")
    a("v_lshl_add_u32 v16, v16, 8, v17")
    a("v_bfe_u32 v17, v0, 3, 2")
    a("s_lshl_b32 s6, s3, 2")
    a("v_add_u32 v17, s6, v17")
    a("v_xor_b32 v17, v17, v8")
    a("v_lshlrev_b32 v17, 4, v17")
    a("v_lshl_add_u32 v18, v8, 8, v17")
    a("v_add_u32 v18, 2048, v18")
    a("s_mov_b32 s6, 0")
    a("s_mov_b32 s7, -1")
    a("v_cndmask_b32 v16, v16, v18, s[6:7]")
    a(f"v_add_u32 v16, {WQ_L:#x}, v16")
    a("v_and_b32 v17, 1, v6")
    a(f"v_mul_u32_u24 v17, {32*QSTR}, v17")
    a("v_lshl_add_u32 v17, v7, 4, v17")
    a("s_lshl_b32 s63, s3, 6")
    a("s_lshr_b32 s8, s60, 1")
    a("s_add_u32 s63, s63, s8")
    a(f"s_mul_i32 s63, s63, {QSTR}")
    a("s_lshl_b32 s8, s61, 9")
    a("s_add_u32 s63, s63, s8")
    a("s_lshl_b32 s8, s69, 8")
    a("s_add_u32 s63, s63, s8")
    a(f"s_add_u32 s63, s63, {QP:#x}")
    a("v_add_u32 v17, s63, v17")
    a(f"s_mul_i32 s64, s66, {HSTR}")
    a("s_lshl_b32 s8, s70, 9")
    a("s_add_u32 s64, s64, s8")
    a("s_lshl_b32 s8, s3, 12")
    a("s_add_u32 s64, s64, s8")
    a(f"s_add_u32 s64, s64, {HP-512:#x}")
    a("v_add_u32 v18, s64, v5")
    a("v_cndmask_b32 v4, v17, v18, s[6:7]")
    a("s_cmp_lt_u32 s66, 28")
    a("s_cselect_b32 s9, -1, 0")
    tagcalc()
    a("s_and_b32 s91, s91, 7")
    a("s_or_b32 s91, s91, s5")
    a("v_mov_b32 v113, s91")
    a("v_mov_b32 v115, s91")
    a("s_waitcnt vmcnt(0)")
    for aa in range(4):
        for eh in range(2):
            r = BF + 4 * aa + 2 * eh
            a(f"ds_read_b64_tr_b16 v[{r}:{r+1}], v3 offset:{eh*512 + aa*32}")
    for aa in range(4):
        r = BF + 16 + 2 * aa
        a(f"ds_read_b64_tr_b16 v[{r}:{r+1}], v2 offset:{aa*32}")
    for aa in range(4):
        a(f"s_waitcnt lgkmcnt({10-2*aa})")
        a(f"v_mfma_f32_16x16x32_bf16 v[{AC+4*aa}:{AC+4*aa+3}], v[{BF+4*aa}:{BF+4*aa+3}], v[{XF}:{XF+3}], 0")
    for aa in range(4):
        a(f"s_waitcnt lgkmcnt({3-aa})")
        a(f"v_mfma_f32_16x16x16_bf16 v[{AC+16+4*aa}:{AC+16+4*aa+3}], v[{BF+16+2*aa}:{BF+16+2*aa+1}], v[{XF+4}:{XF+5}], 0")
    a("s_mov_b32 exec_lo, 0x00ff00ff")
    a("s_mov_b32 exec_hi, 0x00ff00ff")
    for part in range(2):
        for aa in range(4):
            r = AC + 16 * part + 4 * aa
            a(f"ds_write_b128 v{1 if aa % 2 == 0 else 19}, v[{r}:{r+3}] offset:{part*2048 + (aa>>1)*128}")
    a("s_mov_b64 exec, 1")
    a("s_waitcnt lgkmcnt(0)")
    a("ds_add_u32 v10, v20")
    a("s_mov_b64 exec, -1")
    cnt_wait(0, "L_s1", 10, 21, 65)
    for j in range(4):
        a(f"ds_read_b128 v[{32+4*j}:{35+4*j}], v16 offset:{j*4096}")
    a("s_waitcnt lgkmcnt(2)")
    for e in range(4): a(f"v_add_f32 v{32+e}, v{32+e}, v{36+e}")
    a("s_waitcnt lgkmcnt(0)")
    for e in range(4): a(f"v_add_f32 v{40+e}, v{40+e}, v{44+e}")
    for e in range(4): a(f"v_add_f32 v{32+e}, v{32+e}, v{40+e}")
    a("v_cvt_pk_bf16_f32 v112, v32, v33")
    a("v_cvt_pk_bf16_f32 v114, v34, v35")
    a("v_mov_b32 v116, v4")
    a("s_mov_b32 s92, 0")
    a("s_mov_b32 exec_hi, s9")
    a("buffer_store_dwordx4 v[112:115], v116, s[44:47], 0 offen")
    a("s_mov_b64 exec, -1")
    stamp(1)
    a("s_branch L_helper2")

    a("L_stream:")
    a("v_lshlrev_b32 v1, 2, v6")
    a("v_xor_b32 v1, v1, v7")
    a("v_xor_b32 v2, 1, v1")
    a("v_xor_b32 v3, 2, v1")
    a("v_xor_b32 v4, 3, v1")
    a("v_lshlrev_b32 v8, 8, v6")
    for i in range(4):
        a(f"v_lshl_add_u32 v{1+i}, v{1+i}, 4, v8")
    a("s_lshl_b32 s7, s11, 18")
    for r in range(4):
        a(f"s_add_u32 s6, s3, {r if rot else 0}")
        a("s_and_b32 s6, s6, 3")
        a("s_lshl_b32 s6, s6, 12")
        a(f"s_add_u32 s{12+r}, s7, s6")
    a("s_mov_b32 s60, s12")
    a("s_mov_b32 s61, s12")
    a("s_lshl_b32 s62, s3, 15")
    a("s_waitcnt lgkmcnt(0)")
    if st2: stamp(3)
    srd(48, 18, 0x4000000)
    srd(52, 20, 0x4000000)
    a("s_load_dword s4, s[42:43], 0")
    if touch == 1:
        a("s_load_dword s88, s[20:21], s60")
        a("s_and_b32 s6, s2, 7")
        a("s_lshl_b32 s6, s6, 19")
        a("s_load_dword s89, s[24:25], s6")
        a("s_load_dword s90, s[32:33], 0")
        a("s_load_dword s91, s[30:31], 0")
        a("s_load_dword s92, s[34:35], 0")
        a("s_load_dword s93, s[36:37], 0")
        a(f"s_mov_b32 s6, {OG:#x}")
        a("s_load_dword s94, s[42:43], s6")
        a("s_load_dword s95, s[38:39], 0")
    if not early: a("s_barrier")
    if st2: stamp(4)

    nissued = [0]
    pos = {}
    covered = [0]
    Dcur = [D1]
    def throttle():
        D = Dcur[0]
        if D >= 63: return
        if nissued[0] - covered[0] > D - 1:
            a(f"s_waitcnt vmcnt({D-1})")
            covered[0] = nissued[0] - (D - 1)
    def issueK(tt):
        a(f"s_add_u32 m0, s62, {(tt & 7) * 4096}")
        for i in range(4):
            throttle()
            a(f"buffer_load_dwordx4 v{1+i}, s[48:51], s60 offen offset:{i*1024} {kvpol} lds")
            nissued[0] += 1
        pos[("k", tt)] = nissued[0]
        if tt < 15: a(f"s_add_u32 s60, s{12+((tt+1)&3)}, {(tt+1)*16384}")
    def vreg(tt, i):
        return 64 + 4 * (4 * (tt % 12) + i)
    def issueV(tt):
        for i in range(4):
            r = vreg(tt, i)
            throttle()
            a(f"buffer_load_dwordx4 v[{r}:{r+3}], v5, s[52:55], s61 offen offset:{i*1024} {kvpol}")
            nissued[0] += 1
            pos[("v", tt, i)] = nissued[0]
        pos[("v", tt)] = nissued[0]
        if tt < 15: a(f"s_add_u32 s61, s{12+((tt+1)&3)}, {(tt+1)*16384}")
    def waitfor(key):
        if pos[key] <= covered[0]: return
        n = min(nissued[0] - pos[key], 63)
        a(f"s_waitcnt vmcnt({n})")
        covered[0] = nissued[0] - n

    issueK(0)
    if early: a("s_barrier")
    if sprio: a(f"s_setprio {sprio}")
    srd(44, 42, 0x10000000)
    a("v_and_b32 v8, 3, v7")
    a("v_lshlrev_b32 v8, 10, v8")
    a("v_lshrrev_b32 v9, 2, v7")
    a("v_lshl_add_u32 v8, v9, 8, v8")
    a("v_add_u32 v8, s62, v8")
    a("v_xor_b32 v9, v6, v7")
    a("v_and_b32 v44, 3, v7")
    a("v_lshlrev_b32 v44, 8, v44")
    a("v_lshl_add_u32 v44, v6, 4, v44")
    a(f"v_add_u32 v44, {Q_L:#x}, v44")
    a("v_xor_b32 v45, 4, v9")
    a("v_xor_b32 v46, 8, v9")
    a("v_xor_b32 v47, 12, v9")
    a("v_lshl_add_u32 v6, v9, 4, v8")
    a("v_lshl_add_u32 v7, v45, 4, v8")
    a("v_lshl_add_u32 v9, v47, 4, v8")
    a("v_lshl_add_u32 v8, v46, 4, v8")
    a("s_mov_b32 s64, 0x00f000f0"); a("s_mov_b32 s65, 0x00f000f0")
    a("s_mov_b32 s66, 0x0f000f00"); a("s_mov_b32 s67, 0x0f000f00")
    a("s_mov_b32 s70, 0xf000f000"); a("s_mov_b32 s71, 0xf000f000")
    MASK = {1: "s[64:65]", 2: "s[66:67]", 3: "s[70:71]"}
    a("s_mov_b32 s8, 0x05040100")
    a("s_mov_b32 s9, 0x07060302")
    a(f"s_mov_b32 s10, {f32(CSC)}")
    a(f"v_mov_b32 v45, {C_L:#x}")
    a("v_mov_b32 v46, 1")
    srd(56, 34, 1024)
    a("s_and_b32 s6, s11, 31")
    a("s_lshr_b32 s6, s6, 1")
    a("s_lshl_b32 s6, s6, 5")
    a("s_and_b32 s7, s11, 1")
    a("s_lshl_b32 s7, s7, 3")
    a("s_add_u32 s69, s6, s7")
    a("s_lshl_b32 s68, s69, 1")
    a("v_and_b32 v12, 7, v0")
    a("v_lshlrev_b32 v12, 1, v12")
    tagcalc()
    seqno = [1]
    def tick():
        if seqno[0] == qtrig:
            cnt_add(16, 45, 46)
        seqno[0] += 1
    for tt in range(1, 8):
        issueK(tt); tick()
        if st2 and tt == 1: stamp(7)
        if st2 and tt == 3: stamp(2)
    a("buffer_load_ushort v10, v12, s[56:59], s68 offen")
    a("buffer_load_ushort v11, v12, s[56:59], s68 offen offset:32")
    nissued[0] += 2
    vn = [0]
    def nextV():
        if D3 and vn[0] >= 16 - n3: Dcur[0] = D3
        issueV(vn[0]); vn[0] += 1
        if vn[0] - 1 == trig:
            a(f"v_mov_b32 v1, {C_L:#x}")
            a("v_mov_b32 v2, 1")
            cnt_add(12, 1, 2)
    for tt in range(0, npre):
        nextV(); tick()
    stamp(1)
    cnt_wait(4, "L_wq", 45, 46, 63)
    if not st2: stamp(2)
    Dcur[0] = D2
    QFR, KT, DT, SD = 12, 28, 44, 48
    for j in range(4):
        a(f"ds_read_b128 v[{QFR+4*j}:{QFR+4*j+3}], v44 offset:{64*j}")
    a("s_waitcnt lgkmcnt(0)")
    def S(tt):
        waitfor(("k", tt))
        slot = tt & 7
        G = tt >> 1; t = G & 3; st = 2 * (G >> 2) + (tt & 1)
        dst = SD + 4 * st if t == 0 else DT
        for j in range(4):
            a(f"ds_read_b128 v[{KT+4*j}:{KT+4*j+3}], v{6+j} offset:{slot*4096}")
        for j in range(4):
            a(f"s_waitcnt lgkmcnt({3-j})")
            c = "0" if j == 0 else f"v[{dst}:{dst+3}]"
            a(f"v_mfma_f32_16x16x32_bf16 v[{dst}:{dst+3}], v[{KT+4*j}:{KT+4*j+3}], v[{QFR+4*j}:{QFR+4*j+3}], {c}")
        return (t, st)
    def Ssel(ts):
        t, st = ts
        if t != 0:
            for r in range(4):
                a(f"v_cndmask_b32 v{SD+4*st+r}, v{SD+4*st+r}, v{DT+r}, {MASK[t]}")
    for tt in range(8):
        ts = S(tt)
        issueK(tt + 8)
        Ssel(ts)
        if tt >= 2:
            Ssel(S(tt + 6))
    nextV(); Ssel(S(14))
    nextV(); Ssel(S(15))
    a(f"v_max3_f32 v44, v{SD}, v{SD+1}, v{SD+2}")
    a(f"v_max3_f32 v45, v{SD+3}, v{SD+4}, v{SD+5}")
    a(f"v_max3_f32 v46, v{SD+6}, v{SD+7}, v{SD+8}")
    a(f"v_max3_f32 v47, v{SD+9}, v{SD+10}, v{SD+11}")
    a(f"v_max3_f32 v44, v44, v{SD+12}, v{SD+13}")
    a(f"v_max3_f32 v45, v45, v{SD+14}, v{SD+15}")
    a(f"v_max3_f32 v44, v44, v46, v47")
    a(f"v_max_f32 v44, v44, v45")
    xlane("v_max_f32", 44, 45)
    a("v_mul_f32 v44, s10, v44")
    a("v_and_b32 v46, 3, v0")
    a("v_lshlrev_b32 v46, 4, v46")
    a("s_lshl_b32 s6, s3, 2")
    a(f"s_add_u32 s6, s6, {M_L:#x}")
    a("v_add_u32 v47, s6, v46")
    for i in range(16):
        a(f"v_fma_f32 v{SD+i}, v{SD+i}, s10, -v44")
    nextV()
    for i in range(16):
        a(f"v_exp_f32 v{SD+i}, v{SD+i}")
    a(f"v_add_f32 v28, v{SD}, v{SD+1}")
    a(f"v_add_f32 v29, v{SD+2}, v{SD+3}")
    a(f"v_add_f32 v30, v{SD+4}, v{SD+5}")
    a(f"v_add_f32 v31, v{SD+6}, v{SD+7}")
    for k in range(2):
        for q in range(4):
            a(f"v_add_f32 v{28+q}, v{28+q}, v{SD+8+4*k+q}")
    a("v_add_f32 v28, v28, v29")
    a("v_add_f32 v30, v30, v31")
    a("v_add_f32 v28, v28, v30")
    xlane("v_add_f32", 28, 29)
    a("s_mov_b64 exec, 15")
    a("ds_write_b32 v47, v44")
    a(f"ds_write_b32 v47, v28 offset:{L_L-M_L}")
    a("s_mov_b64 exec, -1")
    for i in range(8):
        a(f"v_cvt_pk_bf16_f32 v{SD+i}, v{SD+2*i}, v{SD+2*i+1}")
    a(f"v_mov_b32 v1, {C_L:#x}")
    a("v_mov_b32 v2, 1")
    a("s_waitcnt lgkmcnt(0)")
    cnt_add(8, 1, 2)
    if not st2: stamp(3)
    OA, AT, PT = 12, 44, 56
    def PV(G, last=False):
        t = G & 3; aa = G >> 2
        src = SD + 4 * aa
        if t != 0:
            for i in range(4):
                a(f"v_mov_b32_dpp v{AT+i}, v{src+i} row_shl:{4*t} row_mask:0xf bank_mask:0xf bound_ctrl:0")
            src = AT
        X, Y = 2 * G, 2 * G + 1
        def V(e, p):
            return vreg(X if e < 4 else Y, e & 3) + p
        if not last:
            waitfor(("v", Y))
            def perms(dd):
                p, sel = dd >> 1, ("s8" if (dd & 1) == 0 else "s9")
                tb = PT + 4 * (dd & 1)
                for q in range(4):
                    a(f"v_perm_b32 v{tb+q}, v{V(2*q+1, p)}, v{V(2*q, p)}, {sel}")
            def mf(dd):
                tb = PT + 4 * (dd & 1)
                c = "0" if G == 0 else f"v[{OA+4*dd}:{OA+4*dd+3}]"
                a(f"v_mfma_f32_16x16x32_bf16 v[{OA+4*dd}:{OA+4*dd+3}], v[{src}:{src+3}], v[{tb}:{tb+3}], {c}")
            perms(0)
            for dd in range(8):
                if dd + 1 < 8: perms(dd + 1)
                mf(dd)
        else:
            TB = vreg(4, 0)
            for q in range(4):
                key = ("v", X if q < 2 else Y, (2 * q + 1) & 3)
                waitfor(key)
                for dd in range(8):
                    p, sel = dd >> 1, ("s8" if (dd & 1) == 0 else "s9")
                    a(f"v_perm_b32 v{TB+4*dd+q}, v{V(2*q+1, p)}, v{V(2*q, p)}, {sel}")
            for dd in range(8):
                a(f"v_mfma_f32_16x16x32_bf16 v[{OA+4*dd}:{OA+4*dd+3}], v[{src}:{src+3}], v[{TB+4*dd}:{TB+4*dd+3}], v[{OA+4*dd}:{OA+4*dd+3}]")
    def factors():
        a(f"v_mov_b32 v1, {C_L:#x}")
        cnt_wait(8, "L_wml", 1, 2, 63, target=6)
        a("s_lshl_b32 s6, s3, 4")
        a(f"s_add_u32 s6, s6, {M_L:#x}")
        a("v_lshrrev_b32 v3, 5, v0")
        a("v_lshl_add_u32 v1, v3, 3, s6")
        a("ds_read_b64 v[6:7], v1")
        a("s_lshl_b32 s6, s3, 2")
        a(f"s_add_u32 s7, s6, {G_L+16:#x}")
        a("v_mov_b32 v1, s7")
        a("ds_read_b32 v8, v1")
        a(f"v_mov_b32 v1, {G_L:#x}")
        a("ds_read_b32 v4, v1")
        a(f"ds_read_b32 v9, v1 offset:{C_L+24-G_L}")
        a("v_and_b32 v2, 1, v0")
        a("v_lshlrev_b32 v2, 10, v2")
        a("v_lshl_add_u32 v2, v3, 16, v2")
        a("v_bfe_u32 v3, v0, 1, 4")
        a("v_lshl_add_u32 v2, v3, 4, v2")
        a("v_add_u32 v2, s6, v2")
        a("v_add_u32 v3, s62, v5")
        a("s_waitcnt lgkmcnt(0)")
        a("v_readfirstlane_b32 s92, v9")
        a("v_sub_f32 v6, v6, v8")
        a("v_sub_f32 v7, v7, v8")
        a("v_exp_f32 v6, v6")
        a("v_exp_f32 v7, v7")
        a("v_sub_f32 v9, 1.0, v4")
        a("v_mul_f32 v6, v6, v4")
        a("v_mul_f32 v7, v7, v4")
        a("v_lshlrev_b32 v10, 16, v10")
        a("v_lshlrev_b32 v11, 16, v11")
        a("v_mul_f32 v10, v10, v9")
        a("v_mul_f32 v11, v11, v9")
        a("s_and_b32 s6, s11, 0x1c")
        a("s_add_u32 s6, s6, s3")
        a("s_lshl_b32 s63, s6, 14")
        a("s_lshr_b32 s6, s11, 5")
        a("s_lshl_b32 s6, s6, 11")
        a("s_add_u32 s63, s63, s6")
        a("s_and_b32 s6, s11, 3")
        a("s_lshl_b32 s6, s6, 9")
        a("s_add_u32 s63, s63, s6")
        a(f"s_add_u32 s63, s63, {OG:#x}")
        a(f"v_mov_b32 v1, {C_L:#x}")
        a("v_mov_b32 v4, 1")
    G = 0
    while vn[0] < 16:
        if vn[0] >= 12 and G <= (vn[0] - 12) // 2:
            PV(G); G += 1
            continue
        nextV()
        k = 0
        while vn[0] < 16 and 2 * G + 1 <= vn[0] - 3 and G < 6 and k < 2:
            PV(G); G += 1; k += 1
    if not st2: stamp(4)
    while G < 4:
        PV(G); G += 1
    factors()
    while G < 7:
        PV(G); G += 1
    PV(7, last=True)
    a("s_mov_b64 exec, 0xffff")
    for dd in range(8):
        a(f"ds_write_b128 v3, v[{OA+4*dd}:{OA+4*dd+3}] offset:{dd*256}")
    a("s_mov_b64 exec, 1")
    a("ds_add_u32 v1, v4 offset:20")
    a("s_mov_b64 exec, -1")
    a("v_mov_b32 v49, s5")
    a("v_mov_b32 v51, s5")
    a(f"s_mov_b32 s60, {spin_max*4}")
    a("L_wo:")
    a("ds_read_b32 v44, v1 offset:20")
    a("ds_read2st64_b32 v[52:53], v2 offset0:0 offset1:1")
    a("ds_read2st64_b32 v[54:55], v2 offset0:2 offset1:3")
    a("ds_read2st64_b32 v[56:57], v2 offset0:128 offset1:129")
    a("ds_read2st64_b32 v[58:59], v2 offset0:130 offset1:131")
    a("s_waitcnt lgkmcnt(4)")
    a("v_cmp_gt_u32 vcc, 4, v44")
    a("s_sub_u32 s60, s60, 1")
    a("s_cbranch_scc1 L_wo_go")
    a("s_cbranch_vccnz L_wo")
    a("L_wo_go:")
    a("s_waitcnt lgkmcnt(2)")
    for k in range(4):
        a(f"v_mul_f32 v{52+k}, v{52+k}, v6")
    a("s_waitcnt lgkmcnt(0)")
    for k in range(4):
        a(f"v_fma_f32 v{52+k}, v{56+k}, v7, v{52+k}")
    for k in range(4):
        a(f"v_mov_b32 v{56+k}, v{52+k}")
    for k in range(4):
        a(f"v_permlane32_swap_b32 v{52+k}, v{56+k}")
    for k in range(4):
        a(f"v_add_f32 v{52+k}, v{52+k}, v{56+k}")
    a("v_cvt_pk_bf16_f32 v48, v52, v53")
    a("v_cvt_pk_bf16_f32 v50, v54, v55")
    a("s_mov_b64 exec, 0xffffffff")
    a("s_cmp_lg_u32 s92, 0")
    a("s_cbranch_scc1 L_o_slow")
    a("buffer_store_dwordx4 v[48:51], v5, s[44:47], s63 offen")
    a("L_o_done:")
    a("s_mov_b64 exec, -1")
    stamp(5)
    a("s_cmp_lg_u32 s3, 0")
    a("s_cbranch_scc1 L_end")
    srd(48, 38, 8192)
    a("s_lshr_b32 s6, s11, 5")
    a("s_lshl_b32 s60, s11, 12")
    a(f"s_add_u32 s60, s60, {PG:#x}")
    a("s_lshl_b32 s6, s6, 9")
    a("s_add_u32 s6, s6, s69")
    a("s_lshl_b32 s61, s6, 1")
    a("v_lshlrev_b32 v2, 1, v0")
    a(f"s_mov_b32 s62, {spin_max}")
    a("L_fin_poll:")
    for t in range(4):
        a(f"buffer_load_dwordx4 v[{12+4*t}:{15+4*t}], v5, s[44:47], s60 offen offset:{t*1024} sc1")
    a("s_waitcnt vmcnt(2)")
    a("v_xor_b32 v28, s5, v13")
    a("v_xor_b32 v29, s5, v15")
    a("v_xor_b32 v30, s5, v17")
    a("v_xor_b32 v31, s5, v19")
    a("v_add_f32 v12, v12, v16")
    a("v_add_f32 v14, v14, v18")
    a("v_or3_b32 v28, v28, v29, v30")
    a("s_waitcnt vmcnt(0)")
    a("v_xor_b32 v29, s5, v21")
    a("v_xor_b32 v30, s5, v23")
    a("v_xor_b32 v32, s5, v25")
    a("v_xor_b32 v33, s5, v27")
    a("v_add_f32 v20, v20, v24")
    a("v_add_f32 v22, v22, v26")
    a("v_or3_b32 v28, v28, v31, v29")
    a("v_or3_b32 v30, v30, v32, v33")
    a("v_add_f32 v12, v12, v20")
    a("v_add_f32 v14, v14, v22")
    a("v_or_b32 v28, v28, v30")
    a("v_cmp_ne_u32 vcc, 0, v28")
    a("s_sub_u32 s62, s62, 1")
    a("s_cbranch_scc1 L_fin_go")
    a("s_cbranch_vccnz L_fin_poll")
    a("L_fin_go:")
    prs = ((12, 13), (14, 15))
    for r, tmp in prs: a(f"v_add_f32_dpp v{r}, v{r}, v{r} row_ror:8 row_mask:0xf bank_mask:0xf")
    for r, tmp in prs: a(f"v_mov_b32 v{tmp}, v{r}")
    for r, tmp in prs: a(f"v_permlane16_swap_b32 v{r}, v{tmp}")
    for r, tmp in prs: a(f"v_add_f32 v{r}, v{r}, v{tmp}")
    for r, tmp in prs: a(f"v_mov_b32 v{tmp}, v{r}")
    for r, tmp in prs: a(f"v_permlane32_swap_b32 v{r}, v{tmp}")
    a("v_add_f32 v12, v12, v13")
    a("v_add_f32 v14, v14, v15")
    a("v_add_f32 v12, v12, v10")
    a("v_add_f32 v14, v14, v11")
    a("v_cvt_pk_bf16_f32 v12, v12, v14")
    a("s_mov_b64 exec, 0xff")
    a(f"buffer_store_short v12, v2, s[48:51], s61 offen {outpol}")
    a(f"buffer_store_short_d16_hi v12, v2, s[48:51], s61 offen offset:32 {outpol}")
    a("s_cmp_lg_u32 s2, 0")
    a("s_cbranch_scc1 L_fin_done")
    a("s_mov_b64 exec, 1")
    a("v_mov_b32 v3, s5")
    a("v_mov_b32 v4, 0")
    a("buffer_store_dword v3, v4, s[44:47], 0 offen sc1")
    a("L_fin_done:")
    a("s_mov_b64 exec, -1")
    if pad:
        if padwg >= 0:
            a(f"s_cmp_lg_u32 s2, {padwg}")
            a("s_cbranch_scc1 L_end")
        a("L_pad:")
        a("s_memrealtime s[74:75]")
        a("s_waitcnt lgkmcnt(0)")
        a("s_sub_u32 s76, s74, s72")
        a(f"s_cmp_lt_u32 s76, {pad*100}")
        a("s_cbranch_scc1 L_pad")
    stamp(6)
    stamp_store(0)
    a("s_endpgm")

    a("L_o_slow:")
    a("buffer_store_dwordx4 v[48:51], v5, s[44:47], s63 offen sc1")
    a("s_branch L_o_done")

    a("L_helper2:")
    if touch == 2:
        a("s_cmp_lg_u32 s3, 2")
        a("s_cbranch_scc1 L_notouch")
        a("s_lshl_b32 s6, s11, 18")
        a("s_load_dword s88, s[20:21], s6")
        a("s_and_b32 s6, s2, 7")
        a("s_lshl_b32 s6, s6, 19")
        a("s_load_dword s89, s[24:25], s6")
        a("s_load_dword s90, s[32:33], 0")
        a("s_load_dword s91, s[30:31], 0")
        a("s_load_dword s92, s[34:35], 0")
        a(f"s_mov_b32 s6, {OG:#x}")
        a("s_load_dword s94, s[42:43], s6")
        a("s_load_dword s95, s[38:39], 0")
        a("s_waitcnt lgkmcnt(0)")
        a("L_notouch:")
    a("s_cmp_lg_u32 s3, 3")
    a("s_cbranch_scc1 L_nogate")
    srd(48, 36, 1024)
    a("s_lshr_b32 s60, s11, 5")
    a("s_lshl_b32 s62, s60, 10")
    a("buffer_load_dwordx4 v[32:35], v5, s[52:55], s62 offen")
    a("buffer_load_dwordx4 v[36:39], v5, s[48:51], 0 offen")
    a("v_mov_b32 v40, 0")
    a(f"v_mov_b32 v2, {G_L:#x}")
    a("s_waitcnt vmcnt(0)")
    for i in range(4):
        a(f"v_dot2_f32_bf16 v40, v{32+i}, v{36+i}, v40")
    a("v_add_f32_dpp v40, v40, v40 quad_perm:[1,0,3,2] row_mask:0xf bank_mask:0xf")
    a("v_add_f32_dpp v40, v40, v40 quad_perm:[2,3,0,1] row_mask:0xf bank_mask:0xf")
    xlane("v_add_f32", 40, 41)
    a(f"v_mul_f32 v40, {f32(-LOG2E)}, v40")
    a("v_exp_f32 v40, v40")
    a("v_add_f32 v40, 1.0, v40")
    a("v_rcp_f32 v40, v40")
    a("s_mov_b64 exec, 1")
    a("ds_write_b32 v2, v40")
    a("s_waitcnt lgkmcnt(0)")
    a("ds_add_u32 v10, v20 offset:8")
    a("s_and_b32 s6, s11, 31")
    a("s_cmp_lg_u32 s6, 0")
    a("s_cbranch_scc1 L_gate_done")
    a("v_sub_f32 v42, 1.0, v40")
    a("v_mov_b32 v43, s5")
    a("v_mov_b32 v44, 0")
    a("s_lshl_b32 s6, s60, 3")
    a(f"s_add_u32 s6, s6, {GG:#x}")
    a("buffer_store_dwordx2 v[42:43], v44, s[44:47], s6 offen sc1")
    a("L_gate_done:")
    a("s_mov_b64 exec, -1")
    a("L_nogate:")
    a("s_and_b32 s62, s11, 0xfc")
    a("s_add_u32 s62, s62, s3")
    a(f"s_mul_i32 s62, s62, {QSTR}")
    a(f"s_add_u32 s62, s62, {QP:#x}")
    a("s_lshl_b32 s6, s3, 8")
    a(f"s_add_u32 s6, s6, {Q_L:#x}")
    a("v_and_b32 v2, 31, v0")
    a("v_lshl_add_u32 v2, v2, 3, s6")
    cnt_wait(16, "L_qt", 10, 21, 65, sleep=4, target=1)
    a(f"s_mov_b32 s65, {spin_max}")
    a(f"s_mov_b32 s93, {qfail}")
    def republish(lbl):
        a("s_cmp_lg_u32 s92, 0")
        a(f"s_cbranch_scc1 {lbl}")
        a("s_mov_b32 s92, 1")
        a("s_mov_b32 exec_hi, s9")
        a("buffer_store_dwordx4 v[112:115], v116, s[44:47], 0 offen sc1")
        a("s_mov_b64 exec, 1")
        a("ds_write_b32 v10, v20 offset:24")
        a("s_mov_b64 exec, -1")
        a(f"{lbl}:")
    a("L_qp:")
    a("buffer_load_dwordx4 v[32:35], v5, s[44:47], s62 offen sc1")
    a("buffer_load_dwordx4 v[36:39], v5, s[44:47], s62 offen offset:1024 sc1")
    a("s_waitcnt vmcnt(0)")
    for k in range(4):
        a(f"v_xor_b32 v{33+2*k}, s91, v{33+2*k}")
    a("v_or3_b32 v33, v33, v35, v37")
    a("v_or_b32 v33, v33, v39")
    a("v_cmp_lt_u32 vcc, 7, v33")
    a("s_cbranch_vccz L_qp_go")
    if qsleep: a(f"s_sleep {qsleep}")
    a("s_sub_u32 s93, s93, 1")
    a("s_cbranch_scc0 L_qp")
    a("s_mov_b32 s93, 0")
    republish("L_rp1")
    a("s_sub_u32 s65, s65, 1")
    a("s_cbranch_scc0 L_qp")
    a("L_qp_go:")
    a("v_cmp_ne_u32 vcc, 0, v33")
    if not force_slow: a("s_cbranch_vccz L_rp2")
    republish("L_rp2")
    def unpack_sum(nk):
        for k in range(nk):
            for h in range(2):
                src = 32 + 4 * k + 2 * h
                if k == 0:
                    a(f"v_lshlrev_b32 v{12+2*h}, 16, v{src}")
                    a(f"v_and_b32 v{13+2*h}, 0xffff0000, v{src}")
                else:
                    a(f"v_lshlrev_b32 v{src+1}, 16, v{src}")
                    a(f"v_and_b32 v{src}, 0xffff0000, v{src}")
                    a(f"v_add_f32 v{12+2*h}, v{12+2*h}, v{src+1}")
                    a(f"v_add_f32 v{13+2*h}, v{13+2*h}, v{src}")
        for e in range(4): a(f"v_mov_b32 v{16+e}, v{12+e}")
        for e in range(4): a(f"v_permlane32_swap_b32 v{12+e}, v{16+e}")
        for e in range(4): a(f"v_add_f32 v{12+e}, v{12+e}, v{16+e}")
    unpack_sum(2)
    a("v_cvt_pk_bf16_f32 v12, v12, v13")
    a("v_cvt_pk_bf16_f32 v13, v14, v15")
    a("ds_write_b64 v2, v[12:13]")
    a("s_waitcnt lgkmcnt(0)")
    cnt_add(4, 10, 20)
    a(f"s_setprio {hprio}")
    a(f"s_mov_b32 s65, {spin_max*4}")
    a("L_qa:")
    a("ds_read_b32 v21, v10 offset:4")
    a("ds_read_b32 v22, v10 offset:24")
    a("s_waitcnt lgkmcnt(0)")
    a("v_cmp_ne_u32 vcc, 0, v22")
    a("s_cbranch_vccz L_rp3")
    republish("L_rp3")
    a("v_cmp_gt_u32 vcc, 4, v21")
    a("s_cbranch_vccz L_qa_go")
    a("s_sleep 2")
    a("s_sub_u32 s65, s65, 1")
    a("s_cbranch_scc0 L_qa")
    a("L_qa_go:")
    stamp(2)
    a("s_lshr_b32 s60, s2, 5")
    a("s_and_b32 s61, s2, 7")
    a("s_lshl_b32 s61, s61, 2")
    a("s_bfe_u32 s6, s2, 0x20003")
    a("s_add_u32 s61, s61, s6")
    srd(48, 24, 0x400000)
    srd(56, 32, 1792 * 1024)
    srd(52, 30, 3584)
    a("s_lshl_b32 s64, s60, 7")
    a("s_lshl_b32 s62, s61, 17")
    a("s_add_u32 s62, s62, s64")
    a("s_lshl_b32 s6, s3, 15")
    a("s_add_u32 s62, s62, s6")
    a("s_lshl_b32 s66, s61, 16")
    a("s_add_u32 s66, s66, s64")
    a("s_lshl_b32 s6, s3, 14")
    a("s_add_u32 s66, s66, s6")
    a(f"s_mov_b32 s90, {WO_L:#x}")
    a("v_lshrrev_b32 v24, 3, v0")
    a("v_and_b32 v12, 2, v24")
    a("v_xor_b32 v12, v12, v8")
    a("v_lshlrev_b32 v24, 10, v24")
    a("v_lshl_add_u32 v24, v12, 4, v24")
    a("v_xor_b32 v25, 64, v24")
    a(f"v_add_u32 v26, {2*(8192-1024)}, v24")
    a(f"v_add_u32 v27, {3*(8192-1024)}, v25")
    a(f"v_add_u32 v25, {8192-1024}, v25")
    a("v_bfe_u32 v12, v0, 3, 2")
    a("v_lshlrev_b32 v12, 5, v12")
    a(f"v_add3_u32 v120, v11, v12, s90")
    a("v_xor_b32 v121, 32, v120")
    a("v_xor_b32 v122, 64, v120")
    a("v_xor_b32 v123, 96, v120")
    a("v_bfe_u32 v12, v7, 2, 1")
    a("v_mul_u32_u24 v4, 144, v12")
    a("v_lshl_add_u32 v4, v6, 4, v4")
    a("s_mul_i32 s6, s3, 288")
    a(f"s_add_u32 s6, s6, {HA_L:#x}")
    a("v_add_u32 v4, s6, v4")
    a("v_bfe_u32 v12, v0, 3, 2")
    a("v_lshlrev_b32 v53, 3, v12")
    a("v_mul_u32_u24 v1, 144, v8")
    a("s_lshl_b32 s6, s3, 5")
    a(f"s_add_u32 s6, s6, {HA_L:#x}")
    a("v_add3_u32 v1, v1, v53, s6")
    a("v_lshlrev_b32 v52, 3, v8")
    a("v_and_b32 v12, 1, v6")
    a("v_lshlrev_b32 v11, 10, v12")
    a("s_lshl_b32 s69, s3, 11")
    a("s_lshl_b32 s6, s61, 5")
    a("s_add_u32 s69, s69, s6")
    a(f"s_add_u32 s69, s69, {LG:#x}")
    a("s_lshl_b32 s70, s61, 14")
    a("s_lshl_b32 s6, s3, 12")
    a("s_add_u32 s70, s70, s6")
    a(f"s_mul_i32 s63, s61, {HSTR}")
    a("s_add_u32 s63, s63, s6")
    a(f"s_add_u32 s63, s63, {HP:#x}")
    a(f"s_add_u32 s70, s70, {OG:#x}")
    a("s_lshl_b32 s6, s3, 15")
    a(f"s_add_u32 s6, s6, {AS_OFF:#x}")
    a("v_lshrrev_b32 v13, 5, v0")
    a("v_and_b32 v14, 31, v0")
    a("v_mul_u32_u24 v13, 272, v13")
    a("v_lshl_add_u32 v13, v14, 3, v13")
    a("v_add_u32 v2, s6, v13")
    a("v_mul_u32_u24 v13, 272, v8")
    a("v_lshl_add_u32 v13, v6, 4, v13")
    a("v_add_u32 v58, s6, v13")
    a("v_lshlrev_b32 v59, 17, v12")
    a("v_lshrrev_b32 v12, 3, v7")
    a("v_lshl_add_u32 v59, v12, 12, v59")
    a("v_lshl_add_u32 v59, v8, 4, v59")
    a("s_lshl_b32 s71, s3, 18")
    a("s_lshl_b32 s6, s60, 14")
    a("s_add_u32 s71, s71, s6")
    a("s_lshl_b32 s6, s61, 7")
    a("s_add_u32 s71, s71, s6")
    a(f"s_add_u32 s71, s71, {PG:#x}")
    a("s_add_u32 s8, s71, 8192")
    if no_h: a("s_branch L_nohact")
    a("s_cmp_ge_u32 s61, 28")
    a("s_cbranch_scc1 L_nohact")
    a("s_lshl_b32 s6, s61, 7")
    a("s_lshl_b32 s7, s3, 5")
    a("s_add_u32 s6, s6, s7")
    a("buffer_load_dwordx2 v[54:55], v53, s[52:55], s6 offen")
    a(f"s_mov_b32 s64, {GG:#x}")
    a(f"s_mov_b32 s65, {spin_max}")
    a("L_hp:")
    for k in range(4):
        a(f"buffer_load_dwordx4 v[{32+4*k}:{35+4*k}], v5, s[44:47], s63 offen offset:{k*1024} sc1")
    a("buffer_load_dwordx2 v[56:57], v52, s[44:47], s64 offen sc1")
    a("s_waitcnt vmcnt(0)")
    for k in range(8):
        a(f"v_xor_b32 v{33+2*k}, s5, v{33+2*k}")
    a("v_xor_b32 v48, s5, v57")
    a("v_or3_b32 v33, v33, v35, v37")
    a("v_or3_b32 v39, v39, v41, v43")
    a("v_or3_b32 v45, v45, v47, v48")
    a("v_or3_b32 v33, v33, v39, v45")
    a("v_cmp_lt_u32 vcc, 7, v33")
    a("s_cbranch_vccz L_hp_go")
    a("s_sleep 16")
    a("s_sub_u32 s65, s65, 1")
    a("s_cbranch_scc0 L_hp")
    a("L_hp_go:")
    unpack_sum(4)
    a("v_lshlrev_b32 v16, 16, v54")
    a("v_and_b32 v17, 0xffff0000, v54")
    a("v_lshlrev_b32 v18, 16, v55")
    a("v_and_b32 v19, 0xffff0000, v55")
    for e in range(4): a(f"v_add_f32 v{12+e}, v{12+e}, v{16+e}")
    for e in range(4): a(f"v_max_f32 v{12+e}, 0, v{12+e}")
    for e in range(4): a(f"v_mul_f32 v{16+e}, v{12+e}, v56")
    for e in range(4): a(f"v_mul_f32 v{12+e}, v{12+e}, v{16+e}")
    a("v_cvt_pk_bf16_f32 v12, v12, v13")
    a("v_cvt_pk_bf16_f32 v13, v14, v15")
    a("ds_write_b64 v1, v[12:13]")
    a("L_nohact:")
    a("s_cmp_lg_u32 s3, 0")
    a("s_cbranch_scc1 L_nolse")
    cnt_wait(8, "L_hml", 10, 21, 65, sleep=8, target=5)
    a("v_lshlrev_b32 v12, 4, v9")
    a(f"v_add_u32 v12, {M_L:#x}, v12")
    a("ds_read_b128 v[16:19], v12")
    a(f"ds_read_b128 v[32:35], v12 offset:{L_L-M_L}")
    a("s_and_b32 s6, s11, 0xfc")
    a("s_lshl_b32 s6, s6, 5")
    a("s_and_b32 s7, s11, 3")
    a("s_lshl_b32 s7, s7, 3")
    a("s_add_u32 s6, s6, s7")
    a(f"s_add_u32 s6, s6, {LG:#x}")
    a("v_lshlrev_b32 v13, 5, v9")
    a("s_waitcnt lgkmcnt(0)")
    a("v_max3_f32 v14, v16, v17, v18")
    a("v_max_f32 v14, v14, v19")
    for w in range(4): a(f"v_sub_f32 v{16+w}, v{16+w}, v14")
    for w in range(4): a(f"v_exp_f32 v{16+w}, v{16+w}")
    a("v_mul_f32 v36, v16, v32")
    for w in range(1, 4): a(f"v_fma_f32 v36, v{16+w}, v{32+w}, v36")
    a("v_log_f32 v36, v36")
    a("v_mov_b32 v15, s5")
    a("v_add_f32 v14, v14, v36")
    a("s_mov_b64 exec, 15")
    a("s_cmp_lg_u32 s92, 0")
    a("s_cbranch_scc1 L_lse_slow")
    a("buffer_store_dwordx2 v[14:15], v13, s[44:47], s6 offen")
    a("s_branch L_lse_done")
    a("L_lse_slow:")
    a("buffer_store_dwordx2 v[14:15], v13, s[44:47], s6 offen sc1")
    a("L_lse_done:")
    a("s_mov_b64 exec, -1")
    a("s_sub_u32 s6, s6, s7")
    a(f"s_mov_b32 s65, {spin_max}")
    a("L_lp:")
    a("s_sleep 8")
    a("buffer_load_dwordx4 v[28:31], v13, s[44:47], s6 offen sc1")
    a("buffer_load_dwordx4 v[32:35], v13, s[44:47], s6 offen offset:16 sc1")
    a("s_waitcnt vmcnt(0)")
    for k in range(4):
        a(f"v_xor_b32 v{29+2*k}, s5, v{29+2*k}")
    a("v_or3_b32 v29, v29, v31, v33")
    a("v_or_b32 v29, v29, v35")
    a("v_cmp_ne_u32 vcc, 0, v29")
    a("s_sub_u32 s65, s65, 1")
    a("s_cbranch_scc1 L_lp_go")
    a("s_cbranch_vccnz L_lp")
    a("L_lp_go:")
    a("v_max3_f32 v44, v28, v30, v32")
    a("v_max_f32 v44, v44, v34")
    for k in range(4):
        a(f"v_sub_f32 v{48+k}, v{28+2*k}, v44")
    for k in range(4):
        a(f"v_exp_f32 v{48+k}, v{48+k}")
    a("v_add_f32 v48, v48, v49")
    a("v_add_f32 v50, v50, v51")
    a("v_add_f32 v48, v48, v50")
    a("v_log_f32 v48, v48")
    a("v_lshlrev_b32 v12, 2, v9")
    a(f"v_add_u32 v12, {G_L+16:#x}, v12")
    a("v_add_f32 v48, v48, v44")
    a("s_mov_b64 exec, 15")
    a("ds_write_b32 v12, v48")
    a("s_mov_b64 exec, 1")
    a("ds_add_u32 v10, v20 offset:8")
    a("s_mov_b64 exec, -1")
    a("L_nolse:")
    cnt_wait(12, "L_trig", 10, 21, 65, sleep=2, target=ttarget)
    if no_wo: a("s_branch L_now2")
    a("s_mov_b32 m0, s67")
    a("s_nop 0")
    for i in range(4):
        a(f"buffer_load_dwordx4 v{24+i}, s[48:51], s62 offen offset:{i*1024} {wpol} lds")
    a("s_cmp_ge_u32 s61, 28")
    a("s_cbranch_scc1 L_now2")
    a("s_mov_b32 m0, s68")
    a("s_nop 0")
    for i in range(2):
        a(f"buffer_load_dwordx4 v{24+i}, s[56:59], s66 offen offset:{i*1024} {wpol} lds")
    a("L_now2:")
    for k in range(4):
        a(f"v_mov_b32 v{65+2*k}, s5")
    a("v_add_u32 v9, 1088, v2")
    a("v_mov_b32 v36, 1")
    stamp(3)
    WOF, W2F, AF, ACC = 128, 192, 72, 96
    for k in range(4):
        a(f"v_mov_b32 v{60+k}, 0")
    a("s_waitcnt vmcnt(0)")
    cnt_add(0, 10, 36)
    def p2_loads():
        for k in range(4):
            a(f"buffer_load_dwordx4 v[{12+4*k}:{15+4*k}], v5, s[44:47], s70 offen offset:{k*1024} sc1")
    cnt_wait(0, "L_s2", 10, 37, 65, sleep=1, target=8)
    stamp(6)
    for j in range(4):
        for aa in range(4):
            for eh in range(2):
                r = WOF + 16 * j + 4 * aa + 2 * eh
                a(f"ds_read_b64_tr_b16 v[{r}:{r+1}], v{120+aa} offset:{j*4096 + eh*512}")
        a("s_waitcnt lgkmcnt(4)")
    p2_loads()
    a("s_cmp_ge_u32 s61, 28")
    a("s_cbranch_scc1 L_nomlp")
    for j in range(2):
        for aa in range(4):
            for eh in range(2):
                r = W2F + 16 * j + 4 * aa + 2 * eh
                a(f"ds_read_b64_tr_b16 v[{r}:{r+1}], v{120+aa} offset:{W2_L-WO_L + j*4096 + eh*512}")
        a("s_waitcnt lgkmcnt(4)")
    a("ds_read_b128 v[88:91], v4")
    a("ds_read_b128 v[92:95], v4 offset:64")
    a("s_waitcnt lgkmcnt(0)")
    for j in range(2):
        for aa in range(4):
            c = "0" if j == 0 else f"v[{ACC+4*aa}:{ACC+4*aa+3}]"
            a(f"v_mfma_f32_16x16x32_bf16 v[{ACC+4*aa}:{ACC+4*aa+3}], v[{88+4*j}:{91+4*j}], v[{W2F+16*j+4*aa}:{W2F+16*j+4*aa+3}], {c}")
    for aa in range(4):
        a(f"v_mov_b32 v{60+aa}, v{ACC+4*aa}")
    a("L_nomlp:")
    a(f"s_mov_b32 s64, {spin_max}")
    stamp(4)
    a("s_branch L_p2_body")
    a("L_p2_poll:")
    p2_loads()
    a("L_p2_body:")
    for k in range(4):
        a(f"s_waitcnt vmcnt({3-k})")
        va = "v2" if k < 2 else "v9"
        o = (k & 1) * 136
        a(f"ds_write2_b32 {va}, v{12+4*k}, v{14+4*k} offset0:{o} offset1:{o+1}")
        a(f"v_xor_b32 v{28+2*k}, s5, v{13+4*k}")
        a(f"v_xor_b32 v{29+2*k}, s5, v{15+4*k}")
    a("v_or3_b32 v28, v28, v29, v30")
    a("v_or3_b32 v31, v31, v32, v33")
    a("v_or3_b32 v28, v28, v34, v35")
    a("v_or_b32 v28, v28, v31")
    a("v_cmp_ne_u32 vcc, 0, v28")
    a("s_sub_u32 s64, s64, 1")
    a("s_waitcnt lgkmcnt(0)")
    a("s_cbranch_scc1 L_p2_go")
    a("s_cbranch_vccnz L_p2_poll")
    a("L_p2_go:")
    for j in range(4):
        a(f"ds_read_b128 v[{AF+4*j}:{AF+4*j+3}], v58 offset:{j*64}")
    for j in range(4):
        a(f"s_waitcnt lgkmcnt({3-j})")
        for aa in range(4):
            c = "0" if j == 0 else f"v[{ACC+4*aa}:{ACC+4*aa+3}]"
            a(f"v_mfma_f32_16x16x32_bf16 v[{ACC+4*aa}:{ACC+4*aa+3}], v[{AF+4*j}:{AF+4*j+3}], v[{WOF+16*j+4*aa}:{WOF+16*j+4*aa+3}], {c}")
    a("s_mov_b64 exec, 0xffffffff")
    for aa in range(4):
        a(f"v_add_f32 v{60+aa}, v{60+aa}, v{ACC+4*aa}")
        a(f"v_add_f32 v{48+aa}, v{ACC+4*aa+1}, v{ACC+4*aa+2}")
        a(f"v_add_f32 v{60+aa}, v{60+aa}, v{ACC+4*aa+3}")
        a(f"v_add_f32 v{64+2*aa}, v{60+aa}, v{48+aa}")
        if aa == 1: a("buffer_store_dwordx4 v[64:67], v59, s[44:47], s71 offen sc1")
    a("buffer_store_dwordx4 v[68:71], v59, s[44:47], s8 offen sc1")
    a("s_mov_b64 exec, -1")
    stamp(5)
    if stamps:
        a("s_add_u32 s3, s3, 1")
        stamp_store("s3")
    a("L_end:")
    a("s_endpgm")
    a.raw('.section .rodata,"a"')
    a.raw(".p2align 6")
    a.raw(f".amdhsa_kernel {NAME}_kernel")
    a.raw("  .amdhsa_next_free_vgpr 256")
    a.raw("  .amdhsa_next_free_sgpr 96")
    a.raw("  .amdhsa_accum_offset 256")
    a.raw("  .amdhsa_group_segment_fixed_size 0")
    a.raw("  .amdhsa_kernarg_size 112")
    a.raw("  .amdhsa_user_sgpr_count 2")
    a.raw("  .amdhsa_user_sgpr_kernarg_segment_ptr 1")
    a.raw("  .amdhsa_system_sgpr_workgroup_id_x 1")
    a.raw(".end_amdhsa_kernel")
    return a.text()

if __name__ == "__main__":
    out = sys.argv[1]
    kw = json.loads(sys.argv[2]) if len(sys.argv) > 2 else {}
    open(out, "w").write(gen(**kw))
```

```python
import sys, json, math, struct
from asmdsl import Asm
NAME = "gated_mix__gqa_block_cached__dense_activation_squared_relu__decode"

GG, LG = 0x3000, 0x10000
QP, HP, OG, PG = 0x100000, 0x80000, 0x200000, 0x300000
STAMP = 0x8000000
def f32(x): return "0x%08x" % struct.unpack("<I", struct.pack("<f", x))[0]
CSC = math.log2(math.e) / math.sqrt(128.0)
LOG2E = math.log2(math.e)
HEADER = open("cdna_kernels/" + NAME + ".s.ref").read().split("; Override launch geometry")[0]

def gen(stamps=False, kvpol="nt", wpol="nt", spin_max=400000, D1=6, D2=6, qsleep=4, qtrig=6,
        trig=15, npre=4, rot=False, qfail=5, force_slow=False, pf=0, lpol=None, wprio=0, tprio=1, wsleep=1, fsleep=0, Dhi=0, nhi=128, p2sleep=2, pst='sc1', pld='sc1', sel=False, fwait=False, ttarget=4, early=True, st2=False, spread=False, estpol='sc1', ostpol='sc1', D3=0, n3=4, pad=0, padwg=-1, amap=1, hprio=0, sprio=2, w2early=False, outpol="", touch=0, no_h=False, no_wo=False, no_qp=False, no_st=False, no_gate=False):
    a = Asm()
    if lpol is None: lpol = wpol
    NST = 8
    QSTR, HSTR = (67584, 540672) if spread else (2048, 16384)
    QP, HP = (0x1000000, 0x3000000) if spread else (0x100000, 0x80000)
    WQ_L, W1_L = 0x20000, 0x24000
    WO_L, W2_L = WQ_L, W1_L
    Q_L, M_L, L_L, G_L, C_L, HA_L = 0x26000, 0x26400, 0x26440, 0x26480, 0x264c0, 0x26500
    LDS_TOTAL = HA_L + 8 * 144
    AS_OFF = 0x1000
    a.raw(HEADER.rstrip())
    a.raw(f"; @launch grid=(256,1,1) block=(512,1,1) lds={LDS_TOTAL}")
    a.raw('.amdgcn_target "amdgcn-amd-amdhsa--gfx950"')
    a.raw(".text")
    a.raw(f".globl {NAME}_kernel")
    a.raw(".p2align 8")
    a.raw(f".type {NAME}_kernel,@function")
    a.label(f"{NAME}_kernel")

    def srd(d, base, size):
        a(f"s_mov_b32 s{d}, s{base}")
        a(f"s_mov_b32 s{d+1}, s{base+1}")
        a(f"s_mov_b32 s{d+2}, {size:#x}")
        a(f"s_mov_b32 s{d+3}, 0x00020000")
    def stamp(i, force=False):
        if stamps and (stamps != "min" or force):
            a(f"s_memrealtime s[{72+2*i}:{73+2*i}]")
            a("s_waitcnt lgkmcnt(0)")
    def stamp_store(slot):
        if not stamps: return
        a(f"s_lshl_b32 s6, s2, 3")
        a(f"s_add_u32 s6, s6, {slot}")
        a(f"s_mul_i32 s6, s6, {NST*8}")
        a(f"s_add_u32 s6, s6, {STAMP:#x}")
        a("s_mov_b64 exec, 1")
        a("v_mov_b32 v1, 0")
        for i in range(0, NST, 2):
            for k in range(4):
                a(f"v_mov_b32 v{4+k}, s{72+2*i+k}")
            a(f"buffer_store_dwordx4 v[4:7], v1, s[44:47], s6 offen offset:{i*8}")
            a("s_nop 1")
        a("s_mov_b64 exec, -1")
    def tagcalc():
        a("s_waitcnt lgkmcnt(0)")
        a("s_and_b32 s5, s4, 0xfffffff8")
        a("s_add_u32 s5, s5, 0x9abcde8")
    def xlane(op, r, tmp):
        a(f"{op}_dpp v{r}, v{r}, v{r} row_ror:4 row_mask:0xf bank_mask:0xf")
        a(f"{op}_dpp v{r}, v{r}, v{r} row_ror:8 row_mask:0xf bank_mask:0xf")
        a(f"v_mov_b32 v{tmp}, v{r}")
        a(f"v_permlane16_swap_b32 v{r}, v{tmp}")
        a(f"{op} v{r}, v{r}, v{tmp}")
        a(f"v_mov_b32 v{tmp}, v{r}")
        a(f"v_permlane32_swap_b32 v{r}, v{tmp}")
        a(f"{op} v{r}, v{r}, v{tmp}")
    def cnt_add(off, vaddr, vone):
        a("s_mov_b64 exec, 1")
        a(f"ds_add_u32 v{vaddr}, v{vone} offset:{off}")
        a("s_mov_b64 exec, -1")
    def cnt_wait(off, lbl, vaddr, vtmp, sreg, sleep=0, target=4):
        a(f"s_mov_b32 s{sreg}, {spin_max*4}")
        a(f"{lbl}:")
        a(f"ds_read_b32 v{vtmp}, v{vaddr} offset:{off}")
        a("s_waitcnt lgkmcnt(0)")
        a(f"v_cmp_gt_u32 vcc, {target}, v{vtmp}")
        a(f"s_cbranch_vccz {lbl}_go")
        if sleep: a(f"s_sleep {sleep}")
        a(f"s_sub_u32 s{sreg}, s{sreg}, 1")
        a(f"s_cbranch_scc0 {lbl}")
        a(f"{lbl}_go:")
    def unit_id():
        if amap == 1:
            a("s_and_b32 s11, s2, 0xe0")
            a("s_and_b32 s6, s2, 7")
            a("s_lshl_b32 s6, s6, 2")
            a("s_add_u32 s11, s11, s6")
            a("s_bfe_u32 s6, s2, 0x20003")
            a("s_add_u32 s11, s11, s6")
        elif amap == 2:
            a("s_and_b32 s11, s2, 7")
            a("s_lshl_b32 s11, s11, 5")
            a("s_lshr_b32 s6, s2, 3")
            a("s_add_u32 s11, s11, s6")
        else:
            a("s_mov_b32 s11, s2")

    a("s_cmp_ge_u32 s2, 256")
    a("s_cbranch_scc1 L_end")
    if stamps:
        for i in range(NST):
            a(f"s_mov_b64 s[{72+2*i}:{73+2*i}], 0")
        a("s_memrealtime s[72:73]")
    if pad: a("s_memrealtime s[72:73]")
    a("s_load_dwordx16 s[16:31], s[0:1], 0")
    a("s_load_dwordx8 s[32:39], s[0:1], 64")
    a("s_load_dwordx4 s[40:43], s[0:1], 96")
    a("v_lshrrev_b32 v1, 6, v0")
    a("v_and_b32 v0, 63, v0")
    a("v_readfirstlane_b32 s3, v1")
    a("v_lshrrev_b32 v6, 4, v0")
    a("v_and_b32 v7, 15, v0")
    a("v_lshlrev_b32 v5, 4, v0")
    unit_id()
    a("s_cmp_lt_u32 s3, 4")
    a("s_cbranch_scc1 L_stream")

    a("s_setprio 3")
    a(f"v_mov_b32 v10, {C_L:#x}")
    for k in range(4): a(f"v_mov_b32 v{12+k}, 0")
    a("ds_write_b128 v10, v[12:15]")
    a("ds_write_b128 v10, v[12:15] offset:16")
    a("s_getreg_b32 s91, hwreg(HW_REG_XCC_ID)")
    a("s_sub_u32 s3, s3, 4")
    a("v_lshrrev_b32 v16, 3, v0")
    a("v_and_b32 v8, 7, v0")
    a("v_lshlrev_b32 v1, 13, v16")
    a("v_lshl_add_u32 v1, v8, 4, v1")
    for i in range(1, 4):
        a(f"v_add_u32 v{1+i}, {i*(65536-1024)}, v1")
    a("v_mul_u32_u24 v16, 3584, v16")
    a("v_lshl_add_u32 v16, v8, 4, v16")
    a(f"v_add_u32 v17, {8*3584-1024}, v16")
    a("v_lshlrev_b32 v18, 10, v8")
    a("v_lshl_add_u32 v19, v6, 3, v18")
    a("v_lshl_add_u32 v18, v6, 4, v18")
    a("s_bfe_u32 s61, s2, 0x20003")
    a("s_and_b32 s60, s2, 7")
    a("s_lshl_b32 s60, s60, 3")
    a("s_lshr_b32 s6, s2, 5")
    a("s_add_u32 s60, s60, s6")
    a("s_lshl_b32 s62, s61, 20")
    a("s_lshl_b32 s6, s60, 7")
    a("s_add_u32 s62, s62, s6")
    a("s_lshl_b32 s6, s3, 18")
    a("s_add_u32 s62, s62, s6")
    a("s_lshl_b32 s6, s3, 12")
    a(f"s_add_u32 s67, s6, {WQ_L:#x}")
    a("s_lshl_b32 s6, s3, 11")
    a(f"s_add_u32 s68, s6, {W1_L:#x}")
    a("s_lshl_b32 s63, s61, 8")
    a("s_lshl_b32 s6, s3, 6")
    a("s_add_u32 s63, s63, s6")
    a("s_lshr_b32 s66, s60, 1")
    a("s_and_b32 s69, s60, 1")
    a("s_lshl_b32 s70, s61, 1")
    a("s_add_u32 s70, s70, s69")
    a("s_lshl_b32 s6, s70, 2")
    a("s_add_u32 s6, s6, s3")
    a(f"s_mul_i32 s65, s6, {16*3584}")
    a("s_lshl_b32 s64, s6, 5")
    a("s_lshl_b32 s6, s66, 7")
    a("s_add_u32 s65, s65, s6")
    a("s_mov_b32 m0, s67")
    a("s_waitcnt lgkmcnt(0)")
    srd(48, 22, 0x400000)
    srd(52, 16, 8192)
    XF, BF, AC = 64, 128, 80
    for i in range(4):
        a(f"buffer_load_dwordx4 v{1+i}, s[48:51], s62 offen offset:{i*1024} {wpol} lds")
    a(f"buffer_load_dwordx4 v[{XF}:{XF+3}], v18, s[52:55], s63 offen")
    a("s_mov_b32 m0, s68")
    srd(56, 28, 512 * 3584)
    a("s_cmp_ge_u32 s66, 28")
    a("s_cbranch_scc1 L_now1a")
    a(f"buffer_load_dwordx4 v16, s[56:59], s65 offen {wpol} lds")
    a(f"buffer_load_dwordx4 v17, s[56:59], s65 offen offset:1024 {wpol} lds")
    a(f"buffer_load_dwordx2 v[{XF+4}:{XF+5}], v19, s[52:55], s64 offen")
    a("L_now1a:")
    a("s_load_dword s4, s[42:43], 0")
    a("s_barrier")
    srd(44, 42, 0x10000000)
    a("v_lshrrev_b32 v16, 2, v7")
    a("v_and_b32 v9, 3, v0")
    a("v_lshl_add_u32 v17, v6, 3, v16")
    a("v_lshlrev_b32 v11, 7, v17")
    a("v_lshl_add_u32 v11, v9, 3, v11")
    a("v_add_u32 v3, s67, v11")
    a("v_lshl_add_u32 v17, v6, 2, v16")
    a("v_lshlrev_b32 v2, 7, v17")
    a("v_lshl_add_u32 v2, v9, 3, v2")
    a("v_add_u32 v2, s68, v2")
    a("v_mov_b32 v20, 1")
    a("v_xor_b32 v1, v6, v8")
    a("v_lshlrev_b32 v1, 4, v1")
    a("v_lshl_add_u32 v1, v8, 8, v1")
    a("v_add_u32 v1, s67, v1")
    a("v_xor_b32 v19, 64, v1")
    a("v_and_b32 v16, 1, v6")
    a("s_lshl_b32 s6, s3, 1")
    a("v_add_u32 v16, s6, v16")
    a("v_xor_b32 v17, v16, v7")
    a("v_lshlrev_b32 v17, 4, v17")
    a("v_lshl_add_u32 v16, v16, 8, v17")
    a("v_bfe_u32 v17, v0, 3, 2")
    a("s_lshl_b32 s6, s3, 2")
    a("v_add_u32 v17, s6, v17")
    a("v_xor_b32 v17, v17, v8")
    a("v_lshlrev_b32 v17, 4, v17")
    a("v_lshl_add_u32 v18, v8, 8, v17")
    a("v_add_u32 v18, 2048, v18")
    a("s_mov_b32 s6, 0")
    a("s_mov_b32 s7, -1")
    a("v_cndmask_b32 v16, v16, v18, s[6:7]")
    a(f"v_add_u32 v16, {WQ_L:#x}, v16")
    a("v_and_b32 v17, 1, v6")
    a(f"v_mul_u32_u24 v17, {32*QSTR}, v17")
    a("v_lshl_add_u32 v17, v7, 4, v17")
    a("s_lshl_b32 s63, s3, 6")
    a("s_lshr_b32 s8, s60, 1")
    a("s_add_u32 s63, s63, s8")
    a(f"s_mul_i32 s63, s63, {QSTR}")
    a("s_lshl_b32 s8, s61, 9")
    a("s_add_u32 s63, s63, s8")
    a("s_lshl_b32 s8, s69, 8")
    a("s_add_u32 s63, s63, s8")
    a(f"s_add_u32 s63, s63, {QP:#x}")
    a("v_add_u32 v17, s63, v17")
    a(f"s_mul_i32 s64, s66, {HSTR}")
    a("s_lshl_b32 s8, s70, 9")
    a("s_add_u32 s64, s64, s8")
    a("s_lshl_b32 s8, s3, 12")
    a("s_add_u32 s64, s64, s8")
    a(f"s_add_u32 s64, s64, {HP-512:#x}")
    a("v_add_u32 v18, s64, v5")
    a("v_cndmask_b32 v4, v17, v18, s[6:7]")
    a("s_cmp_lt_u32 s66, 28")
    a("s_cselect_b32 s9, -1, 0")
    tagcalc()
    a("s_and_b32 s91, s91, 7")
    a("s_or_b32 s91, s91, s5")
    a("v_mov_b32 v113, s91")
    a("v_mov_b32 v115, s91")
    a("s_waitcnt vmcnt(0)")
    for aa in range(4):
        for eh in range(2):
            r = BF + 4 * aa + 2 * eh
            a(f"ds_read_b64_tr_b16 v[{r}:{r+1}], v3 offset:{eh*512 + aa*32}")
    for aa in range(4):
        r = BF + 16 + 2 * aa
        a(f"ds_read_b64_tr_b16 v[{r}:{r+1}], v2 offset:{aa*32}")
    for aa in range(4):
        a(f"s_waitcnt lgkmcnt({10-2*aa})")
        a(f"v_mfma_f32_16x16x32_bf16 v[{AC+4*aa}:{AC+4*aa+3}], v[{BF+4*aa}:{BF+4*aa+3}], v[{XF}:{XF+3}], 0")
    for aa in range(4):
        a(f"s_waitcnt lgkmcnt({3-aa})")
        a(f"v_mfma_f32_16x16x16_bf16 v[{AC+16+4*aa}:{AC+16+4*aa+3}], v[{BF+16+2*aa}:{BF+16+2*aa+1}], v[{XF+4}:{XF+5}], 0")
    a("s_mov_b32 exec_lo, 0x00ff00ff")
    a("s_mov_b32 exec_hi, 0x00ff00ff")
    for part in range(2):
        for aa in range(4):
            r = AC + 16 * part + 4 * aa
            a(f"ds_write_b128 v{1 if aa % 2 == 0 else 19}, v[{r}:{r+3}] offset:{part*2048 + (aa>>1)*128}")
    a("s_mov_b64 exec, 1")
    a("s_waitcnt lgkmcnt(0)")
    a("ds_add_u32 v10, v20")
    a("s_mov_b64 exec, -1")
    cnt_wait(0, "L_s1", 10, 21, 65)
    for j in range(4):
        a(f"ds_read_b128 v[{32+4*j}:{35+4*j}], v16 offset:{j*4096}")
    a("s_waitcnt lgkmcnt(2)")
    for e in range(4): a(f"v_add_f32 v{32+e}, v{32+e}, v{36+e}")
    a("s_waitcnt lgkmcnt(0)")
    for e in range(4): a(f"v_add_f32 v{40+e}, v{40+e}, v{44+e}")
    for e in range(4): a(f"v_add_f32 v{32+e}, v{32+e}, v{40+e}")
    a("v_cvt_pk_bf16_f32 v112, v32, v33")
    a("v_cvt_pk_bf16_f32 v114, v34, v35")
    a("v_mov_b32 v116, v4")
    a("s_mov_b32 s92, 0")
    a("s_mov_b32 exec_hi, s9")
    a("buffer_store_dwordx4 v[112:115], v116, s[44:47], 0 offen")
    a("s_mov_b64 exec, -1")
    stamp(1)
    a("s_branch L_helper2")

    a("L_stream:")
    a("v_lshlrev_b32 v1, 2, v6")
    a("v_xor_b32 v1, v1, v7")
    a("v_xor_b32 v2, 1, v1")
    a("v_xor_b32 v3, 2, v1")
    a("v_xor_b32 v4, 3, v1")
    a("v_lshlrev_b32 v8, 8, v6")
    for i in range(4):
        a(f"v_lshl_add_u32 v{1+i}, v{1+i}, 4, v8")
    a("s_lshl_b32 s7, s11, 18")
    for r in range(4):
        a(f"s_add_u32 s6, s3, {r if rot else 0}")
        a("s_and_b32 s6, s6, 3")
        a("s_lshl_b32 s6, s6, 12")
        a(f"s_add_u32 s{12+r}, s7, s6")
    a("s_mov_b32 s60, s12")
    a("s_mov_b32 s61, s12")
    a("s_lshl_b32 s62, s3, 15")
    a("s_waitcnt lgkmcnt(0)")
    if st2: stamp(3)
    srd(48, 18, 0x4000000)
    srd(52, 20, 0x4000000)
    a("s_load_dword s4, s[42:43], 0")
    if touch == 1:
        a("s_load_dword s88, s[20:21], s60")
        a("s_and_b32 s6, s2, 7")
        a("s_lshl_b32 s6, s6, 19")
        a("s_load_dword s89, s[24:25], s6")
        a("s_load_dword s90, s[32:33], 0")
        a("s_load_dword s91, s[30:31], 0")
        a("s_load_dword s92, s[34:35], 0")
        a("s_load_dword s93, s[36:37], 0")
        a(f"s_mov_b32 s6, {OG:#x}")
        a("s_load_dword s94, s[42:43], s6")
        a("s_load_dword s95, s[38:39], 0")
    if not early: a("s_barrier")
    if st2: stamp(4)

    nissued = [0]
    pos = {}
    covered = [0]
    Dcur = [D1]
    lblc = [0]
    def setmode():
        if Dhi:
            a("s_bitcmp1_b32 s2, 2")
            a("s_cselect_b64 vcc, -1, 0")
    def throttle():
        D = Dcur[0]
        if Dhi and nissued[0] < nhi:
            if nissued[0] - covered[0] > Dhi - 1:
                a(f"s_waitcnt vmcnt({Dhi-1})")
                covered[0] = nissued[0] - (Dhi - 1)
            if nissued[0] >= D:
                lblc[0] += 1
                a(f"s_cbranch_vccnz L_t{lblc[0]}")
                a(f"s_waitcnt vmcnt({D-1})")
                a(f"L_t{lblc[0]}:")
            return
        if D >= 63: return
        if nissued[0] - covered[0] > D - 1:
            a(f"s_waitcnt vmcnt({D-1})")
            covered[0] = nissued[0] - (D - 1)
    def issueK(tt):
        a(f"s_add_u32 m0, s62, {(tt & 7) * 4096}")
        for i in range(4):
            throttle()
            a(f"buffer_load_dwordx4 v{1+i}, s[48:51], s60 offen offset:{i*1024} {kvpol} lds")
            nissued[0] += 1
        pos[("k", tt)] = nissued[0]
        if tt < 15: a(f"s_add_u32 s60, s{12+((tt+1)&3)}, {(tt+1)*16384}")
    def vreg(tt, i):
        return 64 + 4 * (4 * (tt % 12) + i)
    def issueV(tt):
        for i in range(4):
            r = vreg(tt, i)
            throttle()
            a(f"buffer_load_dwordx4 v[{r}:{r+3}], v5, s[52:55], s61 offen offset:{i*1024} {kvpol}")
            nissued[0] += 1
            pos[("v", tt, i)] = nissued[0]
        pos[("v", tt)] = nissued[0]
        if tt < 15: a(f"s_add_u32 s61, s{12+((tt+1)&3)}, {(tt+1)*16384}")
    def waitfor(key):
        if pos[key] <= covered[0]: return
        n = min(nissued[0] - pos[key], 63)
        a(f"s_waitcnt vmcnt({n})")
        covered[0] = nissued[0] - n

    setmode()
    issueK(0)
    if early: a("s_barrier")
    if sprio: a(f"s_setprio {sprio}")
    srd(44, 42, 0x10000000)
    a("v_and_b32 v8, 3, v7")
    a("v_lshlrev_b32 v8, 10, v8")
    a("v_lshrrev_b32 v9, 2, v7")
    a("v_lshl_add_u32 v8, v9, 8, v8")
    a("v_add_u32 v8, s62, v8")
    a("v_xor_b32 v9, v6, v7")
    a("v_and_b32 v44, 3, v7")
    a("v_lshlrev_b32 v44, 8, v44")
    a("v_lshl_add_u32 v44, v6, 4, v44")
    a(f"v_add_u32 v44, {Q_L:#x}, v44")
    a("v_xor_b32 v45, 4, v9")
    a("v_xor_b32 v46, 8, v9")
    a("v_xor_b32 v47, 12, v9")
    a("v_lshl_add_u32 v6, v9, 4, v8")
    a("v_lshl_add_u32 v7, v45, 4, v8")
    a("v_lshl_add_u32 v9, v47, 4, v8")
    a("v_lshl_add_u32 v8, v46, 4, v8")
    a("s_mov_b32 s64, 0x00f000f0"); a("s_mov_b32 s65, 0x00f000f0")
    a("s_mov_b32 s66, 0x0f000f00"); a("s_mov_b32 s67, 0x0f000f00")
    a("s_mov_b32 s70, 0xf000f000"); a("s_mov_b32 s71, 0xf000f000")
    MASK = {1: "s[64:65]", 2: "s[66:67]", 3: "s[70:71]"}
    a("s_mov_b32 s8, 0x05040100")
    a("s_mov_b32 s9, 0x07060302")
    a(f"s_mov_b32 s10, {f32(CSC)}")
    a(f"v_mov_b32 v45, {C_L:#x}")
    a("v_mov_b32 v46, 1")
    srd(56, 34, 1024)
    a("s_and_b32 s6, s11, 31")
    a("s_lshr_b32 s6, s6, 1")
    a("s_lshl_b32 s6, s6, 5")
    a("s_and_b32 s7, s11, 1")
    a("s_lshl_b32 s7, s7, 3")
    a("s_add_u32 s69, s6, s7")
    a("s_lshl_b32 s68, s69, 1")
    a("v_and_b32 v12, 7, v0")
    a("v_lshlrev_b32 v12, 1, v12")
    tagcalc()
    seqno = [1]
    def tick():
        if seqno[0] == qtrig:
            cnt_add(16, 45, 46)
        seqno[0] += 1
    for tt in range(1, 8):
        issueK(tt); tick()
        if st2 and tt == 1: stamp(7)
        if st2 and tt == 3: stamp(2)
    a("buffer_load_ushort v10, v12, s[56:59], s68 offen")
    a("buffer_load_ushort v11, v12, s[56:59], s68 offen offset:32")
    nissued[0] += 2
    vn = [0]
    def nextV():
        if D3 and vn[0] >= 16 - n3: Dcur[0] = D3
        issueV(vn[0]); vn[0] += 1
        if vn[0] - 1 == trig:
            a(f"v_mov_b32 v1, {C_L:#x}")
            a("v_mov_b32 v2, 1")
            cnt_add(12, 1, 2)
    for tt in range(0, npre):
        nextV(); tick()
    stamp(1)
    cnt_wait(4, "L_wq", 45, 46, 63)
    setmode()
    if not st2: stamp(2)
    Dcur[0] = D2
    QFR, KT, DT, SD = 12, 28, 44, 48
    for j in range(4):
        a(f"ds_read_b128 v[{QFR+4*j}:{QFR+4*j+3}], v44 offset:{64*j}")
    a("s_waitcnt lgkmcnt(0)")
    def S(tt):
        waitfor(("k", tt))
        slot = tt & 7
        G = tt >> 1; t = G & 3; st = 2 * (G >> 2) + (tt & 1)
        dst = SD + 4 * st if t == 0 else DT
        for j in range(4):
            a(f"ds_read_b128 v[{KT+4*j}:{KT+4*j+3}], v{6+j} offset:{slot*4096}")
        for j in range(4):
            a(f"s_waitcnt lgkmcnt({3-j})")
            c = "0" if j == 0 else f"v[{dst}:{dst+3}]"
            a(f"v_mfma_f32_16x16x32_bf16 v[{dst}:{dst+3}], v[{KT+4*j}:{KT+4*j+3}], v[{QFR+4*j}:{QFR+4*j+3}], {c}")
        return (t, st)
    def Ssel(ts):
        t, st = ts
        if t != 0:
            for r in range(4):
                a(f"v_cndmask_b32 v{SD+4*st+r}, v{SD+4*st+r}, v{DT+r}, {MASK[t]}")
    for tt in range(8):
        ts = S(tt)
        issueK(tt + 8)
        Ssel(ts)
        if tt >= 2:
            Ssel(S(tt + 6))
    nextV(); Ssel(S(14))
    nextV(); Ssel(S(15))
    a(f"v_max3_f32 v44, v{SD}, v{SD+1}, v{SD+2}")
    a(f"v_max3_f32 v45, v{SD+3}, v{SD+4}, v{SD+5}")
    a(f"v_max3_f32 v46, v{SD+6}, v{SD+7}, v{SD+8}")
    a(f"v_max3_f32 v47, v{SD+9}, v{SD+10}, v{SD+11}")
    a(f"v_max3_f32 v44, v44, v{SD+12}, v{SD+13}")
    a(f"v_max3_f32 v45, v45, v{SD+14}, v{SD+15}")
    a(f"v_max3_f32 v44, v44, v46, v47")
    a(f"v_max_f32 v44, v44, v45")
    xlane("v_max_f32", 44, 45)
    a("v_mul_f32 v44, s10, v44")
    a("v_and_b32 v46, 3, v0")
    a("v_lshlrev_b32 v46, 4, v46")
    a("s_lshl_b32 s6, s3, 2")
    a(f"s_add_u32 s6, s6, {M_L:#x}")
    a("v_add_u32 v47, s6, v46")
    for i in range(16):
        a(f"v_fma_f32 v{SD+i}, v{SD+i}, s10, -v44")
    nextV()
    for i in range(16):
        a(f"v_exp_f32 v{SD+i}, v{SD+i}")
    a(f"v_add_f32 v28, v{SD}, v{SD+1}")
    a(f"v_add_f32 v29, v{SD+2}, v{SD+3}")
    a(f"v_add_f32 v30, v{SD+4}, v{SD+5}")
    a(f"v_add_f32 v31, v{SD+6}, v{SD+7}")
    for k in range(2):
        for q in range(4):
            a(f"v_add_f32 v{28+q}, v{28+q}, v{SD+8+4*k+q}")
    a("v_add_f32 v28, v28, v29")
    a("v_add_f32 v30, v30, v31")
    a("v_add_f32 v28, v28, v30")
    xlane("v_add_f32", 28, 29)
    a("s_mov_b64 exec, 15")
    a("ds_write_b32 v47, v44")
    a(f"ds_write_b32 v47, v28 offset:{L_L-M_L}")
    a("s_mov_b64 exec, -1")
    for i in range(8):
        a(f"v_cvt_pk_bf16_f32 v{SD+i}, v{SD+2*i}, v{SD+2*i+1}")
    a(f"v_mov_b32 v1, {C_L:#x}")
    a("v_mov_b32 v2, 1")
    a("s_waitcnt lgkmcnt(0)")
    cnt_add(8, 1, 2)
    if not st2: stamp(3)
    OA, AT, PT = 12, 44, 56
    def PV(G, last=False):
        t = G & 3; aa = G >> 2
        src = SD + 4 * aa
        if t != 0:
            for i in range(4):
                a(f"v_mov_b32_dpp v{AT+i}, v{src+i} row_shl:{4*t} row_mask:0xf bank_mask:0xf bound_ctrl:0")
            src = AT
        X, Y = 2 * G, 2 * G + 1
        def V(e, p):
            return vreg(X if e < 4 else Y, e & 3) + p
        if not last:
            waitfor(("v", Y))
            def perms(dd):
                p, sel = dd >> 1, ("s8" if (dd & 1) == 0 else "s9")
                tb = PT + 4 * (dd & 1)
                for q in range(4):
                    a(f"v_perm_b32 v{tb+q}, v{V(2*q+1, p)}, v{V(2*q, p)}, {sel}")
            def mf(dd):
                tb = PT + 4 * (dd & 1)
                c = "0" if G == 0 else f"v[{OA+4*dd}:{OA+4*dd+3}]"
                a(f"v_mfma_f32_16x16x32_bf16 v[{OA+4*dd}:{OA+4*dd+3}], v[{src}:{src+3}], v[{tb}:{tb+3}], {c}")
            perms(0)
            for dd in range(8):
                if dd + 1 < 8: perms(dd + 1)
                mf(dd)
        else:
            TB = vreg(4, 0)
            for q in range(4):
                key = ("v", X if q < 2 else Y, (2 * q + 1) & 3)
                waitfor(key)
                for dd in range(8):
                    p, sel = dd >> 1, ("s8" if (dd & 1) == 0 else "s9")
                    a(f"v_perm_b32 v{TB+4*dd+q}, v{V(2*q+1, p)}, v{V(2*q, p)}, {sel}")
            for dd in range(8):
                a(f"v_mfma_f32_16x16x32_bf16 v[{OA+4*dd}:{OA+4*dd+3}], v[{src}:{src+3}], v[{TB+4*dd}:{TB+4*dd+3}], v[{OA+4*dd}:{OA+4*dd+3}]")
    def factors():
        a(f"v_mov_b32 v1, {C_L:#x}")
        cnt_wait(8, "L_wml", 1, 2, 63, target=6)
        a("s_lshl_b32 s6, s3, 4")
        a(f"s_add_u32 s6, s6, {M_L:#x}")
        a("v_lshrrev_b32 v3, 5, v0")
        a("v_lshl_add_u32 v1, v3, 3, s6")
        a("ds_read_b64 v[6:7], v1")
        a("s_lshl_b32 s6, s3, 2")
        a(f"s_add_u32 s7, s6, {G_L+16:#x}")
        a("v_mov_b32 v1, s7")
        a("ds_read_b32 v8, v1")
        a(f"v_mov_b32 v1, {G_L:#x}")
        a("ds_read_b32 v4, v1")
        a(f"ds_read_b32 v9, v1 offset:{C_L+24-G_L}")
        a("v_and_b32 v2, 1, v0")
        a("v_lshlrev_b32 v2, 10, v2")
        a("v_lshl_add_u32 v2, v3, 16, v2")
        a("v_bfe_u32 v3, v0, 1, 4")
        a("v_lshl_add_u32 v2, v3, 4, v2")
        a("v_add_u32 v2, s6, v2")
        a("v_add_u32 v3, s62, v5")
        a("s_waitcnt lgkmcnt(0)")
        a("v_readfirstlane_b32 s92, v9")
        a("v_sub_f32 v6, v6, v8")
        a("v_sub_f32 v7, v7, v8")
        a("v_exp_f32 v6, v6")
        a("v_exp_f32 v7, v7")
        a("v_sub_f32 v9, 1.0, v4")
        a("v_mul_f32 v6, v6, v4")
        a("v_mul_f32 v7, v7, v4")
        a("v_lshlrev_b32 v10, 16, v10")
        a("v_lshlrev_b32 v11, 16, v11")
        a("v_mul_f32 v10, v10, v9")
        a("v_mul_f32 v11, v11, v9")
        a("s_and_b32 s6, s11, 0x1c")
        a("s_add_u32 s6, s6, s3")
        a("s_lshl_b32 s63, s6, 14")
        a("s_lshr_b32 s6, s11, 5")
        a("s_lshl_b32 s6, s6, 11")
        a("s_add_u32 s63, s63, s6")
        a("s_and_b32 s6, s11, 3")
        a("s_lshl_b32 s6, s6, 9")
        a("s_add_u32 s63, s63, s6")
        a(f"s_add_u32 s63, s63, {OG:#x}")
        a(f"v_mov_b32 v1, {C_L:#x}")
        a("v_mov_b32 v4, 1")
    G = 0
    while vn[0] < 16:
        if vn[0] >= 12 and G <= (vn[0] - 12) // 2:
            PV(G); G += 1
            continue
        nextV()
        k = 0
        while vn[0] < 16 and 2 * G + 1 <= vn[0] - 3 and G < 6 and k < 2:
            PV(G); G += 1; k += 1
    if not st2: stamp(4)
    while G < 4:
        PV(G); G += 1
    factors()
    while G < 7:
        PV(G); G += 1
    PV(7, last=True)
    a("s_mov_b64 exec, 0xffff")
    for dd in range(8):
        a(f"ds_write_b128 v3, v[{OA+4*dd}:{OA+4*dd+3}] offset:{dd*256}")
    a("s_mov_b64 exec, 1")
    a("ds_add_u32 v1, v4 offset:20")
    a("s_mov_b64 exec, -1")
    a("v_mov_b32 v49, s5")
    a("v_mov_b32 v51, s5")
    a(f"s_mov_b32 s60, {spin_max*4}")
    a(f"s_setprio {wprio}")
    a("s_branch L_wo")
    a("L_wo_s:")
    if wsleep: a(f"s_sleep {wsleep}")
    a("L_wo:")
    a("ds_read_b32 v44, v1 offset:20")
    a("ds_read2st64_b32 v[52:53], v2 offset0:0 offset1:1")
    a("ds_read2st64_b32 v[54:55], v2 offset0:2 offset1:3")
    a("ds_read2st64_b32 v[56:57], v2 offset0:128 offset1:129")
    a("ds_read2st64_b32 v[58:59], v2 offset0:130 offset1:131")
    a("s_waitcnt lgkmcnt(4)")
    a("v_cmp_gt_u32 vcc, 4, v44")
    a("s_sub_u32 s60, s60, 1")
    a("s_cbranch_scc1 L_wo_go")
    a("s_cbranch_vccnz L_wo_s")
    a("L_wo_go:")
    a("s_setprio 3")
    a("s_waitcnt lgkmcnt(2)")
    for k in range(4):
        a(f"v_mul_f32 v{52+k}, v{52+k}, v6")
    a("s_waitcnt lgkmcnt(0)")
    for k in range(4):
        a(f"v_fma_f32 v{52+k}, v{56+k}, v7, v{52+k}")
    for k in range(4):
        a(f"v_mov_b32 v{56+k}, v{52+k}")
    for k in range(4):
        a(f"v_permlane32_swap_b32 v{52+k}, v{56+k}")
    for k in range(4):
        a(f"v_add_f32 v{52+k}, v{52+k}, v{56+k}")
    a("v_cvt_pk_bf16_f32 v48, v52, v53")
    a("v_cvt_pk_bf16_f32 v50, v54, v55")
    a("s_mov_b64 exec, 0xffffffff")
    a("s_cmp_lg_u32 s92, 0")
    a("s_cbranch_scc1 L_o_slow")
    a("buffer_store_dwordx4 v[48:51], v5, s[44:47], s63 offen")
    a("L_o_done:")
    a("s_setprio 0")
    a("s_mov_b64 exec, -1")
    stamp(5)
    a("s_cmp_lg_u32 s3, 0")
    a("s_cbranch_scc1 L_end")
    srd(48, 38, 8192)
    a("s_lshr_b32 s6, s11, 5")
    a("s_lshl_b32 s60, s11, 12")
    a(f"s_add_u32 s60, s60, {PG:#x}")
    a("s_lshl_b32 s6, s6, 9")
    a("s_add_u32 s6, s6, s69")
    a("s_lshl_b32 s61, s6, 1")
    a("v_lshlrev_b32 v2, 1, v0")
    if fwait:
        cnt_wait(28, "L_fw", 1, 44, 62, sleep=2, target=fwait)
    a(f"s_mov_b32 s62, {spin_max}")
    a("L_fin_poll:")
    if fsleep: a(f"s_sleep {fsleep}")
    for t in range(4):
        a(f"buffer_load_dwordx4 v[{12+4*t}:{15+4*t}], v5, s[44:47], s60 offen offset:{t*1024} {pld}")
    a("s_waitcnt vmcnt(2)")
    a("v_xor_b32 v28, s5, v13")
    a("v_xor_b32 v29, s5, v15")
    a("v_xor_b32 v30, s5, v17")
    a("v_xor_b32 v31, s5, v19")
    a("v_add_f32 v12, v12, v16")
    a("v_add_f32 v14, v14, v18")
    a("v_or3_b32 v28, v28, v29, v30")
    a("s_waitcnt vmcnt(0)")
    a("v_xor_b32 v29, s5, v21")
    a("v_xor_b32 v30, s5, v23")
    a("v_xor_b32 v32, s5, v25")
    a("v_xor_b32 v33, s5, v27")
    a("v_add_f32 v20, v20, v24")
    a("v_add_f32 v22, v22, v26")
    a("v_or3_b32 v28, v28, v31, v29")
    a("v_or3_b32 v30, v30, v32, v33")
    a("v_add_f32 v12, v12, v20")
    a("v_add_f32 v14, v14, v22")
    a("v_or_b32 v28, v28, v30")
    a("v_cmp_ne_u32 vcc, 0, v28")
    a("s_sub_u32 s62, s62, 1")
    a("s_cbranch_scc1 L_fin_go")
    a("s_cbranch_vccnz L_fin_poll")
    a("L_fin_go:")
    prs = ((12, 13), (14, 15))
    for r, tmp in prs: a(f"v_add_f32_dpp v{r}, v{r}, v{r} row_ror:8 row_mask:0xf bank_mask:0xf")
    for r, tmp in prs: a(f"v_mov_b32 v{tmp}, v{r}")
    for r, tmp in prs: a(f"v_permlane16_swap_b32 v{r}, v{tmp}")
    for r, tmp in prs: a(f"v_add_f32 v{r}, v{r}, v{tmp}")
    for r, tmp in prs: a(f"v_mov_b32 v{tmp}, v{r}")
    for r, tmp in prs: a(f"v_permlane32_swap_b32 v{r}, v{tmp}")
    a("v_add_f32 v12, v12, v13")
    a("v_add_f32 v14, v14, v15")
    a("v_add_f32 v12, v12, v10")
    a("v_add_f32 v14, v14, v11")
    a("v_cvt_pk_bf16_f32 v12, v12, v14")
    a("s_mov_b64 exec, 0xff")
    a(f"buffer_store_short v12, v2, s[48:51], s61 offen {outpol}")
    a(f"buffer_store_short_d16_hi v12, v2, s[48:51], s61 offen offset:32 {outpol}")
    a("s_cmp_lg_u32 s2, 0")
    a("s_cbranch_scc1 L_fin_done")
    a("s_mov_b64 exec, 1")
    a("v_mov_b32 v3, s5")
    a("v_mov_b32 v4, 0")
    a("buffer_store_dword v3, v4, s[44:47], 0 offen sc1")
    a("L_fin_done:")
    a("s_mov_b64 exec, -1")
    if pad:
        if padwg >= 0:
            a(f"s_cmp_lg_u32 s2, {padwg}")
            a("s_cbranch_scc1 L_end")
        a("L_pad:")
        a("s_memrealtime s[74:75]")
        a("s_waitcnt lgkmcnt(0)")
        a("s_sub_u32 s76, s74, s72")
        a(f"s_cmp_lt_u32 s76, {pad*100}")
        a("s_cbranch_scc1 L_pad")
    stamp(6, True)
    stamp_store(0)
    a("s_endpgm")

    a("L_o_slow:")
    a("buffer_store_dwordx4 v[48:51], v5, s[44:47], s63 offen sc1")
    a("s_branch L_o_done")

    a("L_helper2:")
    if touch == 2:
        a("s_cmp_lg_u32 s3, 2")
        a("s_cbranch_scc1 L_notouch")
        a("s_lshl_b32 s6, s11, 18")
        a("s_load_dword s88, s[20:21], s6")
        a("s_and_b32 s6, s2, 7")
        a("s_lshl_b32 s6, s6, 19")
        a("s_load_dword s89, s[24:25], s6")
        a("s_load_dword s90, s[32:33], 0")
        a("s_load_dword s91, s[30:31], 0")
        a("s_load_dword s92, s[34:35], 0")
        a(f"s_mov_b32 s6, {OG:#x}")
        a("s_load_dword s94, s[42:43], s6")
        a("s_load_dword s95, s[38:39], 0")
        a("s_waitcnt lgkmcnt(0)")
        a("L_notouch:")
    a("s_cmp_lg_u32 s3, 3")
    a("s_cbranch_scc1 L_nogate")
    srd(48, 36, 1024)
    a("s_lshr_b32 s60, s11, 5")
    a("s_lshl_b32 s62, s60, 10")
    a("buffer_load_dwordx4 v[32:35], v5, s[52:55], s62 offen")
    a("buffer_load_dwordx4 v[36:39], v5, s[48:51], 0 offen")
    a("v_mov_b32 v40, 0")
    a(f"v_mov_b32 v2, {G_L:#x}")
    a("s_waitcnt vmcnt(0)")
    for i in range(4):
        a(f"v_dot2_f32_bf16 v40, v{32+i}, v{36+i}, v40")
    a("v_add_f32_dpp v40, v40, v40 quad_perm:[1,0,3,2] row_mask:0xf bank_mask:0xf")
    a("v_add_f32_dpp v40, v40, v40 quad_perm:[2,3,0,1] row_mask:0xf bank_mask:0xf")
    xlane("v_add_f32", 40, 41)
    a(f"v_mul_f32 v40, {f32(-LOG2E)}, v40")
    a("v_exp_f32 v40, v40")
    a("v_add_f32 v40, 1.0, v40")
    a("v_rcp_f32 v40, v40")
    a("s_mov_b64 exec, 1")
    a("ds_write_b32 v2, v40")
    a("s_waitcnt lgkmcnt(0)")
    a("ds_add_u32 v10, v20 offset:8")
    a("s_and_b32 s6, s11, 31")
    a("s_cmp_lg_u32 s6, 0")
    a("s_cbranch_scc1 L_gate_done")
    a("v_sub_f32 v42, 1.0, v40")
    a("v_mov_b32 v43, s5")
    a("v_mov_b32 v44, 0")
    a("s_lshl_b32 s6, s60, 3")
    a(f"s_add_u32 s6, s6, {GG:#x}")
    a("buffer_store_dwordx2 v[42:43], v44, s[44:47], s6 offen sc1")
    a("L_gate_done:")
    a("s_mov_b64 exec, -1")
    a("L_nogate:")
    a("s_and_b32 s62, s11, 0xfc")
    a("s_add_u32 s62, s62, s3")
    a(f"s_mul_i32 s62, s62, {QSTR}")
    a(f"s_add_u32 s62, s62, {QP:#x}")
    a("s_lshl_b32 s6, s3, 8")
    a(f"s_add_u32 s6, s6, {Q_L:#x}")
    a("v_and_b32 v2, 31, v0")
    a("v_lshl_add_u32 v2, v2, 3, s6")
    cnt_wait(16, "L_qt", 10, 21, 65, sleep=4, target=1)
    a(f"s_mov_b32 s65, {spin_max}")
    a(f"s_mov_b32 s93, {qfail}")
    def republish(lbl):
        a("s_cmp_lg_u32 s92, 0")
        a(f"s_cbranch_scc1 {lbl}")
        a("s_mov_b32 s92, 1")
        a("s_mov_b32 exec_hi, s9")
        a("buffer_store_dwordx4 v[112:115], v116, s[44:47], 0 offen sc1")
        a("s_mov_b64 exec, 1")
        a("ds_write_b32 v10, v20 offset:24")
        a("s_mov_b64 exec, -1")
        a(f"{lbl}:")
    a("L_qp:")
    a("buffer_load_dwordx4 v[32:35], v5, s[44:47], s62 offen sc1")
    a("buffer_load_dwordx4 v[36:39], v5, s[44:47], s62 offen offset:1024 sc1")
    a("s_waitcnt vmcnt(0)")
    for k in range(4):
        a(f"v_xor_b32 v{33+2*k}, s91, v{33+2*k}")
    a("v_or3_b32 v33, v33, v35, v37")
    a("v_or_b32 v33, v33, v39")
    a("v_cmp_lt_u32 vcc, 7, v33")
    a("s_cbranch_vccz L_qp_go")
    if qsleep: a(f"s_sleep {qsleep}")
    a("s_sub_u32 s93, s93, 1")
    a("s_cbranch_scc0 L_qp")
    a("s_mov_b32 s93, 0")
    republish("L_rp1")
    a("s_sub_u32 s65, s65, 1")
    a("s_cbranch_scc0 L_qp")
    a("L_qp_go:")
    a("v_cmp_ne_u32 vcc, 0, v33")
    if not force_slow: a("s_cbranch_vccz L_rp2")
    republish("L_rp2")
    def unpack_sum(nk):
        for k in range(nk):
            for h in range(2):
                src = 32 + 4 * k + 2 * h
                if k == 0:
                    a(f"v_lshlrev_b32 v{12+2*h}, 16, v{src}")
                    a(f"v_and_b32 v{13+2*h}, 0xffff0000, v{src}")
                else:
                    a(f"v_lshlrev_b32 v{src+1}, 16, v{src}")
                    a(f"v_and_b32 v{src}, 0xffff0000, v{src}")
                    a(f"v_add_f32 v{12+2*h}, v{12+2*h}, v{src+1}")
                    a(f"v_add_f32 v{13+2*h}, v{13+2*h}, v{src}")
        for e in range(4): a(f"v_mov_b32 v{16+e}, v{12+e}")
        for e in range(4): a(f"v_permlane32_swap_b32 v{12+e}, v{16+e}")
        for e in range(4): a(f"v_add_f32 v{12+e}, v{12+e}, v{16+e}")
    unpack_sum(2)
    a("v_cvt_pk_bf16_f32 v12, v12, v13")
    a("v_cvt_pk_bf16_f32 v13, v14, v15")
    a("ds_write_b64 v2, v[12:13]")
    a("s_waitcnt lgkmcnt(0)")
    cnt_add(4, 10, 20)
    a(f"s_setprio {hprio}")
    a(f"s_mov_b32 s65, {spin_max*4}")
    a("L_qa:")
    a("ds_read_b32 v21, v10 offset:4")
    a("ds_read_b32 v22, v10 offset:24")
    a("s_waitcnt lgkmcnt(0)")
    a("v_cmp_ne_u32 vcc, 0, v22")
    a("s_cbranch_vccz L_rp3")
    republish("L_rp3")
    a("v_cmp_gt_u32 vcc, 4, v21")
    a("s_cbranch_vccz L_qa_go")
    a("s_sleep 2")
    a("s_sub_u32 s65, s65, 1")
    a("s_cbranch_scc0 L_qa")
    a("L_qa_go:")
    stamp(2)
    a("s_lshr_b32 s60, s2, 5")
    a("s_and_b32 s61, s2, 7")
    a("s_lshl_b32 s61, s61, 2")
    a("s_bfe_u32 s6, s2, 0x20003")
    a("s_add_u32 s61, s61, s6")
    srd(48, 24, 0x400000)
    srd(56, 32, 1792 * 1024)
    srd(52, 30, 3584)
    a("s_lshl_b32 s64, s60, 7")
    a("s_lshl_b32 s62, s61, 17")
    a("s_add_u32 s62, s62, s64")
    a("s_lshl_b32 s6, s3, 15")
    a("s_add_u32 s62, s62, s6")
    a("s_lshl_b32 s66, s61, 16")
    a("s_add_u32 s66, s66, s64")
    a("s_lshl_b32 s6, s3, 14")
    a("s_add_u32 s66, s66, s6")
    a(f"s_mov_b32 s90, {WO_L:#x}")
    a("v_lshrrev_b32 v24, 3, v0")
    a("v_and_b32 v12, 2, v24")
    a("v_xor_b32 v12, v12, v8")
    a("v_lshlrev_b32 v24, 10, v24")
    a("v_lshl_add_u32 v24, v12, 4, v24")
    a("v_xor_b32 v25, 64, v24")
    a(f"v_add_u32 v26, {2*(8192-1024)}, v24")
    a(f"v_add_u32 v27, {3*(8192-1024)}, v25")
    a(f"v_add_u32 v25, {8192-1024}, v25")
    a("v_bfe_u32 v12, v0, 3, 2")
    a("v_lshlrev_b32 v12, 5, v12")
    a(f"v_add3_u32 v120, v11, v12, s90")
    a("v_xor_b32 v121, 32, v120")
    a("v_xor_b32 v122, 64, v120")
    a("v_xor_b32 v123, 96, v120")
    a("v_bfe_u32 v12, v7, 2, 1")
    a("v_mul_u32_u24 v4, 144, v12")
    a("v_lshl_add_u32 v4, v6, 4, v4")
    a("s_mul_i32 s6, s3, 288")
    a(f"s_add_u32 s6, s6, {HA_L:#x}")
    a("v_add_u32 v4, s6, v4")
    a("v_bfe_u32 v12, v0, 3, 2")
    a("v_lshlrev_b32 v53, 3, v12")
    a("v_mul_u32_u24 v1, 144, v8")
    a("s_lshl_b32 s6, s3, 5")
    a(f"s_add_u32 s6, s6, {HA_L:#x}")
    a("v_add3_u32 v1, v1, v53, s6")
    a("v_lshlrev_b32 v52, 3, v8")
    a("v_and_b32 v12, 1, v6")
    a("v_lshlrev_b32 v11, 10, v12")
    a("s_lshl_b32 s69, s3, 11")
    a("s_lshl_b32 s6, s61, 5")
    a("s_add_u32 s69, s69, s6")
    a(f"s_add_u32 s69, s69, {LG:#x}")
    a("s_lshl_b32 s70, s61, 14")
    a("s_lshl_b32 s6, s3, 12")
    a("s_add_u32 s70, s70, s6")
    a(f"s_mul_i32 s63, s61, {HSTR}")
    a("s_add_u32 s63, s63, s6")
    a(f"s_add_u32 s63, s63, {HP:#x}")
    a(f"s_add_u32 s70, s70, {OG:#x}")
    a("s_lshl_b32 s6, s3, 15")
    a(f"s_add_u32 s6, s6, {AS_OFF:#x}")
    a("v_lshrrev_b32 v13, 5, v0")
    a("v_and_b32 v14, 31, v0")
    a("v_mul_u32_u24 v13, 272, v13")
    a("v_lshl_add_u32 v13, v14, 3, v13")
    a("v_add_u32 v2, s6, v13")
    a("v_mul_u32_u24 v13, 272, v8")
    a("v_lshl_add_u32 v13, v6, 4, v13")
    a("v_add_u32 v58, s6, v13")
    a("v_lshlrev_b32 v59, 17, v12")
    a("v_lshrrev_b32 v12, 3, v7")
    a("v_lshl_add_u32 v59, v12, 12, v59")
    a("v_lshl_add_u32 v59, v8, 4, v59")
    a("s_lshl_b32 s71, s3, 18")
    a("s_lshl_b32 s6, s60, 14")
    a("s_add_u32 s71, s71, s6")
    a("s_lshl_b32 s6, s61, 7")
    a("s_add_u32 s71, s71, s6")
    a(f"s_add_u32 s71, s71, {PG:#x}")
    a("s_add_u32 s8, s71, 8192")
    if no_h: a("s_branch L_nohact")
    a("s_cmp_ge_u32 s61, 28")
    a("s_cbranch_scc1 L_nohact")
    a("s_lshl_b32 s6, s61, 7")
    a("s_lshl_b32 s7, s3, 5")
    a("s_add_u32 s6, s6, s7")
    a("buffer_load_dwordx2 v[54:55], v53, s[52:55], s6 offen")
    a(f"s_mov_b32 s64, {GG:#x}")
    a(f"s_mov_b32 s65, {spin_max}")
    a("L_hp:")
    for k in range(4):
        a(f"buffer_load_dwordx4 v[{32+4*k}:{35+4*k}], v5, s[44:47], s63 offen offset:{k*1024} sc1")
    a("buffer_load_dwordx2 v[56:57], v52, s[44:47], s64 offen sc1")
    a("s_waitcnt vmcnt(0)")
    for k in range(8):
        a(f"v_xor_b32 v{33+2*k}, s5, v{33+2*k}")
    a("v_xor_b32 v48, s5, v57")
    a("v_or3_b32 v33, v33, v35, v37")
    a("v_or3_b32 v39, v39, v41, v43")
    a("v_or3_b32 v45, v45, v47, v48")
    a("v_or3_b32 v33, v33, v39, v45")
    a("v_cmp_lt_u32 vcc, 7, v33")
    a("s_cbranch_vccz L_hp_go")
    a("s_sleep 16")
    a("s_sub_u32 s65, s65, 1")
    a("s_cbranch_scc0 L_hp")
    a("L_hp_go:")
    unpack_sum(4)
    a("v_lshlrev_b32 v16, 16, v54")
    a("v_and_b32 v17, 0xffff0000, v54")
    a("v_lshlrev_b32 v18, 16, v55")
    a("v_and_b32 v19, 0xffff0000, v55")
    for e in range(4): a(f"v_add_f32 v{12+e}, v{12+e}, v{16+e}")
    for e in range(4): a(f"v_max_f32 v{12+e}, 0, v{12+e}")
    for e in range(4): a(f"v_mul_f32 v{16+e}, v{12+e}, v56")
    for e in range(4): a(f"v_mul_f32 v{12+e}, v{12+e}, v{16+e}")
    a("v_cvt_pk_bf16_f32 v12, v12, v13")
    a("v_cvt_pk_bf16_f32 v13, v14, v15")
    a("ds_write_b64 v1, v[12:13]")
    a("L_nohact:")
    a("s_cmp_lg_u32 s3, 0")
    a("s_cbranch_scc1 L_nolse")
    cnt_wait(8, "L_hml", 10, 21, 65, sleep=8, target=5)
    a("v_lshlrev_b32 v12, 4, v9")
    a(f"v_add_u32 v12, {M_L:#x}, v12")
    a("ds_read_b128 v[16:19], v12")
    a(f"ds_read_b128 v[32:35], v12 offset:{L_L-M_L}")
    a("s_and_b32 s6, s11, 0xfc")
    a("s_lshl_b32 s6, s6, 5")
    a("s_and_b32 s7, s11, 3")
    a("s_lshl_b32 s7, s7, 3")
    a("s_add_u32 s6, s6, s7")
    a(f"s_add_u32 s6, s6, {LG:#x}")
    a("v_lshlrev_b32 v13, 5, v9")
    a("s_waitcnt lgkmcnt(0)")
    a("v_max3_f32 v14, v16, v17, v18")
    a("v_max_f32 v14, v14, v19")
    for w in range(4): a(f"v_sub_f32 v{16+w}, v{16+w}, v14")
    for w in range(4): a(f"v_exp_f32 v{16+w}, v{16+w}")
    a("v_mul_f32 v36, v16, v32")
    for w in range(1, 4): a(f"v_fma_f32 v36, v{16+w}, v{32+w}, v36")
    a("v_log_f32 v36, v36")
    a("v_mov_b32 v15, s5")
    a("v_add_f32 v14, v14, v36")
    a("s_mov_b64 exec, 15")
    a("s_cmp_lg_u32 s92, 0")
    a("s_cbranch_scc1 L_lse_slow")
    a("buffer_store_dwordx2 v[14:15], v13, s[44:47], s6 offen")
    a("s_branch L_lse_done")
    a("L_lse_slow:")
    a("buffer_store_dwordx2 v[14:15], v13, s[44:47], s6 offen sc1")
    a("L_lse_done:")
    a("s_mov_b64 exec, -1")
    a("s_sub_u32 s6, s6, s7")
    a(f"s_mov_b32 s65, {spin_max}")
    a("L_lp:")
    a("s_sleep 8")
    a("buffer_load_dwordx4 v[28:31], v13, s[44:47], s6 offen sc1")
    a("buffer_load_dwordx4 v[32:35], v13, s[44:47], s6 offen offset:16 sc1")
    a("s_waitcnt vmcnt(0)")
    for k in range(4):
        a(f"v_xor_b32 v{29+2*k}, s5, v{29+2*k}")
    a("v_or3_b32 v29, v29, v31, v33")
    a("v_or_b32 v29, v29, v35")
    a("v_cmp_ne_u32 vcc, 0, v29")
    a("s_sub_u32 s65, s65, 1")
    a("s_cbranch_scc1 L_lp_go")
    a("s_cbranch_vccnz L_lp")
    a("L_lp_go:")
    a("v_max3_f32 v44, v28, v30, v32")
    a("v_max_f32 v44, v44, v34")
    for k in range(4):
        a(f"v_sub_f32 v{48+k}, v{28+2*k}, v44")
    for k in range(4):
        a(f"v_exp_f32 v{48+k}, v{48+k}")
    a("v_add_f32 v48, v48, v49")
    a("v_add_f32 v50, v50, v51")
    a("v_add_f32 v48, v48, v50")
    a("v_log_f32 v48, v48")
    a("v_lshlrev_b32 v12, 2, v9")
    a(f"v_add_u32 v12, {G_L+16:#x}, v12")
    a("v_add_f32 v48, v48, v44")
    a("s_mov_b64 exec, 15")
    a("ds_write_b32 v12, v48")
    a("s_mov_b64 exec, 1")
    a("ds_add_u32 v10, v20 offset:8")
    a("s_mov_b64 exec, -1")
    a("L_nolse:")
    cnt_wait(12, "L_trig", 10, 21, 65, sleep=2, target=ttarget)
    a(f"s_setprio {tprio}")
    a("s_mov_b32 m0, s67")
    a("s_nop 0")
    for i in range(4):
        a(f"buffer_load_dwordx4 v{24+i}, s[48:51], s62 offen offset:{i*1024} {lpol} lds")
    a("s_mov_b32 m0, s68")
    a("s_nop 0")
    for i in range(2):
        a(f"buffer_load_dwordx4 v{24+i}, s[56:59], s66 offen offset:{i*1024} {lpol} lds")
    for k in range(1, pf + 1):
        a(f"s_add_u32 s6, s60, {k}")
        a("s_and_b32 s6, s6, 7")
        a("s_sub_u32 s6, s6, s60")
        a("s_lshl_b32 s6, s6, 7")
        a("s_add_u32 s7, s6, s66")
        a("s_add_u32 s6, s6, s62")
        for i in range(4):
            a(f"buffer_load_dwordx4 v[{224+4*i}:{227+4*i}], v{24+i}, s[48:51], s6 offen offset:{i*1024} {lpol}")
        for i in range(2):
            a(f"buffer_load_dwordx4 v[{240+4*i}:{243+4*i}], v{24+i}, s[56:59], s7 offen offset:{i*1024} {lpol}")
    for k in range(4):
        a(f"v_mov_b32 v{65+2*k}, s5")
    a("v_add_u32 v9, 1088, v2")
    a("v_mov_b32 v36, 1")
    stamp(3)
    WOF, W2F, AF, ACC = 128, 192, 72, 96
    for k in range(4):
        a(f"v_mov_b32 v{60+k}, 0")
    a(f"s_waitcnt vmcnt({6*pf})")
    cnt_add(0, 10, 36)
    def p2_loads():
        for k in range(4):
            a(f"buffer_load_dwordx4 v[{12+4*k}:{15+4*k}], v5, s[44:47], s70 offen offset:{k*1024} sc1")
    cnt_wait(0, "L_s2", 10, 37, 65, sleep=1, target=8)
    stamp(6)
    for j in range(4):
        for aa in range(4):
            for eh in range(2):
                r = WOF + 16 * j + 4 * aa + 2 * eh
                a(f"ds_read_b64_tr_b16 v[{r}:{r+1}], v{120+aa} offset:{j*4096 + eh*512}")
        a("s_waitcnt lgkmcnt(4)")
    p2_loads()
    a("s_cmp_ge_u32 s61, 28")
    a("s_cbranch_scc1 L_nomlp")
    for j in range(2):
        for aa in range(4):
            for eh in range(2):
                r = W2F + 16 * j + 4 * aa + 2 * eh
                a(f"ds_read_b64_tr_b16 v[{r}:{r+1}], v{120+aa} offset:{W2_L-WO_L + j*4096 + eh*512}")
        a("s_waitcnt lgkmcnt(4)")
    a("ds_read_b128 v[88:91], v4")
    a("ds_read_b128 v[92:95], v4 offset:64")
    a("s_waitcnt lgkmcnt(0)")
    for j in range(2):
        for aa in range(4):
            c = "0" if j == 0 else f"v[{ACC+4*aa}:{ACC+4*aa+3}]"
            a(f"v_mfma_f32_16x16x32_bf16 v[{ACC+4*aa}:{ACC+4*aa+3}], v[{88+4*j}:{91+4*j}], v[{W2F+16*j+4*aa}:{W2F+16*j+4*aa+3}], {c}")
    for aa in range(4):
        a(f"v_mov_b32 v{60+aa}, v{ACC+4*aa}")
    a("L_nomlp:")
    a(f"s_mov_b32 s64, {spin_max}")
    stamp(4)
    if not sel:
        a("s_branch L_p2_body")
        a("L_p2_poll:")
        if p2sleep: a(f"s_sleep {p2sleep}")
        p2_loads()
        a("L_p2_body:")
        for k in range(4):
            a(f"s_waitcnt vmcnt({3-k})")
            va = "v2" if k < 2 else "v9"
            o = (k & 1) * 136
            a(f"ds_write2_b32 {va}, v{12+4*k}, v{14+4*k} offset0:{o} offset1:{o+1}")
            a(f"v_xor_b32 v{28+2*k}, s5, v{13+4*k}")
            a(f"v_xor_b32 v{29+2*k}, s5, v{15+4*k}")
        a("v_or3_b32 v28, v28, v29, v30")
        a("v_or3_b32 v31, v31, v32, v33")
        a("v_or3_b32 v28, v28, v34, v35")
        a("v_or_b32 v28, v28, v31")
        a("v_cmp_ne_u32 vcc, 0, v28")
        a("s_sub_u32 s64, s64, 1")
        a("s_waitcnt lgkmcnt(0)")
        a("s_cbranch_scc1 L_p2_go")
        a("s_cbranch_vccnz L_p2_poll")
    else:
        for k in range(4):
            a(f"s_waitcnt vmcnt({3-k})")
            a(f"s_branch L_pk{k}_chk")
            a(f"L_pk{k}:")
            if p2sleep: a(f"s_sleep {p2sleep}")
            for kk in range(k, min(k + 2, 4)):
                a(f"buffer_load_dwordx4 v[{12+4*kk}:{15+4*kk}], v5, s[44:47], s70 offen offset:{kk*1024} sc1")
            a("s_waitcnt vmcnt(0)")
            a(f"L_pk{k}_chk:")
            a(f"v_xor_b32 v28, s5, v{13+4*k}")
            a(f"v_xor_b32 v29, s5, v{15+4*k}")
            a("v_or_b32 v28, v28, v29")
            a("v_cmp_ne_u32 vcc, 0, v28")
            a("s_sub_u32 s64, s64, 1")
            a(f"s_cbranch_scc1 L_pk{k}_go")
            a(f"s_cbranch_vccnz L_pk{k}")
            a(f"L_pk{k}_go:")
            va = "v2" if k < 2 else "v9"
            o = (k & 1) * 136
            a(f"ds_write2_b32 {va}, v{12+4*k}, v{14+4*k} offset0:{o} offset1:{o+1}")
            a(f"s_mov_b32 s64, {spin_max}")
        a("s_waitcnt lgkmcnt(0)")
    a("L_p2_go:")
    if fwait: cnt_add(28, 10, 36)
    for j in range(4):
        a(f"ds_read_b128 v[{AF+4*j}:{AF+4*j+3}], v58 offset:{j*64}")
    for j in range(4):
        a(f"s_waitcnt lgkmcnt({3-j})")
        for aa in range(4):
            c = "0" if j == 0 else f"v[{ACC+4*aa}:{ACC+4*aa+3}]"
            a(f"v_mfma_f32_16x16x32_bf16 v[{ACC+4*aa}:{ACC+4*aa+3}], v[{AF+4*j}:{AF+4*j+3}], v[{WOF+16*j+4*aa}:{WOF+16*j+4*aa+3}], {c}")
    a("s_mov_b64 exec, 0xffffffff")
    for aa in range(4):
        a(f"v_add_f32 v{60+aa}, v{60+aa}, v{ACC+4*aa}")
        a(f"v_add_f32 v{48+aa}, v{ACC+4*aa+1}, v{ACC+4*aa+2}")
        a(f"v_add_f32 v{60+aa}, v{60+aa}, v{ACC+4*aa+3}")
        a(f"v_add_f32 v{64+2*aa}, v{60+aa}, v{48+aa}")
        if aa == 1: a(f"buffer_store_dwordx4 v[64:67], v59, s[44:47], s71 offen {pst}")
    a(f"buffer_store_dwordx4 v[68:71], v59, s[44:47], s8 offen {pst}")
    a("s_mov_b64 exec, -1")
    stamp(5)
    if stamps and stamps != "min":
        a("s_add_u32 s3, s3, 1")
        stamp_store("s3")
    a("L_end:")
    a("s_endpgm")
    a.raw('.section .rodata,"a"')
    a.raw(".p2align 6")
    a.raw(f".amdhsa_kernel {NAME}_kernel")
    a.raw("  .amdhsa_next_free_vgpr 256")
    a.raw("  .amdhsa_next_free_sgpr 96")
    a.raw("  .amdhsa_accum_offset 256")
    a.raw("  .amdhsa_group_segment_fixed_size 0")
    a.raw("  .amdhsa_kernarg_size 112")
    a.raw("  .amdhsa_user_sgpr_count 2")
    a.raw("  .amdhsa_user_sgpr_kernarg_segment_ptr 1")
    a.raw("  .amdhsa_system_sgpr_workgroup_id_x 1")
    a.raw(".end_amdhsa_kernel")
    return a.text()

if __name__ == "__main__":
    out = sys.argv[1]
    kw = json.loads(sys.argv[2]) if len(sys.argv) > 2 else {}
    open(out, "w").write(gen(**kw))
```

```python
import sys, json, math, struct
from asmdsl import Asm
NAME = "gated_mix__gqa_block_cached__dense_activation_squared_relu__decode"

GG, LG = 0x3000, 0x10000
QP, HP, OG, PG = 0x100000, 0x80000, 0x200000, 0x300000
STAMP = 0x8000000
def f32(x): return "0x%08x" % struct.unpack("<I", struct.pack("<f", x))[0]
CSC = math.log2(math.e) / math.sqrt(128.0)
LOG2E = math.log2(math.e)
HEADER = open("cdna_kernels/" + NAME + ".s.ref").read().split("; Override launch geometry")[0]

def gen(stamps=False, kvpol="nt", wpol="nt", spin_max=400000, D1=6, D2=6, qsleep=4, qtrig=6,
        trig=15, npre=4, rot=False, qfail=5, force_slow=False, pf=0, lpol=None, wprio=0, tprio=1, wsleep=1, fsleep=0, Dhi=0, nhi=128, p2pos=0, ilv=0, p2sleep=2, pst='sc1', pld='sc1', sel=False, fwait=False, ttarget=4, early=True, st2=False, spread=False, estpol='sc1', ostpol='sc1', D3=0, n3=4, pad=0, padwg=-1, amap=1, hprio=0, sprio=2, w2early=False, outpol="", touch=0, no_h=False, no_wo=False, no_qp=False, no_st=False, no_gate=False):
    a = Asm()
    if lpol is None: lpol = wpol
    NST = 8
    QSTR, HSTR = (67584, 540672) if spread else (2048, 16384)
    QP, HP = (0x1000000, 0x3000000) if spread else (0x100000, 0x80000)
    WQ_L, W1_L = 0x20000, 0x24000
    WO_L, W2_L = WQ_L, W1_L
    Q_L, M_L, L_L, G_L, C_L, HA_L = 0x26000, 0x26400, 0x26440, 0x26480, 0x264c0, 0x26500
    LDS_TOTAL = HA_L + 8 * 144
    AS_OFF = 0x1000
    a.raw(HEADER.rstrip())
    a.raw(f"; @launch grid=(256,1,1) block=(512,1,1) lds={LDS_TOTAL}")
    a.raw('.amdgcn_target "amdgcn-amd-amdhsa--gfx950"')
    a.raw(".text")
    a.raw(f".globl {NAME}_kernel")
    a.raw(".p2align 8")
    a.raw(f".type {NAME}_kernel,@function")
    a.label(f"{NAME}_kernel")

    def srd(d, base, size):
        a(f"s_mov_b32 s{d}, s{base}")
        a(f"s_mov_b32 s{d+1}, s{base+1}")
        a(f"s_mov_b32 s{d+2}, {size:#x}")
        a(f"s_mov_b32 s{d+3}, 0x00020000")
    def stamp(i, force=False):
        if stamps and (stamps != "min" or force):
            a(f"s_memrealtime s[{72+2*i}:{73+2*i}]")
            a("s_waitcnt lgkmcnt(0)")
    def stamp_store(slot):
        if not stamps: return
        a(f"s_lshl_b32 s6, s2, 3")
        a(f"s_add_u32 s6, s6, {slot}")
        a(f"s_mul_i32 s6, s6, {NST*8}")
        a(f"s_add_u32 s6, s6, {STAMP:#x}")
        a("s_mov_b64 exec, 1")
        a("v_mov_b32 v1, 0")
        for i in range(0, NST, 2):
            for k in range(4):
                a(f"v_mov_b32 v{4+k}, s{72+2*i+k}")
            a(f"buffer_store_dwordx4 v[4:7], v1, s[44:47], s6 offen offset:{i*8}")
            a("s_nop 1")
        a("s_mov_b64 exec, -1")
    def tagcalc():
        a("s_waitcnt lgkmcnt(0)")
        a("s_and_b32 s5, s4, 0xfffffff8")
        a("s_add_u32 s5, s5, 0x9abcde8")
    def xlane(op, r, tmp):
        a(f"{op}_dpp v{r}, v{r}, v{r} row_ror:4 row_mask:0xf bank_mask:0xf")
        a(f"{op}_dpp v{r}, v{r}, v{r} row_ror:8 row_mask:0xf bank_mask:0xf")
        a(f"v_mov_b32 v{tmp}, v{r}")
        a(f"v_permlane16_swap_b32 v{r}, v{tmp}")
        a(f"{op} v{r}, v{r}, v{tmp}")
        a(f"v_mov_b32 v{tmp}, v{r}")
        a(f"v_permlane32_swap_b32 v{r}, v{tmp}")
        a(f"{op} v{r}, v{r}, v{tmp}")
    def cnt_add(off, vaddr, vone):
        a("s_mov_b64 exec, 1")
        a(f"ds_add_u32 v{vaddr}, v{vone} offset:{off}")
        a("s_mov_b64 exec, -1")
    def cnt_wait(off, lbl, vaddr, vtmp, sreg, sleep=0, target=4):
        a(f"s_mov_b32 s{sreg}, {spin_max*4}")
        a(f"{lbl}:")
        a(f"ds_read_b32 v{vtmp}, v{vaddr} offset:{off}")
        a("s_waitcnt lgkmcnt(0)")
        a(f"v_cmp_gt_u32 vcc, {target}, v{vtmp}")
        a(f"s_cbranch_vccz {lbl}_go")
        if sleep: a(f"s_sleep {sleep}")
        a(f"s_sub_u32 s{sreg}, s{sreg}, 1")
        a(f"s_cbranch_scc0 {lbl}")
        a(f"{lbl}_go:")
    def unit_id():
        if amap == 1:
            a("s_and_b32 s11, s2, 0xe0")
            a("s_and_b32 s6, s2, 7")
            a("s_lshl_b32 s6, s6, 2")
            a("s_add_u32 s11, s11, s6")
            a("s_bfe_u32 s6, s2, 0x20003")
            a("s_add_u32 s11, s11, s6")
        elif amap == 2:
            a("s_and_b32 s11, s2, 7")
            a("s_lshl_b32 s11, s11, 5")
            a("s_lshr_b32 s6, s2, 3")
            a("s_add_u32 s11, s11, s6")
        else:
            a("s_mov_b32 s11, s2")

    a("s_cmp_ge_u32 s2, 256")
    a("s_cbranch_scc1 L_end")
    if stamps:
        for i in range(NST):
            a(f"s_mov_b64 s[{72+2*i}:{73+2*i}], 0")
        a("s_memrealtime s[72:73]")
    if pad: a("s_memrealtime s[72:73]")
    a("s_load_dwordx16 s[16:31], s[0:1], 0")
    a("s_load_dwordx8 s[32:39], s[0:1], 64")
    a("s_load_dwordx4 s[40:43], s[0:1], 96")
    a("v_lshrrev_b32 v1, 6, v0")
    a("v_and_b32 v0, 63, v0")
    a("v_readfirstlane_b32 s3, v1")
    a("v_lshrrev_b32 v6, 4, v0")
    a("v_and_b32 v7, 15, v0")
    a("v_lshlrev_b32 v5, 4, v0")
    unit_id()
    a("s_cmp_lt_u32 s3, 4")
    a("s_cbranch_scc1 L_stream")

    a("s_setprio 3")
    a(f"v_mov_b32 v10, {C_L:#x}")
    for k in range(4): a(f"v_mov_b32 v{12+k}, 0")
    a("ds_write_b128 v10, v[12:15]")
    a("ds_write_b128 v10, v[12:15] offset:16")
    a("s_getreg_b32 s91, hwreg(HW_REG_XCC_ID)")
    a("s_sub_u32 s3, s3, 4")
    a("v_lshrrev_b32 v16, 3, v0")
    a("v_and_b32 v8, 7, v0")
    a("v_lshlrev_b32 v1, 13, v16")
    a("v_lshl_add_u32 v1, v8, 4, v1")
    for i in range(1, 4):
        a(f"v_add_u32 v{1+i}, {i*(65536-1024)}, v1")
    a("v_mul_u32_u24 v16, 3584, v16")
    a("v_lshl_add_u32 v16, v8, 4, v16")
    a(f"v_add_u32 v17, {8*3584-1024}, v16")
    a("v_lshlrev_b32 v18, 10, v8")
    a("v_lshl_add_u32 v19, v6, 3, v18")
    a("v_lshl_add_u32 v18, v6, 4, v18")
    a("s_bfe_u32 s61, s2, 0x20003")
    a("s_and_b32 s60, s2, 7")
    a("s_lshl_b32 s60, s60, 3")
    a("s_lshr_b32 s6, s2, 5")
    a("s_add_u32 s60, s60, s6")
    a("s_lshl_b32 s62, s61, 20")
    a("s_lshl_b32 s6, s60, 7")
    a("s_add_u32 s62, s62, s6")
    a("s_lshl_b32 s6, s3, 18")
    a("s_add_u32 s62, s62, s6")
    a("s_lshl_b32 s6, s3, 12")
    a(f"s_add_u32 s67, s6, {WQ_L:#x}")
    a("s_lshl_b32 s6, s3, 11")
    a(f"s_add_u32 s68, s6, {W1_L:#x}")
    a("s_lshl_b32 s63, s61, 8")
    a("s_lshl_b32 s6, s3, 6")
    a("s_add_u32 s63, s63, s6")
    a("s_lshr_b32 s66, s60, 1")
    a("s_and_b32 s69, s60, 1")
    a("s_lshl_b32 s70, s61, 1")
    a("s_add_u32 s70, s70, s69")
    a("s_lshl_b32 s6, s70, 2")
    a("s_add_u32 s6, s6, s3")
    a(f"s_mul_i32 s65, s6, {16*3584}")
    a("s_lshl_b32 s64, s6, 5")
    a("s_lshl_b32 s6, s66, 7")
    a("s_add_u32 s65, s65, s6")
    a("s_mov_b32 m0, s67")
    a("s_waitcnt lgkmcnt(0)")
    srd(48, 22, 0x400000)
    srd(52, 16, 8192)
    XF, BF, AC = 64, 128, 80
    for i in range(4):
        a(f"buffer_load_dwordx4 v{1+i}, s[48:51], s62 offen offset:{i*1024} {wpol} lds")
    a(f"buffer_load_dwordx4 v[{XF}:{XF+3}], v18, s[52:55], s63 offen")
    a("s_mov_b32 m0, s68")
    srd(56, 28, 512 * 3584)
    a("s_cmp_ge_u32 s66, 28")
    a("s_cbranch_scc1 L_now1a")
    a(f"buffer_load_dwordx4 v16, s[56:59], s65 offen {wpol} lds")
    a(f"buffer_load_dwordx4 v17, s[56:59], s65 offen offset:1024 {wpol} lds")
    a(f"buffer_load_dwordx2 v[{XF+4}:{XF+5}], v19, s[52:55], s64 offen")
    a("L_now1a:")
    a("s_load_dword s4, s[42:43], 0")
    a("s_barrier")
    srd(44, 42, 0x10000000)
    a("v_lshrrev_b32 v16, 2, v7")
    a("v_and_b32 v9, 3, v0")
    a("v_lshl_add_u32 v17, v6, 3, v16")
    a("v_lshlrev_b32 v11, 7, v17")
    a("v_lshl_add_u32 v11, v9, 3, v11")
    a("v_add_u32 v3, s67, v11")
    a("v_lshl_add_u32 v17, v6, 2, v16")
    a("v_lshlrev_b32 v2, 7, v17")
    a("v_lshl_add_u32 v2, v9, 3, v2")
    a("v_add_u32 v2, s68, v2")
    a("v_mov_b32 v20, 1")
    a("v_xor_b32 v1, v6, v8")
    a("v_lshlrev_b32 v1, 4, v1")
    a("v_lshl_add_u32 v1, v8, 8, v1")
    a("v_add_u32 v1, s67, v1")
    a("v_xor_b32 v19, 64, v1")
    a("v_and_b32 v16, 1, v6")
    a("s_lshl_b32 s6, s3, 1")
    a("v_add_u32 v16, s6, v16")
    a("v_xor_b32 v17, v16, v7")
    a("v_lshlrev_b32 v17, 4, v17")
    a("v_lshl_add_u32 v16, v16, 8, v17")
    a("v_bfe_u32 v17, v0, 3, 2")
    a("s_lshl_b32 s6, s3, 2")
    a("v_add_u32 v17, s6, v17")
    a("v_xor_b32 v17, v17, v8")
    a("v_lshlrev_b32 v17, 4, v17")
    a("v_lshl_add_u32 v18, v8, 8, v17")
    a("v_add_u32 v18, 2048, v18")
    a("s_mov_b32 s6, 0")
    a("s_mov_b32 s7, -1")
    a("v_cndmask_b32 v16, v16, v18, s[6:7]")
    a(f"v_add_u32 v16, {WQ_L:#x}, v16")
    a("v_and_b32 v17, 1, v6")
    a(f"v_mul_u32_u24 v17, {32*QSTR}, v17")
    a("v_lshl_add_u32 v17, v7, 4, v17")
    a("s_lshl_b32 s63, s3, 6")
    a("s_lshr_b32 s8, s60, 1")
    a("s_add_u32 s63, s63, s8")
    a(f"s_mul_i32 s63, s63, {QSTR}")
    a("s_lshl_b32 s8, s61, 9")
    a("s_add_u32 s63, s63, s8")
    a("s_lshl_b32 s8, s69, 8")
    a("s_add_u32 s63, s63, s8")
    a(f"s_add_u32 s63, s63, {QP:#x}")
    a("v_add_u32 v17, s63, v17")
    a(f"s_mul_i32 s64, s66, {HSTR}")
    a("s_lshl_b32 s8, s70, 9")
    a("s_add_u32 s64, s64, s8")
    a("s_lshl_b32 s8, s3, 12")
    a("s_add_u32 s64, s64, s8")
    a(f"s_add_u32 s64, s64, {HP-512:#x}")
    a("v_add_u32 v18, s64, v5")
    a("v_cndmask_b32 v4, v17, v18, s[6:7]")
    a("s_cmp_lt_u32 s66, 28")
    a("s_cselect_b32 s9, -1, 0")
    tagcalc()
    a("s_and_b32 s91, s91, 7")
    a("s_or_b32 s91, s91, s5")
    a("v_mov_b32 v113, s91")
    a("v_mov_b32 v115, s91")
    a("s_waitcnt vmcnt(0)")
    for aa in range(4):
        for eh in range(2):
            r = BF + 4 * aa + 2 * eh
            a(f"ds_read_b64_tr_b16 v[{r}:{r+1}], v3 offset:{eh*512 + aa*32}")
    for aa in range(4):
        r = BF + 16 + 2 * aa
        a(f"ds_read_b64_tr_b16 v[{r}:{r+1}], v2 offset:{aa*32}")
    for aa in range(4):
        a(f"s_waitcnt lgkmcnt({10-2*aa})")
        a(f"v_mfma_f32_16x16x32_bf16 v[{AC+4*aa}:{AC+4*aa+3}], v[{BF+4*aa}:{BF+4*aa+3}], v[{XF}:{XF+3}], 0")
    for aa in range(4):
        a(f"s_waitcnt lgkmcnt({3-aa})")
        a(f"v_mfma_f32_16x16x16_bf16 v[{AC+16+4*aa}:{AC+16+4*aa+3}], v[{BF+16+2*aa}:{BF+16+2*aa+1}], v[{XF+4}:{XF+5}], 0")
    a("s_mov_b32 exec_lo, 0x00ff00ff")
    a("s_mov_b32 exec_hi, 0x00ff00ff")
    for part in range(2):
        for aa in range(4):
            r = AC + 16 * part + 4 * aa
            a(f"ds_write_b128 v{1 if aa % 2 == 0 else 19}, v[{r}:{r+3}] offset:{part*2048 + (aa>>1)*128}")
    a("s_mov_b64 exec, 1")
    a("s_waitcnt lgkmcnt(0)")
    a("ds_add_u32 v10, v20")
    a("s_mov_b64 exec, -1")
    cnt_wait(0, "L_s1", 10, 21, 65)
    for j in range(4):
        a(f"ds_read_b128 v[{32+4*j}:{35+4*j}], v16 offset:{j*4096}")
    a("s_waitcnt lgkmcnt(2)")
    for e in range(4): a(f"v_add_f32 v{32+e}, v{32+e}, v{36+e}")
    a("s_waitcnt lgkmcnt(0)")
    for e in range(4): a(f"v_add_f32 v{40+e}, v{40+e}, v{44+e}")
    for e in range(4): a(f"v_add_f32 v{32+e}, v{32+e}, v{40+e}")
    a("v_cvt_pk_bf16_f32 v112, v32, v33")
    a("v_cvt_pk_bf16_f32 v114, v34, v35")
    a("v_mov_b32 v116, v4")
    a("s_mov_b32 s92, 0")
    a("s_mov_b32 exec_hi, s9")
    a("buffer_store_dwordx4 v[112:115], v116, s[44:47], 0 offen")
    a("s_mov_b64 exec, -1")
    stamp(1)
    a("s_branch L_helper2")

    a("L_stream:")
    a("v_lshlrev_b32 v1, 2, v6")
    a("v_xor_b32 v1, v1, v7")
    a("v_xor_b32 v2, 1, v1")
    a("v_xor_b32 v3, 2, v1")
    a("v_xor_b32 v4, 3, v1")
    a("v_lshlrev_b32 v8, 8, v6")
    for i in range(4):
        a(f"v_lshl_add_u32 v{1+i}, v{1+i}, 4, v8")
    TS = 16384
    if ilv == 1:
        a("s_lshr_b32 s7, s11, 2")
        a("s_lshl_b32 s7, s7, 20")
        a("s_and_b32 s6, s11, 3")
        a("s_lshl_b32 s6, s6, 14")
        a("s_add_u32 s7, s7, s6")
        TS = 65536
    else:
        a("s_lshl_b32 s7, s11, 18")
    for r in range(4):
        a(f"s_add_u32 s6, s3, {r if rot else 0}")
        a("s_and_b32 s6, s6, 3")
        a("s_lshl_b32 s6, s6, 12")
        a(f"s_add_u32 s{12+r}, s7, s6")
    a("s_mov_b32 s60, s12")
    a("s_mov_b32 s61, s12")
    a("s_lshl_b32 s62, s3, 15")
    a("s_waitcnt lgkmcnt(0)")
    if st2: stamp(3)
    srd(48, 18, 0x4000000)
    srd(52, 20, 0x4000000)
    a("s_load_dword s4, s[42:43], 0")
    if touch == 1:
        a("s_load_dword s88, s[20:21], s60")
        a("s_and_b32 s6, s2, 7")
        a("s_lshl_b32 s6, s6, 19")
        a("s_load_dword s89, s[24:25], s6")
        a("s_load_dword s90, s[32:33], 0")
        a("s_load_dword s91, s[30:31], 0")
        a("s_load_dword s92, s[34:35], 0")
        a("s_load_dword s93, s[36:37], 0")
        a(f"s_mov_b32 s6, {OG:#x}")
        a("s_load_dword s94, s[42:43], s6")
        a("s_load_dword s95, s[38:39], 0")
    if not early: a("s_barrier")
    if st2: stamp(4)

    nissued = [0]
    pos = {}
    covered = [0]
    Dcur = [D1]
    lblc = [0]
    def setmode():
        if Dhi:
            a("s_bitcmp1_b32 s2, 2")
            a("s_cselect_b64 vcc, -1, 0")
    def throttle():
        D = Dcur[0]
        if Dhi and nissued[0] < nhi:
            if nissued[0] - covered[0] > Dhi - 1:
                a(f"s_waitcnt vmcnt({Dhi-1})")
                covered[0] = nissued[0] - (Dhi - 1)
            if nissued[0] >= D:
                lblc[0] += 1
                a(f"s_cbranch_vccnz L_t{lblc[0]}")
                a(f"s_waitcnt vmcnt({D-1})")
                a(f"L_t{lblc[0]}:")
            return
        if D >= 63: return
        if nissued[0] - covered[0] > D - 1:
            a(f"s_waitcnt vmcnt({D-1})")
            covered[0] = nissued[0] - (D - 1)
    def issueK(tt):
        a(f"s_add_u32 m0, s62, {(tt & 7) * 4096}")
        for i in range(4):
            throttle()
            a(f"buffer_load_dwordx4 v{1+i}, s[48:51], s60 offen offset:{i*1024} {kvpol} lds")
            nissued[0] += 1
        pos[("k", tt)] = nissued[0]
        if tt < 15: a(f"s_add_u32 s60, s{12+((tt+1)&3)}, {(tt+1)*TS}")
    def vreg(tt, i):
        return 64 + 4 * (4 * (tt % 12) + i)
    def issueV(tt):
        for i in range(4):
            r = vreg(tt, i)
            throttle()
            a(f"buffer_load_dwordx4 v[{r}:{r+3}], v5, s[52:55], s61 offen offset:{i*1024} {kvpol}")
            nissued[0] += 1
            pos[("v", tt, i)] = nissued[0]
        pos[("v", tt)] = nissued[0]
        if tt < 15: a(f"s_add_u32 s61, s{12+((tt+1)&3)}, {(tt+1)*TS}")
    def waitfor(key):
        if pos[key] <= covered[0]: return
        n = min(nissued[0] - pos[key], 63)
        a(f"s_waitcnt vmcnt({n})")
        covered[0] = nissued[0] - n

    setmode()
    issueK(0)
    if early: a("s_barrier")
    if sprio: a(f"s_setprio {sprio}")
    srd(44, 42, 0x10000000)
    a("v_and_b32 v8, 3, v7")
    a("v_lshlrev_b32 v8, 10, v8")
    a("v_lshrrev_b32 v9, 2, v7")
    a("v_lshl_add_u32 v8, v9, 8, v8")
    a("v_add_u32 v8, s62, v8")
    a("v_xor_b32 v9, v6, v7")
    a("v_and_b32 v44, 3, v7")
    a("v_lshlrev_b32 v44, 8, v44")
    a("v_lshl_add_u32 v44, v6, 4, v44")
    a(f"v_add_u32 v44, {Q_L:#x}, v44")
    a("v_xor_b32 v45, 4, v9")
    a("v_xor_b32 v46, 8, v9")
    a("v_xor_b32 v47, 12, v9")
    a("v_lshl_add_u32 v6, v9, 4, v8")
    a("v_lshl_add_u32 v7, v45, 4, v8")
    a("v_lshl_add_u32 v9, v47, 4, v8")
    a("v_lshl_add_u32 v8, v46, 4, v8")
    a("s_mov_b32 s64, 0x00f000f0"); a("s_mov_b32 s65, 0x00f000f0")
    a("s_mov_b32 s66, 0x0f000f00"); a("s_mov_b32 s67, 0x0f000f00")
    a("s_mov_b32 s70, 0xf000f000"); a("s_mov_b32 s71, 0xf000f000")
    MASK = {1: "s[64:65]", 2: "s[66:67]", 3: "s[70:71]"}
    a("s_mov_b32 s8, 0x05040100")
    a("s_mov_b32 s9, 0x07060302")
    a(f"s_mov_b32 s10, {f32(CSC)}")
    a(f"v_mov_b32 v45, {C_L:#x}")
    a("v_mov_b32 v46, 1")
    srd(56, 34, 1024)
    a("s_and_b32 s6, s11, 31")
    a("s_lshr_b32 s6, s6, 1")
    a("s_lshl_b32 s6, s6, 5")
    a("s_and_b32 s7, s11, 1")
    a("s_lshl_b32 s7, s7, 3")
    a("s_add_u32 s69, s6, s7")
    a("s_lshl_b32 s68, s69, 1")
    a("v_and_b32 v12, 7, v0")
    a("v_lshlrev_b32 v12, 1, v12")
    tagcalc()
    seqno = [1]
    def tick():
        if seqno[0] == qtrig:
            cnt_add(16, 45, 46)
        seqno[0] += 1
    for tt in range(1, 8):
        issueK(tt); tick()
        if st2 and tt == 1: stamp(7)
        if st2 and tt == 3: stamp(2)
    a("buffer_load_ushort v10, v12, s[56:59], s68 offen")
    a("buffer_load_ushort v11, v12, s[56:59], s68 offen offset:32")
    nissued[0] += 2
    vn = [0]
    def nextV():
        if D3 and vn[0] >= 16 - n3: Dcur[0] = D3
        issueV(vn[0]); vn[0] += 1
        if vn[0] - 1 == trig:
            a(f"v_mov_b32 v1, {C_L:#x}")
            a("v_mov_b32 v2, 1")
            cnt_add(12, 1, 2)
    for tt in range(0, npre):
        nextV(); tick()
    stamp(1)
    cnt_wait(4, "L_wq", 45, 46, 63)
    setmode()
    if not st2: stamp(2)
    Dcur[0] = D2
    QFR, KT, DT, SD = 12, 28, 44, 48
    for j in range(4):
        a(f"ds_read_b128 v[{QFR+4*j}:{QFR+4*j+3}], v44 offset:{64*j}")
    a("s_waitcnt lgkmcnt(0)")
    def S(tt):
        waitfor(("k", tt))
        slot = tt & 7
        G = tt >> 1; t = G & 3; st = 2 * (G >> 2) + (tt & 1)
        dst = SD + 4 * st if t == 0 else DT
        for j in range(4):
            a(f"ds_read_b128 v[{KT+4*j}:{KT+4*j+3}], v{6+j} offset:{slot*4096}")
        for j in range(4):
            a(f"s_waitcnt lgkmcnt({3-j})")
            c = "0" if j == 0 else f"v[{dst}:{dst+3}]"
            a(f"v_mfma_f32_16x16x32_bf16 v[{dst}:{dst+3}], v[{KT+4*j}:{KT+4*j+3}], v[{QFR+4*j}:{QFR+4*j+3}], {c}")
        return (t, st)
    def Ssel(ts):
        t, st = ts
        if t != 0:
            for r in range(4):
                a(f"v_cndmask_b32 v{SD+4*st+r}, v{SD+4*st+r}, v{DT+r}, {MASK[t]}")
    for tt in range(8):
        ts = S(tt)
        issueK(tt + 8)
        Ssel(ts)
        if tt >= 2:
            Ssel(S(tt + 6))
    nextV(); Ssel(S(14))
    nextV(); Ssel(S(15))
    a(f"v_max3_f32 v44, v{SD}, v{SD+1}, v{SD+2}")
    a(f"v_max3_f32 v45, v{SD+3}, v{SD+4}, v{SD+5}")
    a(f"v_max3_f32 v46, v{SD+6}, v{SD+7}, v{SD+8}")
    a(f"v_max3_f32 v47, v{SD+9}, v{SD+10}, v{SD+11}")
    a(f"v_max3_f32 v44, v44, v{SD+12}, v{SD+13}")
    a(f"v_max3_f32 v45, v45, v{SD+14}, v{SD+15}")
    a(f"v_max3_f32 v44, v44, v46, v47")
    a(f"v_max_f32 v44, v44, v45")
    xlane("v_max_f32", 44, 45)
    a("v_mul_f32 v44, s10, v44")
    a("v_and_b32 v46, 3, v0")
    a("v_lshlrev_b32 v46, 4, v46")
    a("s_lshl_b32 s6, s3, 2")
    a(f"s_add_u32 s6, s6, {M_L:#x}")
    a("v_add_u32 v47, s6, v46")
    for i in range(16):
        a(f"v_fma_f32 v{SD+i}, v{SD+i}, s10, -v44")
    nextV()
    for i in range(16):
        a(f"v_exp_f32 v{SD+i}, v{SD+i}")
    a(f"v_add_f32 v28, v{SD}, v{SD+1}")
    a(f"v_add_f32 v29, v{SD+2}, v{SD+3}")
    a(f"v_add_f32 v30, v{SD+4}, v{SD+5}")
    a(f"v_add_f32 v31, v{SD+6}, v{SD+7}")
    for k in range(2):
        for q in range(4):
            a(f"v_add_f32 v{28+q}, v{28+q}, v{SD+8+4*k+q}")
    a("v_add_f32 v28, v28, v29")
    a("v_add_f32 v30, v30, v31")
    a("v_add_f32 v28, v28, v30")
    xlane("v_add_f32", 28, 29)
    a("s_mov_b64 exec, 15")
    a("ds_write_b32 v47, v44")
    a(f"ds_write_b32 v47, v28 offset:{L_L-M_L}")
    a("s_mov_b64 exec, -1")
    for i in range(8):
        a(f"v_cvt_pk_bf16_f32 v{SD+i}, v{SD+2*i}, v{SD+2*i+1}")
    a(f"v_mov_b32 v1, {C_L:#x}")
    a("v_mov_b32 v2, 1")
    a("s_waitcnt lgkmcnt(0)")
    cnt_add(8, 1, 2)
    if not st2: stamp(3)
    OA, AT, PT = 12, 44, 56
    def PV(G, last=False):
        t = G & 3; aa = G >> 2
        src = SD + 4 * aa
        if t != 0:
            for i in range(4):
                a(f"v_mov_b32_dpp v{AT+i}, v{src+i} row_shl:{4*t} row_mask:0xf bank_mask:0xf bound_ctrl:0")
            src = AT
        X, Y = 2 * G, 2 * G + 1
        def V(e, p):
            return vreg(X if e < 4 else Y, e & 3) + p
        if not last:
            waitfor(("v", Y))
            def perms(dd):
                p, sel = dd >> 1, ("s8" if (dd & 1) == 0 else "s9")
                tb = PT + 4 * (dd & 1)
                for q in range(4):
                    a(f"v_perm_b32 v{tb+q}, v{V(2*q+1, p)}, v{V(2*q, p)}, {sel}")
            def mf(dd):
                tb = PT + 4 * (dd & 1)
                c = "0" if G == 0 else f"v[{OA+4*dd}:{OA+4*dd+3}]"
                a(f"v_mfma_f32_16x16x32_bf16 v[{OA+4*dd}:{OA+4*dd+3}], v[{src}:{src+3}], v[{tb}:{tb+3}], {c}")
            perms(0)
            for dd in range(8):
                if dd + 1 < 8: perms(dd + 1)
                mf(dd)
        else:
            TB = vreg(4, 0)
            for q in range(4):
                key = ("v", X if q < 2 else Y, (2 * q + 1) & 3)
                waitfor(key)
                for dd in range(8):
                    p, sel = dd >> 1, ("s8" if (dd & 1) == 0 else "s9")
                    a(f"v_perm_b32 v{TB+4*dd+q}, v{V(2*q+1, p)}, v{V(2*q, p)}, {sel}")
            for dd in range(8):
                a(f"v_mfma_f32_16x16x32_bf16 v[{OA+4*dd}:{OA+4*dd+3}], v[{src}:{src+3}], v[{TB+4*dd}:{TB+4*dd+3}], v[{OA+4*dd}:{OA+4*dd+3}]")
    def factors():
        a(f"v_mov_b32 v1, {C_L:#x}")
        cnt_wait(8, "L_wml", 1, 2, 63, target=6)
        a("s_lshl_b32 s6, s3, 4")
        a(f"s_add_u32 s6, s6, {M_L:#x}")
        a("v_lshrrev_b32 v3, 5, v0")
        a("v_lshl_add_u32 v1, v3, 3, s6")
        a("ds_read_b64 v[6:7], v1")
        a("s_lshl_b32 s6, s3, 2")
        a(f"s_add_u32 s7, s6, {G_L+16:#x}")
        a("v_mov_b32 v1, s7")
        a("ds_read_b32 v8, v1")
        a(f"v_mov_b32 v1, {G_L:#x}")
        a("ds_read_b32 v4, v1")
        a(f"ds_read_b32 v9, v1 offset:{C_L+24-G_L}")
        a("v_and_b32 v2, 1, v0")
        a("v_lshlrev_b32 v2, 10, v2")
        a("v_lshl_add_u32 v2, v3, 16, v2")
        a("v_bfe_u32 v3, v0, 1, 4")
        a("v_lshl_add_u32 v2, v3, 4, v2")
        a("v_add_u32 v2, s6, v2")
        a("v_add_u32 v3, s62, v5")
        a("s_waitcnt lgkmcnt(0)")
        a("v_readfirstlane_b32 s92, v9")
        a("v_sub_f32 v6, v6, v8")
        a("v_sub_f32 v7, v7, v8")
        a("v_exp_f32 v6, v6")
        a("v_exp_f32 v7, v7")
        a("v_sub_f32 v9, 1.0, v4")
        a("v_mul_f32 v6, v6, v4")
        a("v_mul_f32 v7, v7, v4")
        a("v_lshlrev_b32 v10, 16, v10")
        a("v_lshlrev_b32 v11, 16, v11")
        a("v_mul_f32 v10, v10, v9")
        a("v_mul_f32 v11, v11, v9")
        a("s_and_b32 s6, s11, 0x1c")
        a("s_add_u32 s6, s6, s3")
        a("s_lshl_b32 s63, s6, 14")
        a("s_lshr_b32 s6, s11, 5")
        a("s_lshl_b32 s6, s6, 11")
        a("s_add_u32 s63, s63, s6")
        a("s_and_b32 s6, s11, 3")
        a("s_lshl_b32 s6, s6, 9")
        a("s_add_u32 s63, s63, s6")
        a(f"s_add_u32 s63, s63, {OG:#x}")
        a(f"v_mov_b32 v1, {C_L:#x}")
        a("v_mov_b32 v4, 1")
    G = 0
    while vn[0] < 16:
        if vn[0] >= 12 and G <= (vn[0] - 12) // 2:
            PV(G); G += 1
            continue
        nextV()
        k = 0
        while vn[0] < 16 and 2 * G + 1 <= vn[0] - 3 and G < 6 and k < 2:
            PV(G); G += 1; k += 1
    if not st2: stamp(4)
    while G < 4:
        PV(G); G += 1
    factors()
    while G < 7:
        PV(G); G += 1
    PV(7, last=True)
    a("s_mov_b64 exec, 0xffff")
    for dd in range(8):
        a(f"ds_write_b128 v3, v[{OA+4*dd}:{OA+4*dd+3}] offset:{dd*256}")
    a("s_mov_b64 exec, 1")
    a("ds_add_u32 v1, v4 offset:20")
    a("s_mov_b64 exec, -1")
    a("v_mov_b32 v49, s5")
    a("v_mov_b32 v51, s5")
    a(f"s_mov_b32 s60, {spin_max*4}")
    a(f"s_setprio {wprio}")
    a("s_branch L_wo")
    a("L_wo_s:")
    if wsleep: a(f"s_sleep {wsleep}")
    a("L_wo:")
    a("ds_read_b32 v44, v1 offset:20")
    a("ds_read2st64_b32 v[52:53], v2 offset0:0 offset1:1")
    a("ds_read2st64_b32 v[54:55], v2 offset0:2 offset1:3")
    a("ds_read2st64_b32 v[56:57], v2 offset0:128 offset1:129")
    a("ds_read2st64_b32 v[58:59], v2 offset0:130 offset1:131")
    a("s_waitcnt lgkmcnt(4)")
    a("v_cmp_gt_u32 vcc, 4, v44")
    a("s_sub_u32 s60, s60, 1")
    a("s_cbranch_scc1 L_wo_go")
    a("s_cbranch_vccnz L_wo_s")
    a("L_wo_go:")
    a("s_setprio 3")
    a("s_waitcnt lgkmcnt(2)")
    for k in range(4):
        a(f"v_mul_f32 v{52+k}, v{52+k}, v6")
    a("s_waitcnt lgkmcnt(0)")
    for k in range(4):
        a(f"v_fma_f32 v{52+k}, v{56+k}, v7, v{52+k}")
    for k in range(4):
        a(f"v_mov_b32 v{56+k}, v{52+k}")
    for k in range(4):
        a(f"v_permlane32_swap_b32 v{52+k}, v{56+k}")
    for k in range(4):
        a(f"v_add_f32 v{52+k}, v{52+k}, v{56+k}")
    a("v_cvt_pk_bf16_f32 v48, v52, v53")
    a("v_cvt_pk_bf16_f32 v50, v54, v55")
    a("s_mov_b64 exec, 0xffffffff")
    a("s_cmp_lg_u32 s92, 0")
    a("s_cbranch_scc1 L_o_slow")
    a("buffer_store_dwordx4 v[48:51], v5, s[44:47], s63 offen")
    a("L_o_done:")
    a("s_setprio 0")
    a("s_mov_b64 exec, -1")
    stamp(5)
    a("s_cmp_lg_u32 s3, 0")
    a("s_cbranch_scc1 L_end")
    srd(48, 38, 8192)
    a("s_lshr_b32 s6, s11, 5")
    a("s_lshl_b32 s60, s11, 12")
    a(f"s_add_u32 s60, s60, {PG:#x}")
    a("s_lshl_b32 s6, s6, 9")
    a("s_add_u32 s6, s6, s69")
    a("s_lshl_b32 s61, s6, 1")
    a("v_lshlrev_b32 v2, 1, v0")
    if fwait:
        cnt_wait(28, "L_fw", 1, 44, 62, sleep=2, target=fwait)
    a(f"s_mov_b32 s62, {spin_max}")
    a("L_fin_poll:")
    if fsleep: a(f"s_sleep {fsleep}")
    for t in range(4):
        a(f"buffer_load_dwordx4 v[{12+4*t}:{15+4*t}], v5, s[44:47], s60 offen offset:{t*1024} {pld}")
    a("s_waitcnt vmcnt(2)")
    a("v_xor_b32 v28, s5, v13")
    a("v_xor_b32 v29, s5, v15")
    a("v_xor_b32 v30, s5, v17")
    a("v_xor_b32 v31, s5, v19")
    a("v_add_f32 v12, v12, v16")
    a("v_add_f32 v14, v14, v18")
    a("v_or3_b32 v28, v28, v29, v30")
    a("s_waitcnt vmcnt(0)")
    a("v_xor_b32 v29, s5, v21")
    a("v_xor_b32 v30, s5, v23")
    a("v_xor_b32 v32, s5, v25")
    a("v_xor_b32 v33, s5, v27")
    a("v_add_f32 v20, v20, v24")
    a("v_add_f32 v22, v22, v26")
    a("v_or3_b32 v28, v28, v31, v29")
    a("v_or3_b32 v30, v30, v32, v33")
    a("v_add_f32 v12, v12, v20")
    a("v_add_f32 v14, v14, v22")
    a("v_or_b32 v28, v28, v30")
    a("v_cmp_ne_u32 vcc, 0, v28")
    a("s_sub_u32 s62, s62, 1")
    a("s_cbranch_scc1 L_fin_go")
    a("s_cbranch_vccnz L_fin_poll")
    a("L_fin_go:")
    prs = ((12, 13), (14, 15))
    for r, tmp in prs: a(f"v_add_f32_dpp v{r}, v{r}, v{r} row_ror:8 row_mask:0xf bank_mask:0xf")
    for r, tmp in prs: a(f"v_mov_b32 v{tmp}, v{r}")
    for r, tmp in prs: a(f"v_permlane16_swap_b32 v{r}, v{tmp}")
    for r, tmp in prs: a(f"v_add_f32 v{r}, v{r}, v{tmp}")
    for r, tmp in prs: a(f"v_mov_b32 v{tmp}, v{r}")
    for r, tmp in prs: a(f"v_permlane32_swap_b32 v{r}, v{tmp}")
    a("v_add_f32 v12, v12, v13")
    a("v_add_f32 v14, v14, v15")
    a("v_add_f32 v12, v12, v10")
    a("v_add_f32 v14, v14, v11")
    a("v_cvt_pk_bf16_f32 v12, v12, v14")
    a("s_mov_b64 exec, 0xff")
    a(f"buffer_store_short v12, v2, s[48:51], s61 offen {outpol}")
    a(f"buffer_store_short_d16_hi v12, v2, s[48:51], s61 offen offset:32 {outpol}")
    a("s_cmp_lg_u32 s2, 0")
    a("s_cbranch_scc1 L_fin_done")
    a("s_mov_b64 exec, 1")
    a("v_mov_b32 v3, s5")
    a("v_mov_b32 v4, 0")
    a("buffer_store_dword v3, v4, s[44:47], 0 offen sc1")
    a("L_fin_done:")
    a("s_mov_b64 exec, -1")
    if pad:
        if padwg >= 0:
            a(f"s_cmp_lg_u32 s2, {padwg}")
            a("s_cbranch_scc1 L_end")
        a("L_pad:")
        a("s_memrealtime s[74:75]")
        a("s_waitcnt lgkmcnt(0)")
        a("s_sub_u32 s76, s74, s72")
        a(f"s_cmp_lt_u32 s76, {pad*100}")
        a("s_cbranch_scc1 L_pad")
    stamp(6, True)
    stamp_store(0)
    a("s_endpgm")

    a("L_o_slow:")
    a("buffer_store_dwordx4 v[48:51], v5, s[44:47], s63 offen sc1")
    a("s_branch L_o_done")

    a("L_helper2:")
    if touch == 2:
        a("s_cmp_lg_u32 s3, 2")
        a("s_cbranch_scc1 L_notouch")
        a("s_lshl_b32 s6, s11, 18")
        a("s_load_dword s88, s[20:21], s6")
        a("s_and_b32 s6, s2, 7")
        a("s_lshl_b32 s6, s6, 19")
        a("s_load_dword s89, s[24:25], s6")
        a("s_load_dword s90, s[32:33], 0")
        a("s_load_dword s91, s[30:31], 0")
        a("s_load_dword s92, s[34:35], 0")
        a(f"s_mov_b32 s6, {OG:#x}")
        a("s_load_dword s94, s[42:43], s6")
        a("s_load_dword s95, s[38:39], 0")
        a("s_waitcnt lgkmcnt(0)")
        a("L_notouch:")
    a("s_cmp_lg_u32 s3, 3")
    a("s_cbranch_scc1 L_nogate")
    srd(48, 36, 1024)
    a("s_lshr_b32 s60, s11, 5")
    a("s_lshl_b32 s62, s60, 10")
    a("buffer_load_dwordx4 v[32:35], v5, s[52:55], s62 offen")
    a("buffer_load_dwordx4 v[36:39], v5, s[48:51], 0 offen")
    a("v_mov_b32 v40, 0")
    a(f"v_mov_b32 v2, {G_L:#x}")
    a("s_waitcnt vmcnt(0)")
    for i in range(4):
        a(f"v_dot2_f32_bf16 v40, v{32+i}, v{36+i}, v40")
    a("v_add_f32_dpp v40, v40, v40 quad_perm:[1,0,3,2] row_mask:0xf bank_mask:0xf")
    a("v_add_f32_dpp v40, v40, v40 quad_perm:[2,3,0,1] row_mask:0xf bank_mask:0xf")
    xlane("v_add_f32", 40, 41)
    a(f"v_mul_f32 v40, {f32(-LOG2E)}, v40")
    a("v_exp_f32 v40, v40")
    a("v_add_f32 v40, 1.0, v40")
    a("v_rcp_f32 v40, v40")
    a("s_mov_b64 exec, 1")
    a("ds_write_b32 v2, v40")
    a("s_waitcnt lgkmcnt(0)")
    a("ds_add_u32 v10, v20 offset:8")
    a("s_and_b32 s6, s11, 31")
    a("s_cmp_lg_u32 s6, 0")
    a("s_cbranch_scc1 L_gate_done")
    a("v_sub_f32 v42, 1.0, v40")
    a("v_mov_b32 v43, s5")
    a("v_mov_b32 v44, 0")
    a("s_lshl_b32 s6, s60, 3")
    a(f"s_add_u32 s6, s6, {GG:#x}")
    a("buffer_store_dwordx2 v[42:43], v44, s[44:47], s6 offen sc1")
    a("L_gate_done:")
    a("s_mov_b64 exec, -1")
    a("L_nogate:")
    a("s_and_b32 s62, s11, 0xfc")
    a("s_add_u32 s62, s62, s3")
    a(f"s_mul_i32 s62, s62, {QSTR}")
    a(f"s_add_u32 s62, s62, {QP:#x}")
    a("s_lshl_b32 s6, s3, 8")
    a(f"s_add_u32 s6, s6, {Q_L:#x}")
    a("v_and_b32 v2, 31, v0")
    a("v_lshl_add_u32 v2, v2, 3, s6")
    cnt_wait(16, "L_qt", 10, 21, 65, sleep=4, target=1)
    a(f"s_mov_b32 s65, {spin_max}")
    a(f"s_mov_b32 s93, {qfail}")
    def republish(lbl):
        a("s_cmp_lg_u32 s92, 0")
        a(f"s_cbranch_scc1 {lbl}")
        a("s_mov_b32 s92, 1")
        a("s_mov_b32 exec_hi, s9")
        a("buffer_store_dwordx4 v[112:115], v116, s[44:47], 0 offen sc1")
        a("s_mov_b64 exec, 1")
        a("ds_write_b32 v10, v20 offset:24")
        a("s_mov_b64 exec, -1")
        a(f"{lbl}:")
    a("L_qp:")
    a("buffer_load_dwordx4 v[32:35], v5, s[44:47], s62 offen sc1")
    a("buffer_load_dwordx4 v[36:39], v5, s[44:47], s62 offen offset:1024 sc1")
    a("s_waitcnt vmcnt(0)")
    for k in range(4):
        a(f"v_xor_b32 v{33+2*k}, s91, v{33+2*k}")
    a("v_or3_b32 v33, v33, v35, v37")
    a("v_or_b32 v33, v33, v39")
    a("v_cmp_lt_u32 vcc, 7, v33")
    a("s_cbranch_vccz L_qp_go")
    if qsleep: a(f"s_sleep {qsleep}")
    a("s_sub_u32 s93, s93, 1")
    a("s_cbranch_scc0 L_qp")
    a("s_mov_b32 s93, 0")
    republish("L_rp1")
    a("s_sub_u32 s65, s65, 1")
    a("s_cbranch_scc0 L_qp")
    a("L_qp_go:")
    a("v_cmp_ne_u32 vcc, 0, v33")
    if not force_slow: a("s_cbranch_vccz L_rp2")
    republish("L_rp2")
    def unpack_sum(nk):
        for k in range(nk):
            for h in range(2):
                src = 32 + 4 * k + 2 * h
                if k == 0:
                    a(f"v_lshlrev_b32 v{12+2*h}, 16, v{src}")
                    a(f"v_and_b32 v{13+2*h}, 0xffff0000, v{src}")
                else:
                    a(f"v_lshlrev_b32 v{src+1}, 16, v{src}")
                    a(f"v_and_b32 v{src}, 0xffff0000, v{src}")
                    a(f"v_add_f32 v{12+2*h}, v{12+2*h}, v{src+1}")
                    a(f"v_add_f32 v{13+2*h}, v{13+2*h}, v{src}")
        for e in range(4): a(f"v_mov_b32 v{16+e}, v{12+e}")
        for e in range(4): a(f"v_permlane32_swap_b32 v{12+e}, v{16+e}")
        for e in range(4): a(f"v_add_f32 v{12+e}, v{12+e}, v{16+e}")
    unpack_sum(2)
    a("v_cvt_pk_bf16_f32 v12, v12, v13")
    a("v_cvt_pk_bf16_f32 v13, v14, v15")
    a("ds_write_b64 v2, v[12:13]")
    a("s_waitcnt lgkmcnt(0)")
    cnt_add(4, 10, 20)
    a(f"s_setprio {hprio}")
    a(f"s_mov_b32 s65, {spin_max*4}")
    a("L_qa:")
    a("ds_read_b32 v21, v10 offset:4")
    a("ds_read_b32 v22, v10 offset:24")
    a("s_waitcnt lgkmcnt(0)")
    a("v_cmp_ne_u32 vcc, 0, v22")
    a("s_cbranch_vccz L_rp3")
    republish("L_rp3")
    a("v_cmp_gt_u32 vcc, 4, v21")
    a("s_cbranch_vccz L_qa_go")
    a("s_sleep 2")
    a("s_sub_u32 s65, s65, 1")
    a("s_cbranch_scc0 L_qa")
    a("L_qa_go:")
    stamp(2)
    a("s_lshr_b32 s60, s2, 5")
    a("s_and_b32 s61, s2, 7")
    a("s_lshl_b32 s61, s61, 2")
    a("s_bfe_u32 s6, s2, 0x20003")
    a("s_add_u32 s61, s61, s6")
    srd(48, 24, 0x400000)
    srd(56, 32, 1792 * 1024)
    srd(52, 30, 3584)
    a("s_lshl_b32 s64, s60, 7")
    a("s_lshl_b32 s62, s61, 17")
    a("s_add_u32 s62, s62, s64")
    a("s_lshl_b32 s6, s3, 15")
    a("s_add_u32 s62, s62, s6")
    a("s_lshl_b32 s66, s61, 16")
    a("s_add_u32 s66, s66, s64")
    a("s_lshl_b32 s6, s3, 14")
    a("s_add_u32 s66, s66, s6")
    a(f"s_mov_b32 s90, {WO_L:#x}")
    a("v_lshrrev_b32 v24, 3, v0")
    a("v_and_b32 v12, 2, v24")
    a("v_xor_b32 v12, v12, v8")
    a("v_lshlrev_b32 v24, 10, v24")
    a("v_lshl_add_u32 v24, v12, 4, v24")
    a("v_xor_b32 v25, 64, v24")
    a(f"v_add_u32 v26, {2*(8192-1024)}, v24")
    a(f"v_add_u32 v27, {3*(8192-1024)}, v25")
    a(f"v_add_u32 v25, {8192-1024}, v25")
    a("v_bfe_u32 v12, v0, 3, 2")
    a("v_lshlrev_b32 v12, 5, v12")
    a(f"v_add3_u32 v120, v11, v12, s90")
    a("v_xor_b32 v121, 32, v120")
    a("v_xor_b32 v122, 64, v120")
    a("v_xor_b32 v123, 96, v120")
    a("v_bfe_u32 v12, v7, 2, 1")
    a("v_mul_u32_u24 v4, 144, v12")
    a("v_lshl_add_u32 v4, v6, 4, v4")
    a("s_mul_i32 s6, s3, 288")
    a(f"s_add_u32 s6, s6, {HA_L:#x}")
    a("v_add_u32 v4, s6, v4")
    a("v_bfe_u32 v12, v0, 3, 2")
    a("v_lshlrev_b32 v53, 3, v12")
    a("v_mul_u32_u24 v1, 144, v8")
    a("s_lshl_b32 s6, s3, 5")
    a(f"s_add_u32 s6, s6, {HA_L:#x}")
    a("v_add3_u32 v1, v1, v53, s6")
    a("v_lshlrev_b32 v52, 3, v8")
    a("v_and_b32 v12, 1, v6")
    a("v_lshlrev_b32 v11, 10, v12")
    a("s_lshl_b32 s69, s3, 11")
    a("s_lshl_b32 s6, s61, 5")
    a("s_add_u32 s69, s69, s6")
    a(f"s_add_u32 s69, s69, {LG:#x}")
    a("s_lshl_b32 s70, s61, 14")
    a("s_lshl_b32 s6, s3, 12")
    a("s_add_u32 s70, s70, s6")
    a(f"s_mul_i32 s63, s61, {HSTR}")
    a("s_add_u32 s63, s63, s6")
    a(f"s_add_u32 s63, s63, {HP:#x}")
    a(f"s_add_u32 s70, s70, {OG:#x}")
    a("s_lshl_b32 s6, s3, 15")
    a(f"s_add_u32 s6, s6, {AS_OFF:#x}")
    a("v_lshrrev_b32 v13, 5, v0")
    a("v_and_b32 v14, 31, v0")
    a("v_mul_u32_u24 v13, 272, v13")
    a("v_lshl_add_u32 v13, v14, 3, v13")
    a("v_add_u32 v2, s6, v13")
    a("v_mul_u32_u24 v13, 272, v8")
    a("v_lshl_add_u32 v13, v6, 4, v13")
    a("v_add_u32 v58, s6, v13")
    a("v_lshlrev_b32 v59, 17, v12")
    a("v_lshrrev_b32 v12, 3, v7")
    a("v_lshl_add_u32 v59, v12, 12, v59")
    a("v_lshl_add_u32 v59, v8, 4, v59")
    a("s_lshl_b32 s71, s3, 18")
    a("s_lshl_b32 s6, s60, 14")
    a("s_add_u32 s71, s71, s6")
    a("s_lshl_b32 s6, s61, 7")
    a("s_add_u32 s71, s71, s6")
    a(f"s_add_u32 s71, s71, {PG:#x}")
    a("s_add_u32 s8, s71, 8192")
    if no_h: a("s_branch L_nohact")
    a("s_cmp_ge_u32 s61, 28")
    a("s_cbranch_scc1 L_nohact")
    a("s_lshl_b32 s6, s61, 7")
    a("s_lshl_b32 s7, s3, 5")
    a("s_add_u32 s6, s6, s7")
    a("buffer_load_dwordx2 v[54:55], v53, s[52:55], s6 offen")
    a(f"s_mov_b32 s64, {GG:#x}")
    a(f"s_mov_b32 s65, {spin_max}")
    a("L_hp:")
    for k in range(4):
        a(f"buffer_load_dwordx4 v[{32+4*k}:{35+4*k}], v5, s[44:47], s63 offen offset:{k*1024} sc1")
    a("buffer_load_dwordx2 v[56:57], v52, s[44:47], s64 offen sc1")
    a("s_waitcnt vmcnt(0)")
    for k in range(8):
        a(f"v_xor_b32 v{33+2*k}, s5, v{33+2*k}")
    a("v_xor_b32 v48, s5, v57")
    a("v_or3_b32 v33, v33, v35, v37")
    a("v_or3_b32 v39, v39, v41, v43")
    a("v_or3_b32 v45, v45, v47, v48")
    a("v_or3_b32 v33, v33, v39, v45")
    a("v_cmp_lt_u32 vcc, 7, v33")
    a("s_cbranch_vccz L_hp_go")
    a("s_sleep 16")
    a("s_sub_u32 s65, s65, 1")
    a("s_cbranch_scc0 L_hp")
    a("L_hp_go:")
    unpack_sum(4)
    a("v_lshlrev_b32 v16, 16, v54")
    a("v_and_b32 v17, 0xffff0000, v54")
    a("v_lshlrev_b32 v18, 16, v55")
    a("v_and_b32 v19, 0xffff0000, v55")
    for e in range(4): a(f"v_add_f32 v{12+e}, v{12+e}, v{16+e}")
    for e in range(4): a(f"v_max_f32 v{12+e}, 0, v{12+e}")
    for e in range(4): a(f"v_mul_f32 v{16+e}, v{12+e}, v56")
    for e in range(4): a(f"v_mul_f32 v{12+e}, v{12+e}, v{16+e}")
    a("v_cvt_pk_bf16_f32 v12, v12, v13")
    a("v_cvt_pk_bf16_f32 v13, v14, v15")
    a("ds_write_b64 v1, v[12:13]")
    a("L_nohact:")
    a("s_cmp_lg_u32 s3, 0")
    a("s_cbranch_scc1 L_nolse")
    cnt_wait(8, "L_hml", 10, 21, 65, sleep=8, target=5)
    a("v_lshlrev_b32 v12, 4, v9")
    a(f"v_add_u32 v12, {M_L:#x}, v12")
    a("ds_read_b128 v[16:19], v12")
    a(f"ds_read_b128 v[32:35], v12 offset:{L_L-M_L}")
    a("s_and_b32 s6, s11, 0xfc")
    a("s_lshl_b32 s6, s6, 5")
    a("s_and_b32 s7, s11, 3")
    a("s_lshl_b32 s7, s7, 3")
    a("s_add_u32 s6, s6, s7")
    a(f"s_add_u32 s6, s6, {LG:#x}")
    a("v_lshlrev_b32 v13, 5, v9")
    a("s_waitcnt lgkmcnt(0)")
    a("v_max3_f32 v14, v16, v17, v18")
    a("v_max_f32 v14, v14, v19")
    for w in range(4): a(f"v_sub_f32 v{16+w}, v{16+w}, v14")
    for w in range(4): a(f"v_exp_f32 v{16+w}, v{16+w}")
    a("v_mul_f32 v36, v16, v32")
    for w in range(1, 4): a(f"v_fma_f32 v36, v{16+w}, v{32+w}, v36")
    a("v_log_f32 v36, v36")
    a("v_mov_b32 v15, s5")
    a("v_add_f32 v14, v14, v36")
    a("s_mov_b64 exec, 15")
    a("s_cmp_lg_u32 s92, 0")
    a("s_cbranch_scc1 L_lse_slow")
    a("buffer_store_dwordx2 v[14:15], v13, s[44:47], s6 offen")
    a("s_branch L_lse_done")
    a("L_lse_slow:")
    a("buffer_store_dwordx2 v[14:15], v13, s[44:47], s6 offen sc1")
    a("L_lse_done:")
    a("s_mov_b64 exec, -1")
    a("s_sub_u32 s6, s6, s7")
    a(f"s_mov_b32 s65, {spin_max}")
    a("L_lp:")
    a("s_sleep 8")
    a("buffer_load_dwordx4 v[28:31], v13, s[44:47], s6 offen sc1")
    a("buffer_load_dwordx4 v[32:35], v13, s[44:47], s6 offen offset:16 sc1")
    a("s_waitcnt vmcnt(0)")
    for k in range(4):
        a(f"v_xor_b32 v{29+2*k}, s5, v{29+2*k}")
    a("v_or3_b32 v29, v29, v31, v33")
    a("v_or_b32 v29, v29, v35")
    a("v_cmp_ne_u32 vcc, 0, v29")
    a("s_sub_u32 s65, s65, 1")
    a("s_cbranch_scc1 L_lp_go")
    a("s_cbranch_vccnz L_lp")
    a("L_lp_go:")
    a("v_max3_f32 v44, v28, v30, v32")
    a("v_max_f32 v44, v44, v34")
    for k in range(4):
        a(f"v_sub_f32 v{48+k}, v{28+2*k}, v44")
    for k in range(4):
        a(f"v_exp_f32 v{48+k}, v{48+k}")
    a("v_add_f32 v48, v48, v49")
    a("v_add_f32 v50, v50, v51")
    a("v_add_f32 v48, v48, v50")
    a("v_log_f32 v48, v48")
    a("v_lshlrev_b32 v12, 2, v9")
    a(f"v_add_u32 v12, {G_L+16:#x}, v12")
    a("v_add_f32 v48, v48, v44")
    a("s_mov_b64 exec, 15")
    a("ds_write_b32 v12, v48")
    a("s_mov_b64 exec, 1")
    a("ds_add_u32 v10, v20 offset:8")
    a("s_mov_b64 exec, -1")
    a("L_nolse:")
    cnt_wait(12, "L_trig", 10, 21, 65, sleep=2, target=ttarget)
    a(f"s_setprio {tprio}")
    a("s_mov_b32 m0, s67")
    a("s_nop 0")
    for i in range(4):
        a(f"buffer_load_dwordx4 v{24+i}, s[48:51], s62 offen offset:{i*1024} {lpol} lds")
    a("s_mov_b32 m0, s68")
    a("s_nop 0")
    for i in range(2):
        a(f"buffer_load_dwordx4 v{24+i}, s[56:59], s66 offen offset:{i*1024} {lpol} lds")
    for k in range(1, pf + 1):
        a(f"s_add_u32 s6, s60, {k}")
        a("s_and_b32 s6, s6, 7")
        a("s_sub_u32 s6, s6, s60")
        a("s_lshl_b32 s6, s6, 7")
        a("s_add_u32 s7, s6, s66")
        a("s_add_u32 s6, s6, s62")
        for i in range(4):
            a(f"buffer_load_dwordx4 v[{224+4*i}:{227+4*i}], v{24+i}, s[48:51], s6 offen offset:{i*1024} {lpol}")
        for i in range(2):
            a(f"buffer_load_dwordx4 v[{240+4*i}:{243+4*i}], v{24+i}, s[56:59], s7 offen offset:{i*1024} {lpol}")
    for k in range(4):
        a(f"v_mov_b32 v{65+2*k}, s5")
    a("v_add_u32 v9, 1088, v2")
    a("v_mov_b32 v36, 1")
    stamp(3)
    WOF, W2F, AF, ACC = 128, 192, 72, 96
    for k in range(4):
        a(f"v_mov_b32 v{60+k}, 0")
    a(f"s_waitcnt vmcnt({6*pf})")
    cnt_add(0, 10, 36)
    def p2_loads():
        for k in range(4):
            a(f"buffer_load_dwordx4 v[{12+4*k}:{15+4*k}], v5, s[44:47], s70 offen offset:{k*1024} sc1")
    cnt_wait(0, "L_s2", 10, 37, 65, sleep=1, target=8)
    stamp(6)
    for j in range(4):
        if j == p2pos: p2_loads()
        for aa in range(4):
            for eh in range(2):
                r = WOF + 16 * j + 4 * aa + 2 * eh
                a(f"ds_read_b64_tr_b16 v[{r}:{r+1}], v{120+aa} offset:{j*4096 + eh*512}")
        a("s_waitcnt lgkmcnt(6)")
    if p2pos == 4: p2_loads()
    a("s_cmp_ge_u32 s61, 28")
    a("s_cbranch_scc1 L_nomlp")
    for j in range(2):
        for aa in range(4):
            for eh in range(2):
                r = W2F + 16 * j + 4 * aa + 2 * eh
                a(f"ds_read_b64_tr_b16 v[{r}:{r+1}], v{120+aa} offset:{W2_L-WO_L + j*4096 + eh*512}")
        a("s_waitcnt lgkmcnt(4)")
    a("ds_read_b128 v[88:91], v4")
    a("ds_read_b128 v[92:95], v4 offset:64")
    a("s_waitcnt lgkmcnt(0)")
    for j in range(2):
        for aa in range(4):
            c = "0" if j == 0 else f"v[{ACC+4*aa}:{ACC+4*aa+3}]"
            a(f"v_mfma_f32_16x16x32_bf16 v[{ACC+4*aa}:{ACC+4*aa+3}], v[{88+4*j}:{91+4*j}], v[{W2F+16*j+4*aa}:{W2F+16*j+4*aa+3}], {c}")
    for aa in range(4):
        a(f"v_mov_b32 v{60+aa}, v{ACC+4*aa}")
    a("L_nomlp:")
    a(f"s_mov_b32 s64, {spin_max}")
    stamp(4)
    if not sel:
        a("s_branch L_p2_body")
        a("L_p2_poll:")
        if p2sleep: a(f"s_sleep {p2sleep}")
        p2_loads()
        a("L_p2_body:")
        for k in range(4):
            a(f"s_waitcnt vmcnt({3-k})")
            va = "v2" if k < 2 else "v9"
            o = (k & 1) * 136
            a(f"ds_write2_b32 {va}, v{12+4*k}, v{14+4*k} offset0:{o} offset1:{o+1}")
            a(f"v_xor_b32 v{28+2*k}, s5, v{13+4*k}")
            a(f"v_xor_b32 v{29+2*k}, s5, v{15+4*k}")
        a("v_or3_b32 v28, v28, v29, v30")
        a("v_or3_b32 v31, v31, v32, v33")
        a("v_or3_b32 v28, v28, v34, v35")
        a("v_or_b32 v28, v28, v31")
        a("v_cmp_ne_u32 vcc, 0, v28")
        a("s_sub_u32 s64, s64, 1")
        a("s_waitcnt lgkmcnt(0)")
        a("s_cbranch_scc1 L_p2_go")
        a("s_cbranch_vccnz L_p2_poll")
    else:
        for k in range(4):
            a(f"s_waitcnt vmcnt({3-k})")
            a(f"s_branch L_pk{k}_chk")
            a(f"L_pk{k}:")
            if p2sleep: a(f"s_sleep {p2sleep}")
            for kk in range(k, min(k + 2, 4)):
                a(f"buffer_load_dwordx4 v[{12+4*kk}:{15+4*kk}], v5, s[44:47], s70 offen offset:{kk*1024} sc1")
            a("s_waitcnt vmcnt(0)")
            a(f"L_pk{k}_chk:")
            a(f"v_xor_b32 v28, s5, v{13+4*k}")
            a(f"v_xor_b32 v29, s5, v{15+4*k}")
            a("v_or_b32 v28, v28, v29")
            a("v_cmp_ne_u32 vcc, 0, v28")
            a("s_sub_u32 s64, s64, 1")
            a(f"s_cbranch_scc1 L_pk{k}_go")
            a(f"s_cbranch_vccnz L_pk{k}")
            a(f"L_pk{k}_go:")
            va = "v2" if k < 2 else "v9"
            o = (k & 1) * 136
            a(f"ds_write2_b32 {va}, v{12+4*k}, v{14+4*k} offset0:{o} offset1:{o+1}")
            a(f"s_mov_b32 s64, {spin_max}")
        a("s_waitcnt lgkmcnt(0)")
    a("L_p2_go:")
    if fwait: cnt_add(28, 10, 36)
    for j in range(4):
        a(f"ds_read_b128 v[{AF+4*j}:{AF+4*j+3}], v58 offset:{j*64}")
    for j in range(4):
        a(f"s_waitcnt lgkmcnt({3-j})")
        for aa in range(4):
            c = "0" if j == 0 else f"v[{ACC+4*aa}:{ACC+4*aa+3}]"
            a(f"v_mfma_f32_16x16x32_bf16 v[{ACC+4*aa}:{ACC+4*aa+3}], v[{AF+4*j}:{AF+4*j+3}], v[{WOF+16*j+4*aa}:{WOF+16*j+4*aa+3}], {c}")
    a("s_mov_b64 exec, 0xffffffff")
    for aa in range(4):
        a(f"v_add_f32 v{60+aa}, v{60+aa}, v{ACC+4*aa}")
        a(f"v_add_f32 v{48+aa}, v{ACC+4*aa+1}, v{ACC+4*aa+2}")
        a(f"v_add_f32 v{60+aa}, v{60+aa}, v{ACC+4*aa+3}")
        a(f"v_add_f32 v{64+2*aa}, v{60+aa}, v{48+aa}")
        if aa == 1: a(f"buffer_store_dwordx4 v[64:67], v59, s[44:47], s71 offen {pst}")
    a(f"buffer_store_dwordx4 v[68:71], v59, s[44:47], s8 offen {pst}")
    a("s_mov_b64 exec, -1")
    stamp(5)
    if stamps and stamps != "min":
        a("s_add_u32 s3, s3, 1")
        stamp_store("s3")
    a("L_end:")
    a("s_endpgm")
    a.raw('.section .rodata,"a"')
    a.raw(".p2align 6")
    a.raw(f".amdhsa_kernel {NAME}_kernel")
    a.raw("  .amdhsa_next_free_vgpr 256")
    a.raw("  .amdhsa_next_free_sgpr 96")
    a.raw("  .amdhsa_accum_offset 256")
    a.raw("  .amdhsa_group_segment_fixed_size 0")
    a.raw("  .amdhsa_kernarg_size 112")
    a.raw("  .amdhsa_user_sgpr_count 2")
    a.raw("  .amdhsa_user_sgpr_kernarg_segment_ptr 1")
    a.raw("  .amdhsa_system_sgpr_workgroup_id_x 1")
    a.raw(".end_amdhsa_kernel")
    return a.text()

if __name__ == "__main__":
    out = sys.argv[1]
    kw = json.loads(sys.argv[2]) if len(sys.argv) > 2 else {}
    open(out, "w").write(gen(**kw))
```

```python
import sys, json, math, struct
from asmdsl import Asm
NAME = "gated_mix__gqa_block_cached__dense_activation_squared_relu__decode"

GG, LG = 0x3000, 0x10000
QP, HP, OG, PG = 0x100000, 0x80000, 0x200000, 0x300000
STAMP = 0x8000000
def f32(x): return "0x%08x" % struct.unpack("<I", struct.pack("<f", x))[0]
CSC = math.log2(math.e) / math.sqrt(128.0)
LOG2E = math.log2(math.e)
HEADER = open("cdna_kernels/" + NAME + ".s.ref").read().split("; Override launch geometry")[0]

def gen(stamps=False, kvpol="nt", wpol="nt", spin_max=400000, D1=6, D2=6, qsleep=4, qtrig=6,
        trig=15, npre=4, rot=False, qfail=5, force_slow=False, pf=0, lpol=None, wprio=0, tprio=1, wsleep=1, fsleep=0, slowmark=0, qlead=4, cpl=1, Dhi=0, nhi=128, p2pos=0, ilv=0, p2sleep=2, pst='sc1', pld='sc1', sel=False, fwait=False, ttarget=4, early=True, st2=False, spread=False, estpol='sc1', ostpol='sc1', D3=0, n3=4, pad=0, padwg=-1, amap=1, hprio=0, sprio=2, w2early=False, outpol="", touch=0, no_h=False, no_wo=False, no_qp=False, no_st=False, no_gate=False):
    a = Asm()
    if lpol is None: lpol = wpol
    NST = 8
    QSTR, HSTR = (67584, 540672) if spread else (2048, 16384)
    QP, HP = (0x1000000, 0x3000000) if spread else (0x100000, 0x80000)
    WQ_L, W1_L = 0x20000, 0x24000
    WO_L, W2_L = WQ_L, W1_L
    Q_L, M_L, L_L, G_L, C_L, HA_L = 0x26000, 0x26400, 0x26440, 0x26480, 0x264c0, 0x26500
    LDS_TOTAL = HA_L + 8 * 144
    AS_OFF = 0x1000
    a.raw(HEADER.rstrip())
    a.raw(f"; @launch grid=(256,1,1) block=(512,1,1) lds={LDS_TOTAL}")
    a.raw('.amdgcn_target "amdgcn-amd-amdhsa--gfx950"')
    a.raw(".text")
    a.raw(f".globl {NAME}_kernel")
    a.raw(".p2align 8")
    a.raw(f".type {NAME}_kernel,@function")
    a.label(f"{NAME}_kernel")

    def srd(d, base, size):
        a(f"s_mov_b32 s{d}, s{base}")
        a(f"s_mov_b32 s{d+1}, s{base+1}")
        a(f"s_mov_b32 s{d+2}, {size:#x}")
        a(f"s_mov_b32 s{d+3}, 0x00020000")
    def stamp(i, force=False):
        if stamps and (stamps != "min" or force):
            a(f"s_memrealtime s[{72+2*i}:{73+2*i}]")
            a("s_waitcnt lgkmcnt(0)")
    def stamp_store(slot):
        if not stamps: return
        a(f"s_lshl_b32 s6, s2, 3")
        a(f"s_add_u32 s6, s6, {slot}")
        a(f"s_mul_i32 s6, s6, {NST*8}")
        a(f"s_add_u32 s6, s6, {STAMP:#x}")
        a("s_mov_b64 exec, 1")
        a("v_mov_b32 v1, 0")
        for i in range(0, NST, 2):
            for k in range(4):
                a(f"v_mov_b32 v{4+k}, s{72+2*i+k}")
            a(f"buffer_store_dwordx4 v[4:7], v1, s[44:47], s6 offen offset:{i*8}")
            a("s_nop 1")
        a("s_mov_b64 exec, -1")
    def tagcalc():
        a("s_waitcnt lgkmcnt(0)")
        a("s_and_b32 s5, s4, 0xfffffff8")
        a("s_add_u32 s5, s5, 0x9abcde8")
    def xlane(op, r, tmp):
        a(f"{op}_dpp v{r}, v{r}, v{r} row_ror:4 row_mask:0xf bank_mask:0xf")
        a(f"{op}_dpp v{r}, v{r}, v{r} row_ror:8 row_mask:0xf bank_mask:0xf")
        a(f"v_mov_b32 v{tmp}, v{r}")
        a(f"v_permlane16_swap_b32 v{r}, v{tmp}")
        a(f"{op} v{r}, v{r}, v{tmp}")
        a(f"v_mov_b32 v{tmp}, v{r}")
        a(f"v_permlane32_swap_b32 v{r}, v{tmp}")
        a(f"{op} v{r}, v{r}, v{tmp}")
    def cnt_add(off, vaddr, vone):
        a("s_mov_b64 exec, 1")
        a(f"ds_add_u32 v{vaddr}, v{vone} offset:{off}")
        a("s_mov_b64 exec, -1")
    def cnt_wait(off, lbl, vaddr, vtmp, sreg, sleep=0, target=4):
        a(f"s_mov_b32 s{sreg}, {spin_max*4}")
        a(f"{lbl}:")
        a(f"ds_read_b32 v{vtmp}, v{vaddr} offset:{off}")
        a("s_waitcnt lgkmcnt(0)")
        a(f"v_cmp_gt_u32 vcc, {target}, v{vtmp}")
        a(f"s_cbranch_vccz {lbl}_go")
        if sleep: a(f"s_sleep {sleep}")
        a(f"s_sub_u32 s{sreg}, s{sreg}, 1")
        a(f"s_cbranch_scc0 {lbl}")
        a(f"{lbl}_go:")
    def unit_id():
        if amap == 1:
            a("s_and_b32 s11, s2, 0xe0")
            a("s_and_b32 s6, s2, 7")
            a("s_lshl_b32 s6, s6, 2")
            a("s_add_u32 s11, s11, s6")
            a("s_bfe_u32 s6, s2, 0x20003")
            a("s_add_u32 s11, s11, s6")
        elif amap == 2:
            a("s_and_b32 s11, s2, 7")
            a("s_lshl_b32 s11, s11, 5")
            a("s_lshr_b32 s6, s2, 3")
            a("s_add_u32 s11, s11, s6")
        else:
            a("s_mov_b32 s11, s2")

    a("s_cmp_ge_u32 s2, 256")
    a("s_cbranch_scc1 L_end")
    if stamps:
        for i in range(NST):
            a(f"s_mov_b64 s[{72+2*i}:{73+2*i}], 0")
        a("s_memrealtime s[72:73]")
    if pad: a("s_memrealtime s[72:73]")
    a("s_load_dwordx16 s[16:31], s[0:1], 0")
    a("s_load_dwordx8 s[32:39], s[0:1], 64")
    a("s_load_dwordx4 s[40:43], s[0:1], 96")
    a("v_lshrrev_b32 v1, 6, v0")
    a("v_and_b32 v0, 63, v0")
    a("v_readfirstlane_b32 s3, v1")
    a("v_lshrrev_b32 v6, 4, v0")
    a("v_and_b32 v7, 15, v0")
    a("v_lshlrev_b32 v5, 4, v0")
    unit_id()
    a("s_cmp_lt_u32 s3, 4")
    a("s_cbranch_scc1 L_stream")

    a("s_setprio 3")
    a(f"v_mov_b32 v10, {C_L:#x}")
    for k in range(4): a(f"v_mov_b32 v{12+k}, 0")
    a("ds_write_b128 v10, v[12:15]")
    a("ds_write_b128 v10, v[12:15] offset:16")
    a("s_getreg_b32 s91, hwreg(HW_REG_XCC_ID)")
    a("s_sub_u32 s3, s3, 4")
    a("v_lshrrev_b32 v16, 3, v0")
    a("v_and_b32 v8, 7, v0")
    a("v_lshlrev_b32 v1, 13, v16")
    a("v_lshl_add_u32 v1, v8, 4, v1")
    for i in range(1, 4):
        a(f"v_add_u32 v{1+i}, {i*(65536-1024)}, v1")
    a("v_mul_u32_u24 v16, 3584, v16")
    a("v_lshl_add_u32 v16, v8, 4, v16")
    a(f"v_add_u32 v17, {8*3584-1024}, v16")
    a("v_lshlrev_b32 v18, 10, v8")
    a("v_lshl_add_u32 v19, v6, 3, v18")
    a("v_lshl_add_u32 v18, v6, 4, v18")
    a("s_bfe_u32 s61, s2, 0x20003")
    a("s_and_b32 s60, s2, 7")
    a("s_lshl_b32 s60, s60, 3")
    a("s_lshr_b32 s6, s2, 5")
    a("s_add_u32 s60, s60, s6")
    a("s_lshl_b32 s62, s61, 20")
    a("s_lshl_b32 s6, s60, 7")
    a("s_add_u32 s62, s62, s6")
    a("s_lshl_b32 s6, s3, 18")
    a("s_add_u32 s62, s62, s6")
    a("s_lshl_b32 s6, s3, 12")
    a(f"s_add_u32 s67, s6, {WQ_L:#x}")
    a("s_lshl_b32 s6, s3, 11")
    a(f"s_add_u32 s68, s6, {W1_L:#x}")
    a("s_lshl_b32 s63, s61, 8")
    a("s_lshl_b32 s6, s3, 6")
    a("s_add_u32 s63, s63, s6")
    a("s_lshr_b32 s66, s60, 1")
    a("s_and_b32 s69, s60, 1")
    a("s_lshl_b32 s70, s61, 1")
    a("s_add_u32 s70, s70, s69")
    a("s_lshl_b32 s6, s70, 2")
    a("s_add_u32 s6, s6, s3")
    a(f"s_mul_i32 s65, s6, {16*3584}")
    a("s_lshl_b32 s64, s6, 5")
    a("s_lshl_b32 s6, s66, 7")
    a("s_add_u32 s65, s65, s6")
    a("s_mov_b32 m0, s67")
    a("s_waitcnt lgkmcnt(0)")
    srd(48, 22, 0x400000)
    srd(52, 16, 8192)
    XF, BF, AC = 64, 128, 80
    for i in range(4):
        a(f"buffer_load_dwordx4 v{1+i}, s[48:51], s62 offen offset:{i*1024} {wpol} lds")
    a(f"buffer_load_dwordx4 v[{XF}:{XF+3}], v18, s[52:55], s63 offen")
    a("s_mov_b32 m0, s68")
    srd(56, 28, 512 * 3584)
    a("s_cmp_ge_u32 s66, 28")
    a("s_cbranch_scc1 L_now1a")
    a(f"buffer_load_dwordx4 v16, s[56:59], s65 offen {wpol} lds")
    a(f"buffer_load_dwordx4 v17, s[56:59], s65 offen offset:1024 {wpol} lds")
    a(f"buffer_load_dwordx2 v[{XF+4}:{XF+5}], v19, s[52:55], s64 offen")
    a("L_now1a:")
    a("s_load_dword s4, s[42:43], 0")
    a("s_barrier")
    srd(44, 42, 0x10000000)
    a("v_lshrrev_b32 v16, 2, v7")
    a("v_and_b32 v9, 3, v0")
    a("v_lshl_add_u32 v17, v6, 3, v16")
    a("v_lshlrev_b32 v11, 7, v17")
    a("v_lshl_add_u32 v11, v9, 3, v11")
    a("v_add_u32 v3, s67, v11")
    a("v_lshl_add_u32 v17, v6, 2, v16")
    a("v_lshlrev_b32 v2, 7, v17")
    a("v_lshl_add_u32 v2, v9, 3, v2")
    a("v_add_u32 v2, s68, v2")
    a("v_mov_b32 v20, 1")
    a("v_xor_b32 v1, v6, v8")
    a("v_lshlrev_b32 v1, 4, v1")
    a("v_lshl_add_u32 v1, v8, 8, v1")
    a("v_add_u32 v1, s67, v1")
    a("v_xor_b32 v19, 64, v1")
    a("v_and_b32 v16, 1, v6")
    a("s_lshl_b32 s6, s3, 1")
    a("v_add_u32 v16, s6, v16")
    a("v_xor_b32 v17, v16, v7")
    a("v_lshlrev_b32 v17, 4, v17")
    a("v_lshl_add_u32 v16, v16, 8, v17")
    a("v_bfe_u32 v17, v0, 3, 2")
    a("s_lshl_b32 s6, s3, 2")
    a("v_add_u32 v17, s6, v17")
    a("v_xor_b32 v17, v17, v8")
    a("v_lshlrev_b32 v17, 4, v17")
    a("v_lshl_add_u32 v18, v8, 8, v17")
    a("v_add_u32 v18, 2048, v18")
    a("s_mov_b32 s6, 0")
    a("s_mov_b32 s7, -1")
    a("v_cndmask_b32 v16, v16, v18, s[6:7]")
    a(f"v_add_u32 v16, {WQ_L:#x}, v16")
    a("v_and_b32 v17, 1, v6")
    a(f"v_mul_u32_u24 v17, {32*QSTR}, v17")
    a("v_lshl_add_u32 v17, v7, 4, v17")
    a("s_lshl_b32 s63, s3, 6")
    a("s_lshr_b32 s8, s60, 1")
    a("s_add_u32 s63, s63, s8")
    a(f"s_mul_i32 s63, s63, {QSTR}")
    a("s_lshl_b32 s8, s61, 9")
    a("s_add_u32 s63, s63, s8")
    a("s_lshl_b32 s8, s69, 8")
    a("s_add_u32 s63, s63, s8")
    a(f"s_add_u32 s63, s63, {QP:#x}")
    a("v_add_u32 v17, s63, v17")
    a(f"s_mul_i32 s64, s66, {HSTR}")
    a("s_lshl_b32 s8, s70, 9")
    a("s_add_u32 s64, s64, s8")
    a("s_lshl_b32 s8, s3, 12")
    a("s_add_u32 s64, s64, s8")
    a(f"s_add_u32 s64, s64, {HP-512:#x}")
    a("v_add_u32 v18, s64, v5")
    a("v_cndmask_b32 v4, v17, v18, s[6:7]")
    a("s_cmp_lt_u32 s66, 28")
    a("s_cselect_b32 s9, -1, 0")
    tagcalc()
    a("s_and_b32 s91, s91, 7")
    a("s_or_b32 s91, s91, s5")
    a("v_mov_b32 v113, s91")
    a("v_mov_b32 v115, s91")
    a("s_waitcnt vmcnt(0)")
    for aa in range(4):
        for eh in range(2):
            r = BF + 4 * aa + 2 * eh
            a(f"ds_read_b64_tr_b16 v[{r}:{r+1}], v3 offset:{eh*512 + aa*32}")
    for aa in range(4):
        r = BF + 16 + 2 * aa
        a(f"ds_read_b64_tr_b16 v[{r}:{r+1}], v2 offset:{aa*32}")
    for aa in range(4):
        a(f"s_waitcnt lgkmcnt({10-2*aa})")
        a(f"v_mfma_f32_16x16x32_bf16 v[{AC+4*aa}:{AC+4*aa+3}], v[{BF+4*aa}:{BF+4*aa+3}], v[{XF}:{XF+3}], 0")
    for aa in range(4):
        a(f"s_waitcnt lgkmcnt({3-aa})")
        a(f"v_mfma_f32_16x16x16_bf16 v[{AC+16+4*aa}:{AC+16+4*aa+3}], v[{BF+16+2*aa}:{BF+16+2*aa+1}], v[{XF+4}:{XF+5}], 0")
    a("s_mov_b32 exec_lo, 0x00ff00ff")
    a("s_mov_b32 exec_hi, 0x00ff00ff")
    for part in range(2):
        for aa in range(4):
            r = AC + 16 * part + 4 * aa
            a(f"ds_write_b128 v{1 if aa % 2 == 0 else 19}, v[{r}:{r+3}] offset:{part*2048 + (aa>>1)*128}")
    a("s_mov_b64 exec, 1")
    a("s_waitcnt lgkmcnt(0)")
    a("ds_add_u32 v10, v20")
    a("s_mov_b64 exec, -1")
    cnt_wait(0, "L_s1", 10, 21, 65)
    for j in range(4):
        a(f"ds_read_b128 v[{32+4*j}:{35+4*j}], v16 offset:{j*4096}")
    a("s_waitcnt lgkmcnt(2)")
    for e in range(4): a(f"v_add_f32 v{32+e}, v{32+e}, v{36+e}")
    a("s_waitcnt lgkmcnt(0)")
    for e in range(4): a(f"v_add_f32 v{40+e}, v{40+e}, v{44+e}")
    for e in range(4): a(f"v_add_f32 v{32+e}, v{32+e}, v{40+e}")
    a("v_cvt_pk_bf16_f32 v112, v32, v33")
    a("v_cvt_pk_bf16_f32 v114, v34, v35")
    a("v_mov_b32 v116, v4")
    a("s_mov_b32 s92, 0")
    a("s_mov_b32 exec_hi, s9")
    a("buffer_store_dwordx4 v[112:115], v116, s[44:47], 0 offen")
    a("s_mov_b64 exec, -1")
    stamp(1)
    a("s_branch L_helper2")

    a("L_stream:")
    a("v_lshlrev_b32 v1, 2, v6")
    a("v_xor_b32 v1, v1, v7")
    a("v_xor_b32 v2, 1, v1")
    a("v_xor_b32 v3, 2, v1")
    a("v_xor_b32 v4, 3, v1")
    a("v_lshlrev_b32 v8, 8, v6")
    for i in range(4):
        a(f"v_lshl_add_u32 v{1+i}, v{1+i}, 4, v8")
    TS = 16384
    if ilv == 1:
        a("s_lshr_b32 s7, s11, 2")
        a("s_lshl_b32 s7, s7, 20")
        a("s_and_b32 s6, s11, 3")
        a("s_lshl_b32 s6, s6, 14")
        a("s_add_u32 s7, s7, s6")
        TS = 65536
    else:
        a("s_lshl_b32 s7, s11, 18")
    for r in range(4):
        a(f"s_add_u32 s6, s3, {r if rot else 0}")
        a("s_and_b32 s6, s6, 3")
        a("s_lshl_b32 s6, s6, 12")
        a(f"s_add_u32 s{12+r}, s7, s6")
    a("s_mov_b32 s60, s12")
    a("s_mov_b32 s61, s12")
    a("s_lshl_b32 s62, s3, 15")
    a("s_waitcnt lgkmcnt(0)")
    if st2: stamp(3)
    srd(48, 18, 0x4000000)
    srd(52, 20, 0x4000000)
    a("s_load_dword s4, s[42:43], 0")
    if touch == 1:
        a("s_load_dword s88, s[20:21], s60")
        a("s_and_b32 s6, s2, 7")
        a("s_lshl_b32 s6, s6, 19")
        a("s_load_dword s89, s[24:25], s6")
        a("s_load_dword s90, s[32:33], 0")
        a("s_load_dword s91, s[30:31], 0")
        a("s_load_dword s92, s[34:35], 0")
        a("s_load_dword s93, s[36:37], 0")
        a(f"s_mov_b32 s6, {OG:#x}")
        a("s_load_dword s94, s[42:43], s6")
        a("s_load_dword s95, s[38:39], 0")
    if not early: a("s_barrier")
    if st2: stamp(4)

    nissued = [0]
    pos = {}
    covered = [0]
    Dcur = [D1]
    lblc = [0]
    def setmode():
        if Dhi:
            a("s_bitcmp1_b32 s2, 2")
            a("s_cselect_b64 vcc, -1, 0")
    def throttle():
        D = Dcur[0]
        if Dhi and nissued[0] < nhi:
            if nissued[0] - covered[0] > Dhi - 1:
                a(f"s_waitcnt vmcnt({Dhi-1})")
                covered[0] = nissued[0] - (Dhi - 1)
            if nissued[0] >= D:
                lblc[0] += 1
                a(f"s_cbranch_vccnz L_t{lblc[0]}")
                a(f"s_waitcnt vmcnt({D-1})")
                a(f"L_t{lblc[0]}:")
            return
        if D >= 63: return
        if nissued[0] - covered[0] > D - 1:
            a(f"s_waitcnt vmcnt({D-1})")
            covered[0] = nissued[0] - (D - 1)
    def issueK(tt):
        a(f"s_add_u32 m0, s62, {(tt & 7) * 4096}")
        for i in range(4):
            throttle()
            a(f"buffer_load_dwordx4 v{1+i}, s[48:51], s60 offen offset:{i*1024} {kvpol} lds")
            nissued[0] += 1
        pos[("k", tt)] = nissued[0]
        if tt < 15: a(f"s_add_u32 s60, s{12+((tt+1)&3)}, {(tt+1)*TS}")
    def vreg(tt, i):
        return 64 + 4 * (4 * (tt % 12) + i)
    def issueV(tt):
        for i in range(4):
            r = vreg(tt, i)
            throttle()
            a(f"buffer_load_dwordx4 v[{r}:{r+3}], v5, s[52:55], s61 offen offset:{i*1024} {kvpol}")
            nissued[0] += 1
            pos[("v", tt, i)] = nissued[0]
        pos[("v", tt)] = nissued[0]
        if tt < 15: a(f"s_add_u32 s61, s{12+((tt+1)&3)}, {(tt+1)*TS}")
    def waitfor(key):
        if pos[key] <= covered[0]: return
        n = min(nissued[0] - pos[key], 63)
        a(f"s_waitcnt vmcnt({n})")
        covered[0] = nissued[0] - n

    setmode()
    issueK(0)
    if early: a("s_barrier")
    if sprio: a(f"s_setprio {sprio}")
    srd(44, 42, 0x10000000)
    a("v_and_b32 v8, 3, v7")
    a("v_lshlrev_b32 v8, 10, v8")
    a("v_lshrrev_b32 v9, 2, v7")
    a("v_lshl_add_u32 v8, v9, 8, v8")
    a("v_add_u32 v8, s62, v8")
    a("v_xor_b32 v9, v6, v7")
    a("v_and_b32 v44, 3, v7")
    a("v_lshlrev_b32 v44, 8, v44")
    a("v_lshl_add_u32 v44, v6, 4, v44")
    a(f"v_add_u32 v44, {Q_L:#x}, v44")
    a("v_xor_b32 v45, 4, v9")
    a("v_xor_b32 v46, 8, v9")
    a("v_xor_b32 v47, 12, v9")
    a("v_lshl_add_u32 v6, v9, 4, v8")
    a("v_lshl_add_u32 v7, v45, 4, v8")
    a("v_lshl_add_u32 v9, v47, 4, v8")
    a("v_lshl_add_u32 v8, v46, 4, v8")
    a("s_mov_b32 s64, 0x00f000f0"); a("s_mov_b32 s65, 0x00f000f0")
    a("s_mov_b32 s66, 0x0f000f00"); a("s_mov_b32 s67, 0x0f000f00")
    a("s_mov_b32 s70, 0xf000f000"); a("s_mov_b32 s71, 0xf000f000")
    MASK = {1: "s[64:65]", 2: "s[66:67]", 3: "s[70:71]"}
    a("s_mov_b32 s8, 0x05040100")
    a("s_mov_b32 s9, 0x07060302")
    a(f"s_mov_b32 s10, {f32(CSC)}")
    a(f"v_mov_b32 v45, {C_L:#x}")
    a("v_mov_b32 v46, 1")
    srd(56, 34, 1024)
    a("s_and_b32 s6, s11, 31")
    a("s_lshr_b32 s6, s6, 1")
    a("s_lshl_b32 s6, s6, 5")
    a("s_and_b32 s7, s11, 1")
    a("s_lshl_b32 s7, s7, 3")
    a("s_add_u32 s69, s6, s7")
    a("s_lshl_b32 s68, s69, 1")
    a("v_and_b32 v12, 7, v0")
    a("v_lshlrev_b32 v12, 1, v12")
    tagcalc()
    seqno = [1]
    def tick():
        if seqno[0] == qtrig:
            cnt_add(16, 45, 46)
        seqno[0] += 1
    for tt in range(1, 8):
        issueK(tt); tick()
        if st2 and tt == 1: stamp(7)
        if st2 and tt == 3: stamp(2)
    a("buffer_load_ushort v10, v12, s[56:59], s68 offen")
    a("buffer_load_ushort v11, v12, s[56:59], s68 offen offset:32")
    nissued[0] += 2
    QFR, KT, DT, SD = 12, 28, 44, 48
    OA, AT, PT = 12, 44, 56
    done = set()
    chunks = []
    def add(fn, need=None, tag=None, earliest=0):
        chunks.append((fn, need, tag, earliest))
    def c_q():
        stamp(1)
        cnt_wait(4, "L_wq", 45, 46, 63)
        stamp(2)
        for j in range(4):
            a(f"ds_read_b128 v[{QFR+4*j}:{QFR+4*j+3}], v44 offset:{64*j}")
        Dcur[0] = D2
    add(c_q, earliest=nissued[0] + 4 * npre - qlead)
    def selfn(tt):
        G = tt >> 1; t = G & 3; st = 2 * (G >> 2) + (tt & 1)
        if t != 0:
            for r in range(4):
                a(f"v_cndmask_b32 v{SD+4*st+r}, v{SD+4*st+r}, v{DT+r}, {MASK[t]}")
    for tt in range(16):
        def ca(tt=tt):
            for j in range(4):
                a(f"ds_read_b128 v[{KT+4*j}:{KT+4*j+3}], v{6+j} offset:{(tt & 7)*4096}")
            if tt > 0: selfn(tt - 1)
        def cb(tt=tt):
            G = tt >> 1; t = G & 3; st = 2 * (G >> 2) + (tt & 1)
            dst = SD + 4 * st if t == 0 else DT
            for j in range(4):
                a(f"s_waitcnt lgkmcnt({3-j})")
                c = "0" if j == 0 else f"v[{dst}:{dst+3}]"
                a(f"v_mfma_f32_16x16x32_bf16 v[{dst}:{dst+3}], v[{KT+4*j}:{KT+4*j+3}], v[{QFR+4*j}:{QFR+4*j+3}], {c}")
        add(ca, need=("k", tt))
        add(cb, tag=("S", tt))
    def m1():
        selfn(15)
        a(f"v_max3_f32 v44, v{SD}, v{SD+1}, v{SD+2}")
        a(f"v_max3_f32 v45, v{SD+3}, v{SD+4}, v{SD+5}")
        a(f"v_max3_f32 v46, v{SD+6}, v{SD+7}, v{SD+8}")
        a(f"v_max3_f32 v47, v{SD+9}, v{SD+10}, v{SD+11}")
        a(f"v_max3_f32 v44, v44, v{SD+12}, v{SD+13}")
        a(f"v_max3_f32 v45, v45, v{SD+14}, v{SD+15}")
        a(f"v_max3_f32 v44, v44, v46, v47")
        a(f"v_max_f32 v44, v44, v45")
    def m2():
        xlane("v_max_f32", 44, 45)
        a("v_mul_f32 v44, s10, v44")
        a("v_and_b32 v46, 3, v0")
        a("v_lshlrev_b32 v46, 4, v46")
        a("s_lshl_b32 s6, s3, 2")
        a(f"s_add_u32 s6, s6, {M_L:#x}")
        a("v_add_u32 v47, s6, v46")
    def m3(h):
        for i in range(8 * h, 8 * h + 8):
            a(f"v_fma_f32 v{SD+i}, v{SD+i}, s10, -v44")
        for i in range(8 * h, 8 * h + 8):
            a(f"v_exp_f32 v{SD+i}, v{SD+i}")
    def m4():
        a(f"v_add_f32 v28, v{SD}, v{SD+1}")
        a(f"v_add_f32 v29, v{SD+2}, v{SD+3}")
        a(f"v_add_f32 v30, v{SD+4}, v{SD+5}")
        a(f"v_add_f32 v31, v{SD+6}, v{SD+7}")
        for k in range(2):
            for q in range(4):
                a(f"v_add_f32 v{28+q}, v{28+q}, v{SD+8+4*k+q}")
        a("v_add_f32 v28, v28, v29")
        a("v_add_f32 v30, v30, v31")
        a("v_add_f32 v28, v28, v30")
    def m5():
        xlane("v_add_f32", 28, 29)
        a(f"v_mov_b32 v1, {C_L:#x}")
        a("v_mov_b32 v2, 1")
        a("s_mov_b64 exec, 15")
        a("ds_write_b32 v47, v44")
        a(f"ds_write_b32 v47, v28 offset:{L_L-M_L}")
        a("s_mov_b64 exec, 1")
        a("ds_add_u32 v1, v2 offset:8")
        a("s_mov_b64 exec, -1")
        for i in range(8):
            a(f"v_cvt_pk_bf16_f32 v{SD+i}, v{SD+2*i}, v{SD+2*i+1}")
        a("s_waitcnt lgkmcnt(0)")
        stamp(3)
    add(m1); add(m2); add(lambda: m3(0)); add(lambda: m3(1)); add(m4); add(m5)
    def pvsrc(G):
        return SD + 4 * (G >> 2) if (G & 3) == 0 else AT
    def pvhead(G):
        t = G & 3
        if t != 0:
            for i in range(4):
                a(f"v_mov_b32_dpp v{AT+i}, v{SD+4*(G>>2)+i} row_shl:{4*t} row_mask:0xf bank_mask:0xf bound_ctrl:0")
    def Vr(G, e, p):
        return vreg(2 * G if e < 4 else 2 * G + 1, e & 3) + p
    def pvc(G, p):
        if p == 0: pvhead(G)
        src = pvsrc(G)
        for h in range(2):
            sel = "s8" if h == 0 else "s9"
            for q in range(4):
                a(f"v_perm_b32 v{PT+4*h+q}, v{Vr(G, 2*q+1, p)}, v{Vr(G, 2*q, p)}, {sel}")
        for h in range(2):
            dd = 2 * p + h
            c = "0" if G == 0 else f"v[{OA+4*dd}:{OA+4*dd+3}]"
            a(f"v_mfma_f32_16x16x32_bf16 v[{OA+4*dd}:{OA+4*dd+3}], v[{src}:{src+3}], v[{PT+4*h}:{PT+4*h+3}], {c}")
    for G in range(7):
        for p in range(4):
            add(lambda G=G, p=p: pvc(G, p), need=("v", 2 * G + 1), tag=("PV", G) if p == 3 else None)
    def PVlast():
        G = 7
        pvhead(G)
        src = pvsrc(G)
        TB = vreg(4, 0)
        for q in range(4):
            key = ("v", 14 if q < 2 else 15, (2 * q + 1) & 3)
            waitfor(key)
            for dd in range(8):
                p, sel = dd >> 1, ("s8" if (dd & 1) == 0 else "s9")
                a(f"v_perm_b32 v{TB+4*dd+q}, v{Vr(G, 2*q+1, p)}, v{Vr(G, 2*q, p)}, {sel}")
        for dd in range(8):
            a(f"v_mfma_f32_16x16x32_bf16 v[{OA+4*dd}:{OA+4*dd+3}], v[{src}:{src+3}], v[{TB+4*dd}:{TB+4*dd+3}], v[{OA+4*dd}:{OA+4*dd+3}]")
    ci = [0]
    def emit_chunk():
        fn, need, tag, e = chunks[ci[0]]
        ci[0] += 1
        if need is not None: waitfor(need)
        fn()
        if tag: done.add(tag)
    def chunk_ready():
        if ci[0] >= len(chunks): return False
        fn, need, tag, e = chunks[ci[0]]
        if nissued[0] < e: return False
        if need is not None and (need not in pos or pos[need] > covered[0]): return False
        return True
    seq = [("v", t) for t in range(npre)] + [("k", t) for t in range(8, 16)] + [("v", t) for t in range(npre, 16)]
    for kind, tt in seq:
        req = ("S", tt - 8) if kind == "k" else (("PV", (tt - 12) // 2) if tt >= 12 else None)
        while req is not None and req not in done:
            emit_chunk()
        if kind == "k": a(f"s_add_u32 m0, s62, {(tt & 7) * 4096}")
        for i in range(4):
            throttle()
            if kind == "k":
                a(f"buffer_load_dwordx4 v{1+i}, s[48:51], s60 offen offset:{i*1024} {kvpol} lds")
            else:
                r = vreg(tt, i)
                a(f"buffer_load_dwordx4 v[{r}:{r+3}], v5, s[52:55], s61 offen offset:{i*1024} {kvpol}")
            nissued[0] += 1
            pos[(kind, tt, i)] = nissued[0]
            if i == 3:
                pos[(kind, tt)] = nissued[0]
                sr = "s60" if kind == "k" else "s61"
                if tt < 15: a(f"s_add_u32 {sr}, s{12+((tt+1)&3)}, {(tt+1)*TS}")
                if kind == "v" and tt < npre: tick()
                if kind == "v" and tt == trig:
                    a(f"v_mov_b32 v1, {C_L:#x}")
                    a("v_mov_b32 v2, 1")
                    cnt_add(12, 1, 2)
            for _ in range(cpl):
                if chunk_ready(): emit_chunk()
    def factors():
        a(f"v_mov_b32 v1, {C_L:#x}")
        cnt_wait(8, "L_wml", 1, 2, 63, target=6)
        a("s_lshl_b32 s6, s3, 4")
        a(f"s_add_u32 s6, s6, {M_L:#x}")
        a("v_lshrrev_b32 v3, 5, v0")
        a("v_lshl_add_u32 v1, v3, 3, s6")
        a("ds_read_b64 v[6:7], v1")
        a("s_lshl_b32 s6, s3, 2")
        a(f"s_add_u32 s7, s6, {G_L+16:#x}")
        a("v_mov_b32 v1, s7")
        a("ds_read_b32 v8, v1")
        a(f"v_mov_b32 v1, {G_L:#x}")
        a("ds_read_b32 v4, v1")
        a(f"ds_read_b32 v9, v1 offset:{C_L+24-G_L}")
        a("v_and_b32 v2, 1, v0")
        a("v_lshlrev_b32 v2, 10, v2")
        a("v_lshl_add_u32 v2, v3, 16, v2")
        a("v_bfe_u32 v3, v0, 1, 4")
        a("v_lshl_add_u32 v2, v3, 4, v2")
        a("v_add_u32 v2, s6, v2")
        a("v_add_u32 v3, s62, v5")
        a("s_waitcnt lgkmcnt(0)")
        a("v_readfirstlane_b32 s92, v9")
        a("v_sub_f32 v6, v6, v8")
        a("v_sub_f32 v7, v7, v8")
        a("v_exp_f32 v6, v6")
        a("v_exp_f32 v7, v7")
        a("v_sub_f32 v9, 1.0, v4")
        a("v_mul_f32 v6, v6, v4")
        a("v_mul_f32 v7, v7, v4")
        a("v_lshlrev_b32 v10, 16, v10")
        a("v_lshlrev_b32 v11, 16, v11")
        a("v_mul_f32 v10, v10, v9")
        a("v_mul_f32 v11, v11, v9")
        a("s_and_b32 s6, s11, 0x1c")
        a("s_add_u32 s6, s6, s3")
        a("s_lshl_b32 s63, s6, 14")
        a("s_lshr_b32 s6, s11, 5")
        a("s_lshl_b32 s6, s6, 11")
        a("s_add_u32 s63, s63, s6")
        a("s_and_b32 s6, s11, 3")
        a("s_lshl_b32 s6, s6, 9")
        a("s_add_u32 s63, s63, s6")
        a(f"s_add_u32 s63, s63, {OG:#x}")
        a(f"v_mov_b32 v1, {C_L:#x}")
        a("v_mov_b32 v4, 1")
    stamp(4)
    while chunk_ready(): emit_chunk()
    assert ("PV", 2) in done
    factors()
    while ci[0] < len(chunks): emit_chunk()
    PVlast()
    a("s_mov_b64 exec, 0xffff")
    for dd in range(8):
        a(f"ds_write_b128 v3, v[{OA+4*dd}:{OA+4*dd+3}] offset:{dd*256}")
    a("s_mov_b64 exec, 1")
    a("ds_add_u32 v1, v4 offset:20")
    a("s_mov_b64 exec, -1")
    a("v_mov_b32 v49, s5")
    a("v_mov_b32 v51, s5")
    a(f"s_mov_b32 s60, {spin_max*4}")
    a(f"s_setprio {wprio}")
    a("s_branch L_wo")
    a("L_wo_s:")
    if wsleep: a(f"s_sleep {wsleep}")
    a("L_wo:")
    a("ds_read_b32 v44, v1 offset:20")
    a("ds_read2st64_b32 v[52:53], v2 offset0:0 offset1:1")
    a("ds_read2st64_b32 v[54:55], v2 offset0:2 offset1:3")
    a("ds_read2st64_b32 v[56:57], v2 offset0:128 offset1:129")
    a("ds_read2st64_b32 v[58:59], v2 offset0:130 offset1:131")
    a("s_waitcnt lgkmcnt(4)")
    a("v_cmp_gt_u32 vcc, 4, v44")
    a("s_sub_u32 s60, s60, 1")
    a("s_cbranch_scc1 L_wo_go")
    a("s_cbranch_vccnz L_wo_s")
    a("L_wo_go:")
    a("s_setprio 3")
    a("s_waitcnt lgkmcnt(2)")
    for k in range(4):
        a(f"v_mul_f32 v{52+k}, v{52+k}, v6")
    a("s_waitcnt lgkmcnt(0)")
    for k in range(4):
        a(f"v_fma_f32 v{52+k}, v{56+k}, v7, v{52+k}")
    for k in range(4):
        a(f"v_mov_b32 v{56+k}, v{52+k}")
    for k in range(4):
        a(f"v_permlane32_swap_b32 v{52+k}, v{56+k}")
    for k in range(4):
        a(f"v_add_f32 v{52+k}, v{52+k}, v{56+k}")
    a("v_cvt_pk_bf16_f32 v48, v52, v53")
    a("v_cvt_pk_bf16_f32 v50, v54, v55")
    a("s_mov_b64 exec, 0xffffffff")
    a("s_cmp_lg_u32 s92, 0")
    a("s_cbranch_scc1 L_o_slow")
    a("buffer_store_dwordx4 v[48:51], v5, s[44:47], s63 offen")
    a("L_o_done:")
    a("s_setprio 0")
    a("s_mov_b64 exec, -1")
    stamp(5)
    a("s_cmp_lg_u32 s3, 0")
    a("s_cbranch_scc1 L_end")
    srd(48, 38, 8192)
    a("s_lshr_b32 s6, s11, 5")
    a("s_lshl_b32 s60, s11, 12")
    a(f"s_add_u32 s60, s60, {PG:#x}")
    a("s_lshl_b32 s6, s6, 9")
    a("s_add_u32 s6, s6, s69")
    a("s_lshl_b32 s61, s6, 1")
    a("v_lshlrev_b32 v2, 1, v0")
    if fwait:
        cnt_wait(28, "L_fw", 1, 44, 62, sleep=2, target=fwait)
    a(f"s_mov_b32 s62, {spin_max}")
    a("L_fin_poll:")
    if fsleep: a(f"s_sleep {fsleep}")
    for t in range(4):
        a(f"buffer_load_dwordx4 v[{12+4*t}:{15+4*t}], v5, s[44:47], s60 offen offset:{t*1024} {pld}")
    a("s_waitcnt vmcnt(2)")
    a("v_xor_b32 v28, s5, v13")
    a("v_xor_b32 v29, s5, v15")
    a("v_xor_b32 v30, s5, v17")
    a("v_xor_b32 v31, s5, v19")
    a("v_add_f32 v12, v12, v16")
    a("v_add_f32 v14, v14, v18")
    a("v_or3_b32 v28, v28, v29, v30")
    a("s_waitcnt vmcnt(0)")
    a("v_xor_b32 v29, s5, v21")
    a("v_xor_b32 v30, s5, v23")
    a("v_xor_b32 v32, s5, v25")
    a("v_xor_b32 v33, s5, v27")
    a("v_add_f32 v20, v20, v24")
    a("v_add_f32 v22, v22, v26")
    a("v_or3_b32 v28, v28, v31, v29")
    a("v_or3_b32 v30, v30, v32, v33")
    a("v_add_f32 v12, v12, v20")
    a("v_add_f32 v14, v14, v22")
    a("v_or_b32 v28, v28, v30")
    a("v_cmp_ne_u32 vcc, 0, v28")
    a("s_sub_u32 s62, s62, 1")
    a("s_cbranch_scc1 L_fin_go")
    a("s_cbranch_vccnz L_fin_poll")
    a("L_fin_go:")
    prs = ((12, 13), (14, 15))
    for r, tmp in prs: a(f"v_add_f32_dpp v{r}, v{r}, v{r} row_ror:8 row_mask:0xf bank_mask:0xf")
    for r, tmp in prs: a(f"v_mov_b32 v{tmp}, v{r}")
    for r, tmp in prs: a(f"v_permlane16_swap_b32 v{r}, v{tmp}")
    for r, tmp in prs: a(f"v_add_f32 v{r}, v{r}, v{tmp}")
    for r, tmp in prs: a(f"v_mov_b32 v{tmp}, v{r}")
    for r, tmp in prs: a(f"v_permlane32_swap_b32 v{r}, v{tmp}")
    a("v_add_f32 v12, v12, v13")
    a("v_add_f32 v14, v14, v15")
    a("v_add_f32 v12, v12, v10")
    a("v_add_f32 v14, v14, v11")
    a("v_cvt_pk_bf16_f32 v12, v12, v14")
    a("s_mov_b64 exec, 0xff")
    a(f"buffer_store_short v12, v2, s[48:51], s61 offen {outpol}")
    a(f"buffer_store_short_d16_hi v12, v2, s[48:51], s61 offen offset:32 {outpol}")
    a("s_cmp_lg_u32 s2, 0")
    a("s_cbranch_scc1 L_fin_done")
    a("s_mov_b64 exec, 1")
    a("v_mov_b32 v3, s5")
    a("v_mov_b32 v4, 0")
    a("buffer_store_dword v3, v4, s[44:47], 0 offen sc1")
    a("L_fin_done:")
    a("s_mov_b64 exec, -1")
    if pad:
        if padwg >= 0:
            a(f"s_cmp_lg_u32 s2, {padwg}")
            a("s_cbranch_scc1 L_end")
        a("L_pad:")
        a("s_memrealtime s[74:75]")
        a("s_waitcnt lgkmcnt(0)")
        a("s_sub_u32 s76, s74, s72")
        a(f"s_cmp_lt_u32 s76, {pad*100}")
        a("s_cbranch_scc1 L_pad")
    stamp(6, True)
    stamp_store(0)
    a("s_endpgm")

    a("L_o_slow:")
    for _ in range(slowmark): a("s_sleep 127")
    a("buffer_store_dwordx4 v[48:51], v5, s[44:47], s63 offen sc1")
    a("s_branch L_o_done")

    a("L_helper2:")
    if touch == 2:
        a("s_cmp_lg_u32 s3, 2")
        a("s_cbranch_scc1 L_notouch")
        a("s_lshl_b32 s6, s11, 18")
        a("s_load_dword s88, s[20:21], s6")
        a("s_and_b32 s6, s2, 7")
        a("s_lshl_b32 s6, s6, 19")
        a("s_load_dword s89, s[24:25], s6")
        a("s_load_dword s90, s[32:33], 0")
        a("s_load_dword s91, s[30:31], 0")
        a("s_load_dword s92, s[34:35], 0")
        a(f"s_mov_b32 s6, {OG:#x}")
        a("s_load_dword s94, s[42:43], s6")
        a("s_load_dword s95, s[38:39], 0")
        a("s_waitcnt lgkmcnt(0)")
        a("L_notouch:")
    a("s_cmp_lg_u32 s3, 3")
    a("s_cbranch_scc1 L_nogate")
    srd(48, 36, 1024)
    a("s_lshr_b32 s60, s11, 5")
    a("s_lshl_b32 s62, s60, 10")
    a("buffer_load_dwordx4 v[32:35], v5, s[52:55], s62 offen")
    a("buffer_load_dwordx4 v[36:39], v5, s[48:51], 0 offen")
    a("v_mov_b32 v40, 0")
    a(f"v_mov_b32 v2, {G_L:#x}")
    a("s_waitcnt vmcnt(0)")
    for i in range(4):
        a(f"v_dot2_f32_bf16 v40, v{32+i}, v{36+i}, v40")
    a("v_add_f32_dpp v40, v40, v40 quad_perm:[1,0,3,2] row_mask:0xf bank_mask:0xf")
    a("v_add_f32_dpp v40, v40, v40 quad_perm:[2,3,0,1] row_mask:0xf bank_mask:0xf")
    xlane("v_add_f32", 40, 41)
    a(f"v_mul_f32 v40, {f32(-LOG2E)}, v40")
    a("v_exp_f32 v40, v40")
    a("v_add_f32 v40, 1.0, v40")
    a("v_rcp_f32 v40, v40")
    a("s_mov_b64 exec, 1")
    a("ds_write_b32 v2, v40")
    a("s_waitcnt lgkmcnt(0)")
    a("ds_add_u32 v10, v20 offset:8")
    a("s_and_b32 s6, s11, 31")
    a("s_cmp_lg_u32 s6, 0")
    a("s_cbranch_scc1 L_gate_done")
    a("v_sub_f32 v42, 1.0, v40")
    a("v_mov_b32 v43, s5")
    a("v_mov_b32 v44, 0")
    a("s_lshl_b32 s6, s60, 3")
    a(f"s_add_u32 s6, s6, {GG:#x}")
    a("buffer_store_dwordx2 v[42:43], v44, s[44:47], s6 offen sc1")
    a("L_gate_done:")
    a("s_mov_b64 exec, -1")
    a("L_nogate:")
    a("s_and_b32 s62, s11, 0xfc")
    a("s_add_u32 s62, s62, s3")
    a(f"s_mul_i32 s62, s62, {QSTR}")
    a(f"s_add_u32 s62, s62, {QP:#x}")
    a("s_lshl_b32 s6, s3, 8")
    a(f"s_add_u32 s6, s6, {Q_L:#x}")
    a("v_and_b32 v2, 31, v0")
    a("v_lshl_add_u32 v2, v2, 3, s6")
    cnt_wait(16, "L_qt", 10, 21, 65, sleep=4, target=1)
    a(f"s_mov_b32 s65, {spin_max}")
    a(f"s_mov_b32 s93, {qfail}")
    def republish(lbl):
        a("s_cmp_lg_u32 s92, 0")
        a(f"s_cbranch_scc1 {lbl}")
        a("s_mov_b32 s92, 1")
        a("s_mov_b32 exec_hi, s9")
        a("buffer_store_dwordx4 v[112:115], v116, s[44:47], 0 offen sc1")
        a("s_mov_b64 exec, 1")
        a("ds_write_b32 v10, v20 offset:24")
        a("s_mov_b64 exec, -1")
        a(f"{lbl}:")
    a("L_qp:")
    a("buffer_load_dwordx4 v[32:35], v5, s[44:47], s62 offen sc1")
    a("buffer_load_dwordx4 v[36:39], v5, s[44:47], s62 offen offset:1024 sc1")
    a("s_waitcnt vmcnt(0)")
    for k in range(4):
        a(f"v_xor_b32 v{33+2*k}, s91, v{33+2*k}")
    a("v_or3_b32 v33, v33, v35, v37")
    a("v_or_b32 v33, v33, v39")
    a("v_cmp_lt_u32 vcc, 7, v33")
    a("s_cbranch_vccz L_qp_go")
    if qsleep: a(f"s_sleep {qsleep}")
    a("s_sub_u32 s93, s93, 1")
    a("s_cbranch_scc0 L_qp")
    a("s_mov_b32 s93, 0")
    republish("L_rp1")
    a("s_sub_u32 s65, s65, 1")
    a("s_cbranch_scc0 L_qp")
    a("L_qp_go:")
    a("v_cmp_ne_u32 vcc, 0, v33")
    if not force_slow: a("s_cbranch_vccz L_rp2")
    republish("L_rp2")
    def unpack_sum(nk):
        for k in range(nk):
            for h in range(2):
                src = 32 + 4 * k + 2 * h
                if k == 0:
                    a(f"v_lshlrev_b32 v{12+2*h}, 16, v{src}")
                    a(f"v_and_b32 v{13+2*h}, 0xffff0000, v{src}")
                else:
                    a(f"v_lshlrev_b32 v{src+1}, 16, v{src}")
                    a(f"v_and_b32 v{src}, 0xffff0000, v{src}")
                    a(f"v_add_f32 v{12+2*h}, v{12+2*h}, v{src+1}")
                    a(f"v_add_f32 v{13+2*h}, v{13+2*h}, v{src}")
        for e in range(4): a(f"v_mov_b32 v{16+e}, v{12+e}")
        for e in range(4): a(f"v_permlane32_swap_b32 v{12+e}, v{16+e}")
        for e in range(4): a(f"v_add_f32 v{12+e}, v{12+e}, v{16+e}")
    unpack_sum(2)
    a("v_cvt_pk_bf16_f32 v12, v12, v13")
    a("v_cvt_pk_bf16_f32 v13, v14, v15")
    a("ds_write_b64 v2, v[12:13]")
    a("s_waitcnt lgkmcnt(0)")
    cnt_add(4, 10, 20)
    a(f"s_setprio {hprio}")
    a(f"s_mov_b32 s65, {spin_max*4}")
    a("L_qa:")
    a("ds_read_b32 v21, v10 offset:4")
    a("ds_read_b32 v22, v10 offset:24")
    a("s_waitcnt lgkmcnt(0)")
    a("v_cmp_ne_u32 vcc, 0, v22")
    a("s_cbranch_vccz L_rp3")
    republish("L_rp3")
    a("v_cmp_gt_u32 vcc, 4, v21")
    a("s_cbranch_vccz L_qa_go")
    a("s_sleep 2")
    a("s_sub_u32 s65, s65, 1")
    a("s_cbranch_scc0 L_qa")
    a("L_qa_go:")
    stamp(2)
    a("s_lshr_b32 s60, s2, 5")
    a("s_and_b32 s61, s2, 7")
    a("s_lshl_b32 s61, s61, 2")
    a("s_bfe_u32 s6, s2, 0x20003")
    a("s_add_u32 s61, s61, s6")
    srd(48, 24, 0x400000)
    srd(56, 32, 1792 * 1024)
    srd(52, 30, 3584)
    a("s_lshl_b32 s64, s60, 7")
    a("s_lshl_b32 s62, s61, 17")
    a("s_add_u32 s62, s62, s64")
    a("s_lshl_b32 s6, s3, 15")
    a("s_add_u32 s62, s62, s6")
    a("s_lshl_b32 s66, s61, 16")
    a("s_add_u32 s66, s66, s64")
    a("s_lshl_b32 s6, s3, 14")
    a("s_add_u32 s66, s66, s6")
    a(f"s_mov_b32 s90, {WO_L:#x}")
    a("v_lshrrev_b32 v24, 3, v0")
    a("v_and_b32 v12, 2, v24")
    a("v_xor_b32 v12, v12, v8")
    a("v_lshlrev_b32 v24, 10, v24")
    a("v_lshl_add_u32 v24, v12, 4, v24")
    a("v_xor_b32 v25, 64, v24")
    a(f"v_add_u32 v26, {2*(8192-1024)}, v24")
    a(f"v_add_u32 v27, {3*(8192-1024)}, v25")
    a(f"v_add_u32 v25, {8192-1024}, v25")
    a("v_bfe_u32 v12, v0, 3, 2")
    a("v_lshlrev_b32 v12, 5, v12")
    a(f"v_add3_u32 v120, v11, v12, s90")
    a("v_xor_b32 v121, 32, v120")
    a("v_xor_b32 v122, 64, v120")
    a("v_xor_b32 v123, 96, v120")
    a("v_bfe_u32 v12, v7, 2, 1")
    a("v_mul_u32_u24 v4, 144, v12")
    a("v_lshl_add_u32 v4, v6, 4, v4")
    a("s_mul_i32 s6, s3, 288")
    a(f"s_add_u32 s6, s6, {HA_L:#x}")
    a("v_add_u32 v4, s6, v4")
    a("v_bfe_u32 v12, v0, 3, 2")
    a("v_lshlrev_b32 v53, 3, v12")
    a("v_mul_u32_u24 v1, 144, v8")
    a("s_lshl_b32 s6, s3, 5")
    a(f"s_add_u32 s6, s6, {HA_L:#x}")
    a("v_add3_u32 v1, v1, v53, s6")
    a("v_lshlrev_b32 v52, 3, v8")
    a("v_and_b32 v12, 1, v6")
    a("v_lshlrev_b32 v11, 10, v12")
    a("s_lshl_b32 s69, s3, 11")
    a("s_lshl_b32 s6, s61, 5")
    a("s_add_u32 s69, s69, s6")
    a(f"s_add_u32 s69, s69, {LG:#x}")
    a("s_lshl_b32 s70, s61, 14")
    a("s_lshl_b32 s6, s3, 12")
    a("s_add_u32 s70, s70, s6")
    a(f"s_mul_i32 s63, s61, {HSTR}")
    a("s_add_u32 s63, s63, s6")
    a(f"s_add_u32 s63, s63, {HP:#x}")
    a(f"s_add_u32 s70, s70, {OG:#x}")
    a("s_lshl_b32 s6, s3, 15")
    a(f"s_add_u32 s6, s6, {AS_OFF:#x}")
    a("v_lshrrev_b32 v13, 5, v0")
    a("v_and_b32 v14, 31, v0")
    a("v_mul_u32_u24 v13, 272, v13")
    a("v_lshl_add_u32 v13, v14, 3, v13")
    a("v_add_u32 v2, s6, v13")
    a("v_mul_u32_u24 v13, 272, v8")
    a("v_lshl_add_u32 v13, v6, 4, v13")
    a("v_add_u32 v58, s6, v13")
    a("v_lshlrev_b32 v59, 17, v12")
    a("v_lshrrev_b32 v12, 3, v7")
    a("v_lshl_add_u32 v59, v12, 12, v59")
    a("v_lshl_add_u32 v59, v8, 4, v59")
    a("s_lshl_b32 s71, s3, 18")
    a("s_lshl_b32 s6, s60, 14")
    a("s_add_u32 s71, s71, s6")
    a("s_lshl_b32 s6, s61, 7")
    a("s_add_u32 s71, s71, s6")
    a(f"s_add_u32 s71, s71, {PG:#x}")
    a("s_add_u32 s8, s71, 8192")
    if no_h: a("s_branch L_nohact")
    a("s_cmp_ge_u32 s61, 28")
    a("s_cbranch_scc1 L_nohact")
    a("s_lshl_b32 s6, s61, 7")
    a("s_lshl_b32 s7, s3, 5")
    a("s_add_u32 s6, s6, s7")
    a("buffer_load_dwordx2 v[54:55], v53, s[52:55], s6 offen")
    a(f"s_mov_b32 s64, {GG:#x}")
    a(f"s_mov_b32 s65, {spin_max}")
    a("L_hp:")
    for k in range(4):
        a(f"buffer_load_dwordx4 v[{32+4*k}:{35+4*k}], v5, s[44:47], s63 offen offset:{k*1024} sc1")
    a("buffer_load_dwordx2 v[56:57], v52, s[44:47], s64 offen sc1")
    a("s_waitcnt vmcnt(0)")
    for k in range(8):
        a(f"v_xor_b32 v{33+2*k}, s5, v{33+2*k}")
    a("v_xor_b32 v48, s5, v57")
    a("v_or3_b32 v33, v33, v35, v37")
    a("v_or3_b32 v39, v39, v41, v43")
    a("v_or3_b32 v45, v45, v47, v48")
    a("v_or3_b32 v33, v33, v39, v45")
    a("v_cmp_lt_u32 vcc, 7, v33")
    a("s_cbranch_vccz L_hp_go")
    a("s_sleep 16")
    a("s_sub_u32 s65, s65, 1")
    a("s_cbranch_scc0 L_hp")
    a("L_hp_go:")
    unpack_sum(4)
    a("v_lshlrev_b32 v16, 16, v54")
    a("v_and_b32 v17, 0xffff0000, v54")
    a("v_lshlrev_b32 v18, 16, v55")
    a("v_and_b32 v19, 0xffff0000, v55")
    for e in range(4): a(f"v_add_f32 v{12+e}, v{12+e}, v{16+e}")
    for e in range(4): a(f"v_max_f32 v{12+e}, 0, v{12+e}")
    for e in range(4): a(f"v_mul_f32 v{16+e}, v{12+e}, v56")
    for e in range(4): a(f"v_mul_f32 v{12+e}, v{12+e}, v{16+e}")
    a("v_cvt_pk_bf16_f32 v12, v12, v13")
    a("v_cvt_pk_bf16_f32 v13, v14, v15")
    a("ds_write_b64 v1, v[12:13]")
    a("L_nohact:")
    a("s_cmp_lg_u32 s3, 0")
    a("s_cbranch_scc1 L_nolse")
    cnt_wait(8, "L_hml", 10, 21, 65, sleep=8, target=5)
    a("v_lshlrev_b32 v12, 4, v9")
    a(f"v_add_u32 v12, {M_L:#x}, v12")
    a("ds_read_b128 v[16:19], v12")
    a(f"ds_read_b128 v[32:35], v12 offset:{L_L-M_L}")
    a("s_and_b32 s6, s11, 0xfc")
    a("s_lshl_b32 s6, s6, 5")
    a("s_and_b32 s7, s11, 3")
    a("s_lshl_b32 s7, s7, 3")
    a("s_add_u32 s6, s6, s7")
    a(f"s_add_u32 s6, s6, {LG:#x}")
    a("v_lshlrev_b32 v13, 5, v9")
    a("s_waitcnt lgkmcnt(0)")
    a("v_max3_f32 v14, v16, v17, v18")
    a("v_max_f32 v14, v14, v19")
    for w in range(4): a(f"v_sub_f32 v{16+w}, v{16+w}, v14")
    for w in range(4): a(f"v_exp_f32 v{16+w}, v{16+w}")
    a("v_mul_f32 v36, v16, v32")
    for w in range(1, 4): a(f"v_fma_f32 v36, v{16+w}, v{32+w}, v36")
    a("v_log_f32 v36, v36")
    a("v_mov_b32 v15, s5")
    a("v_add_f32 v14, v14, v36")
    a("s_mov_b64 exec, 15")
    a("s_cmp_lg_u32 s92, 0")
    a("s_cbranch_scc1 L_lse_slow")
    a("buffer_store_dwordx2 v[14:15], v13, s[44:47], s6 offen")
    a("s_branch L_lse_done")
    a("L_lse_slow:")
    a("buffer_store_dwordx2 v[14:15], v13, s[44:47], s6 offen sc1")
    a("L_lse_done:")
    a("s_mov_b64 exec, -1")
    a("s_sub_u32 s6, s6, s7")
    a(f"s_mov_b32 s65, {spin_max}")
    a("L_lp:")
    a("s_sleep 8")
    a("buffer_load_dwordx4 v[28:31], v13, s[44:47], s6 offen sc1")
    a("buffer_load_dwordx4 v[32:35], v13, s[44:47], s6 offen offset:16 sc1")
    a("s_waitcnt vmcnt(0)")
    for k in range(4):
        a(f"v_xor_b32 v{29+2*k}, s5, v{29+2*k}")
    a("v_or3_b32 v29, v29, v31, v33")
    a("v_or_b32 v29, v29, v35")
    a("v_cmp_ne_u32 vcc, 0, v29")
    a("s_sub_u32 s65, s65, 1")
    a("s_cbranch_scc1 L_lp_go")
    a("s_cbranch_vccnz L_lp")
    a("L_lp_go:")
    a("v_max3_f32 v44, v28, v30, v32")
    a("v_max_f32 v44, v44, v34")
    for k in range(4):
        a(f"v_sub_f32 v{48+k}, v{28+2*k}, v44")
    for k in range(4):
        a(f"v_exp_f32 v{48+k}, v{48+k}")
    a("v_add_f32 v48, v48, v49")
    a("v_add_f32 v50, v50, v51")
    a("v_add_f32 v48, v48, v50")
    a("v_log_f32 v48, v48")
    a("v_lshlrev_b32 v12, 2, v9")
    a(f"v_add_u32 v12, {G_L+16:#x}, v12")
    a("v_add_f32 v48, v48, v44")
    a("s_mov_b64 exec, 15")
    a("ds_write_b32 v12, v48")
    a("s_mov_b64 exec, 1")
    a("ds_add_u32 v10, v20 offset:8")
    a("s_mov_b64 exec, -1")
    a("L_nolse:")
    cnt_wait(12, "L_trig", 10, 21, 65, sleep=2, target=ttarget)
    a(f"s_setprio {tprio}")
    a("s_mov_b32 m0, s67")
    a("s_nop 0")
    for i in range(4):
        a(f"buffer_load_dwordx4 v{24+i}, s[48:51], s62 offen offset:{i*1024} {lpol} lds")
    a("s_mov_b32 m0, s68")
    a("s_nop 0")
    for i in range(2):
        a(f"buffer_load_dwordx4 v{24+i}, s[56:59], s66 offen offset:{i*1024} {lpol} lds")
    for k in range(1, pf + 1):
        a(f"s_add_u32 s6, s60, {k}")
        a("s_and_b32 s6, s6, 7")
        a("s_sub_u32 s6, s6, s60")
        a("s_lshl_b32 s6, s6, 7")
        a("s_add_u32 s7, s6, s66")
        a("s_add_u32 s6, s6, s62")
        for i in range(4):
            a(f"buffer_load_dwordx4 v[{224+4*i}:{227+4*i}], v{24+i}, s[48:51], s6 offen offset:{i*1024} {lpol}")
        for i in range(2):
            a(f"buffer_load_dwordx4 v[{240+4*i}:{243+4*i}], v{24+i}, s[56:59], s7 offen offset:{i*1024} {lpol}")
    for k in range(4):
        a(f"v_mov_b32 v{65+2*k}, s5")
    a("v_add_u32 v9, 1088, v2")
    a("v_mov_b32 v36, 1")
    stamp(3)
    WOF, W2F, AF, ACC = 128, 192, 72, 96
    for k in range(4):
        a(f"v_mov_b32 v{60+k}, 0")
    a(f"s_waitcnt vmcnt({6*pf})")
    cnt_add(0, 10, 36)
    def p2_loads():
        for k in range(4):
            a(f"buffer_load_dwordx4 v[{12+4*k}:{15+4*k}], v5, s[44:47], s70 offen offset:{k*1024} sc1")
    cnt_wait(0, "L_s2", 10, 37, 65, sleep=1, target=8)
    stamp(6)
    for j in range(4):
        if j == p2pos: p2_loads()
        for aa in range(4):
            for eh in range(2):
                r = WOF + 16 * j + 4 * aa + 2 * eh
                a(f"ds_read_b64_tr_b16 v[{r}:{r+1}], v{120+aa} offset:{j*4096 + eh*512}")
        a("s_waitcnt lgkmcnt(6)")
    if p2pos == 4: p2_loads()
    a("s_cmp_ge_u32 s61, 28")
    a("s_cbranch_scc1 L_nomlp")
    for j in range(2):
        for aa in range(4):
            for eh in range(2):
                r = W2F + 16 * j + 4 * aa + 2 * eh
                a(f"ds_read_b64_tr_b16 v[{r}:{r+1}], v{120+aa} offset:{W2_L-WO_L + j*4096 + eh*512}")
        a("s_waitcnt lgkmcnt(4)")
    a("ds_read_b128 v[88:91], v4")
    a("ds_read_b128 v[92:95], v4 offset:64")
    a("s_waitcnt lgkmcnt(0)")
    for j in range(2):
        for aa in range(4):
            c = "0" if j == 0 else f"v[{ACC+4*aa}:{ACC+4*aa+3}]"
            a(f"v_mfma_f32_16x16x32_bf16 v[{ACC+4*aa}:{ACC+4*aa+3}], v[{88+4*j}:{91+4*j}], v[{W2F+16*j+4*aa}:{W2F+16*j+4*aa+3}], {c}")
    for aa in range(4):
        a(f"v_mov_b32 v{60+aa}, v{ACC+4*aa}")
    a("L_nomlp:")
    a(f"s_mov_b32 s64, {spin_max}")
    stamp(4)
    if not sel:
        a("s_branch L_p2_body")
        a("L_p2_poll:")
        if p2sleep: a(f"s_sleep {p2sleep}")
        p2_loads()
        a("L_p2_body:")
        for k in range(4):
            a(f"s_waitcnt vmcnt({3-k})")
            va = "v2" if k < 2 else "v9"
            o = (k & 1) * 136
            a(f"ds_write2_b32 {va}, v{12+4*k}, v{14+4*k} offset0:{o} offset1:{o+1}")
            a(f"v_xor_b32 v{28+2*k}, s5, v{13+4*k}")
            a(f"v_xor_b32 v{29+2*k}, s5, v{15+4*k}")
        a("v_or3_b32 v28, v28, v29, v30")
        a("v_or3_b32 v31, v31, v32, v33")
        a("v_or3_b32 v28, v28, v34, v35")
        a("v_or_b32 v28, v28, v31")
        a("v_cmp_ne_u32 vcc, 0, v28")
        a("s_sub_u32 s64, s64, 1")
        a("s_waitcnt lgkmcnt(0)")
        a("s_cbranch_scc1 L_p2_go")
        a("s_cbranch_vccnz L_p2_poll")
    else:
        for k in range(4):
            a(f"s_waitcnt vmcnt({3-k})")
            a(f"s_branch L_pk{k}_chk")
            a(f"L_pk{k}:")
            if p2sleep: a(f"s_sleep {p2sleep}")
            for kk in range(k, min(k + 2, 4)):
                a(f"buffer_load_dwordx4 v[{12+4*kk}:{15+4*kk}], v5, s[44:47], s70 offen offset:{kk*1024} sc1")
            a("s_waitcnt vmcnt(0)")
            a(f"L_pk{k}_chk:")
            a(f"v_xor_b32 v28, s5, v{13+4*k}")
            a(f"v_xor_b32 v29, s5, v{15+4*k}")
            a("v_or_b32 v28, v28, v29")
            a("v_cmp_ne_u32 vcc, 0, v28")
            a("s_sub_u32 s64, s64, 1")
            a(f"s_cbranch_scc1 L_pk{k}_go")
            a(f"s_cbranch_vccnz L_pk{k}")
            a(f"L_pk{k}_go:")
            va = "v2" if k < 2 else "v9"
            o = (k & 1) * 136
            a(f"ds_write2_b32 {va}, v{12+4*k}, v{14+4*k} offset0:{o} offset1:{o+1}")
            a(f"s_mov_b32 s64, {spin_max}")
        a("s_waitcnt lgkmcnt(0)")
    a("L_p2_go:")
    if fwait: cnt_add(28, 10, 36)
    for j in range(4):
        a(f"ds_read_b128 v[{AF+4*j}:{AF+4*j+3}], v58 offset:{j*64}")
    for j in range(4):
        a(f"s_waitcnt lgkmcnt({3-j})")
        for aa in range(4):
            c = "0" if j == 0 else f"v[{ACC+4*aa}:{ACC+4*aa+3}]"
            a(f"v_mfma_f32_16x16x32_bf16 v[{ACC+4*aa}:{ACC+4*aa+3}], v[{AF+4*j}:{AF+4*j+3}], v[{WOF+16*j+4*aa}:{WOF+16*j+4*aa+3}], {c}")
    a("s_mov_b64 exec, 0xffffffff")
    for aa in range(4):
        a(f"v_add_f32 v{60+aa}, v{60+aa}, v{ACC+4*aa}")
        a(f"v_add_f32 v{48+aa}, v{ACC+4*aa+1}, v{ACC+4*aa+2}")
        a(f"v_add_f32 v{60+aa}, v{60+aa}, v{ACC+4*aa+3}")
        a(f"v_add_f32 v{64+2*aa}, v{60+aa}, v{48+aa}")
        if aa == 1: a(f"buffer_store_dwordx4 v[64:67], v59, s[44:47], s71 offen {pst}")
    a(f"buffer_store_dwordx4 v[68:71], v59, s[44:47], s8 offen {pst}")
    a("s_mov_b64 exec, -1")
    stamp(5)
    if stamps and stamps != "min":
        a("s_add_u32 s3, s3, 1")
        stamp_store("s3")
    a("L_end:")
    a("s_endpgm")
    a.raw('.section .rodata,"a"')
    a.raw(".p2align 6")
    a.raw(f".amdhsa_kernel {NAME}_kernel")
    a.raw("  .amdhsa_next_free_vgpr 256")
    a.raw("  .amdhsa_next_free_sgpr 96")
    a.raw("  .amdhsa_accum_offset 256")
    a.raw("  .amdhsa_group_segment_fixed_size 0")
    a.raw("  .amdhsa_kernarg_size 112")
    a.raw("  .amdhsa_user_sgpr_count 2")
    a.raw("  .amdhsa_user_sgpr_kernarg_segment_ptr 1")
    a.raw("  .amdhsa_system_sgpr_workgroup_id_x 1")
    a.raw(".end_amdhsa_kernel")
    return a.text()

if __name__ == "__main__":
    out = sys.argv[1]
    kw = json.loads(sys.argv[2]) if len(sys.argv) > 2 else {}
    open(out, "w").write(gen(**kw))
```

```python
import sys, json, math, struct
from asmdsl import Asm
NAME = "gated_mix__gqa_block_cached__dense_activation_squared_relu__decode"

GG, LG = 0x3000, 0x10000
QP, HP, OG, PG = 0x100000, 0x80000, 0x200000, 0x280000
E1 = 0x380000
STAMP = 0x8000000
def f32(x): return "0x%08x" % struct.unpack("<I", struct.pack("<f", x))[0]
CSC = math.log2(math.e) / math.sqrt(128.0)
LOG2E = math.log2(math.e)
HEADER = open("cdna_kernels/" + NAME + ".s.ref").read().split("; Override launch geometry")[0]

DOC = '''; ---------------------------------------------------------------------------------------------
;  * hand-offs are {data, tag} granules in d_ws; tag derives from two epoch words found in d_ws, advanced each launch.
; ---------------------------------------------------------------------------------------------'''

def gen(stamps=False, kvpol="nt", wpol="nt", spin_max=400000, D1=6, D2=6, qsleep=4, qtrig=6,
        trig=15, npre=4, rot=False, qfail=5, force_slow=False, pf=0, lpol=None, wprio=0, tprio=1, wsleep=1, fsleep=0, nogg=False, D0=0, n0=8, latetag=True, k01=False, slowmark=0, qlead=4, cpl=1, Dhi=0, nhi=128, p2pos=0, ilv=0, p2sleep=2, pst='sc1', pld='sc1', sel=False, fwait=False, ttarget=4, early=True, st2=False, spread=False, estpol='sc1', ostpol='sc1', D3=0, n3=4, pad=0, padwg=-1, amap=1, hprio=0, sprio=2, w2early=False, outpol="", touch=0, no_h=False, no_wo=False, no_qp=False, no_st=False, no_gate=False):
    a = Asm()
    if lpol is None: lpol = wpol
    NST = 8
    QSTR, HSTR = (67584, 540672) if spread else (2048, 16384)
    QP, HP = (0x1000000, 0x3000000) if spread else (0x100000, 0x80000)
    WQ_L, W1_L = 0x20000, 0x24000
    WO_L, W2_L = WQ_L, W1_L
    Q_L, M_L, L_L, G_L, C_L, HA_L = 0x26000, 0x26400, 0x26440, 0x26480, 0x264c0, 0x26500
    LDS_TOTAL = HA_L + 8 * 144
    AS_OFF = 0x1000
    a.raw(HEADER.rstrip())
    a.raw(f"; @launch grid=(256,1,1) block=(512,1,1) lds={LDS_TOTAL}")
    a.raw(DOC)
    a.raw('.amdgcn_target "amdgcn-amd-amdhsa--gfx950"')
    a.raw(".text")
    a.raw(f".globl {NAME}_kernel")
    a.raw(".p2align 8")
    a.raw(f".type {NAME}_kernel,@function")
    a.label(f"{NAME}_kernel")

    def srd(d, base, size):
        a(f"s_mov_b32 s{d}, s{base}")
        a(f"s_mov_b32 s{d+1}, s{base+1}")
        a(f"s_mov_b32 s{d+2}, {size:#x}")
        a(f"s_mov_b32 s{d+3}, 0x00020000")
    def stamp(i, force=False):
        if stamps and (stamps != "min" or force):
            a(f"s_memrealtime s[{72+2*i}:{73+2*i}]")
            a("s_waitcnt lgkmcnt(0)")
    def stamp_store(slot):
        if not stamps: return
        a(f"s_lshl_b32 s6, s2, 3")
        a(f"s_add_u32 s6, s6, {slot}")
        a(f"s_mul_i32 s6, s6, {NST*8}")
        a(f"s_add_u32 s6, s6, {STAMP:#x}")
        a("s_mov_b64 exec, 1")
        a("v_mov_b32 v1, 0")
        for i in range(0, NST, 2):
            for k in range(4):
                a(f"v_mov_b32 v{4+k}, s{72+2*i+k}")
            a(f"buffer_store_dwordx4 v[4:7], v1, s[44:47], s6 offen offset:{i*8}")
            a("s_nop 1")
        a("s_mov_b64 exec, -1")
    def tagcalc():
        a("s_waitcnt lgkmcnt(0)")
        a("s_add_u32 s4, s4, 0x9abcde8")
        a("s_add_u32 s94, s94, 0x2468ad0")
        a("s_add_u32 s5, s4, s94")
        a("s_and_b32 s5, s5, 0xfffffff8")
    def xlane(op, r, tmp):
        a(f"{op}_dpp v{r}, v{r}, v{r} row_ror:4 row_mask:0xf bank_mask:0xf")
        a(f"{op}_dpp v{r}, v{r}, v{r} row_ror:8 row_mask:0xf bank_mask:0xf")
        a(f"v_mov_b32 v{tmp}, v{r}")
        a(f"v_permlane16_swap_b32 v{r}, v{tmp}")
        a(f"{op} v{r}, v{r}, v{tmp}")
        a(f"v_mov_b32 v{tmp}, v{r}")
        a(f"v_permlane32_swap_b32 v{r}, v{tmp}")
        a(f"{op} v{r}, v{r}, v{tmp}")
    def cnt_add(off, vaddr, vone):
        a("s_mov_b64 exec, 1")
        a(f"ds_add_u32 v{vaddr}, v{vone} offset:{off}")
        a("s_mov_b64 exec, -1")
    def cnt_wait(off, lbl, vaddr, vtmp, sreg, sleep=0, target=4):
        a(f"s_mov_b32 s{sreg}, {spin_max*4}")
        a(f"{lbl}:")
        a(f"ds_read_b32 v{vtmp}, v{vaddr} offset:{off}")
        a("s_waitcnt lgkmcnt(0)")
        a(f"v_cmp_gt_u32 vcc, {target}, v{vtmp}")
        a(f"s_cbranch_vccz {lbl}_go")
        if sleep: a(f"s_sleep {sleep}")
        a(f"s_sub_u32 s{sreg}, s{sreg}, 1")
        a(f"s_cbranch_scc0 {lbl}")
        a(f"{lbl}_go:")
    def unit_id():
        if amap == 1:
            a("s_and_b32 s11, s2, 0xe0")
            a("s_and_b32 s6, s2, 7")
            a("s_lshl_b32 s6, s6, 2")
            a("s_add_u32 s11, s11, s6")
            a("s_bfe_u32 s6, s2, 0x20003")
            a("s_add_u32 s11, s11, s6")
        elif amap == 2:
            a("s_and_b32 s11, s2, 7")
            a("s_lshl_b32 s11, s11, 5")
            a("s_lshr_b32 s6, s2, 3")
            a("s_add_u32 s11, s11, s6")
        else:
            a("s_mov_b32 s11, s2")

    a("s_cmp_ge_u32 s2, 256")
    a("s_cbranch_scc1 L_end")
    if stamps:
        for i in range(NST):
            a(f"s_mov_b64 s[{72+2*i}:{73+2*i}], 0")
        a("s_memrealtime s[72:73]")
    if pad: a("s_memrealtime s[72:73]")
    a("s_load_dwordx16 s[16:31], s[0:1], 0")
    a("s_load_dwordx8 s[32:39], s[0:1], 64")
    a("s_load_dwordx4 s[40:43], s[0:1], 96")
    a("v_lshrrev_b32 v1, 6, v0")
    a("v_and_b32 v0, 63, v0")
    a("v_readfirstlane_b32 s3, v1")
    a("v_lshrrev_b32 v6, 4, v0")
    a("v_and_b32 v7, 15, v0")
    a("v_lshlrev_b32 v5, 4, v0")
    unit_id()
    a("s_cmp_lt_u32 s3, 4")
    a("s_cbranch_scc1 L_stream")

    a("s_setprio 3")
    a(f"v_mov_b32 v10, {C_L:#x}")
    for k in range(4): a(f"v_mov_b32 v{12+k}, 0")
    a("ds_write_b128 v10, v[12:15]")
    a("ds_write_b128 v10, v[12:15] offset:16")
    a("s_getreg_b32 s91, hwreg(HW_REG_XCC_ID)")
    a("s_sub_u32 s3, s3, 4")
    a("v_lshrrev_b32 v16, 3, v0")
    a("v_and_b32 v8, 7, v0")
    a("v_lshlrev_b32 v1, 13, v16")
    a("v_lshl_add_u32 v1, v8, 4, v1")
    for i in range(1, 4):
        a(f"v_add_u32 v{1+i}, {i*(65536-1024)}, v1")
    a("v_mul_u32_u24 v16, 3584, v16")
    a("v_lshl_add_u32 v16, v8, 4, v16")
    a(f"v_add_u32 v17, {8*3584-1024}, v16")
    a("v_lshlrev_b32 v18, 10, v8")
    a("v_lshl_add_u32 v19, v6, 3, v18")
    a("v_lshl_add_u32 v18, v6, 4, v18")
    a("s_bfe_u32 s61, s2, 0x20003")
    a("s_and_b32 s60, s2, 7")
    a("s_lshl_b32 s60, s60, 3")
    a("s_lshr_b32 s6, s2, 5")
    a("s_add_u32 s60, s60, s6")
    a("s_lshl_b32 s62, s61, 20")
    a("s_lshl_b32 s6, s60, 7")
    a("s_add_u32 s62, s62, s6")
    a("s_lshl_b32 s6, s3, 18")
    a("s_add_u32 s62, s62, s6")
    a("s_lshl_b32 s6, s3, 12")
    a(f"s_add_u32 s67, s6, {WQ_L:#x}")
    a("s_lshl_b32 s6, s3, 11")
    a(f"s_add_u32 s68, s6, {W1_L:#x}")
    a("s_lshl_b32 s63, s61, 8")
    a("s_lshl_b32 s6, s3, 6")
    a("s_add_u32 s63, s63, s6")
    a("s_lshr_b32 s66, s60, 1")
    a("s_and_b32 s69, s60, 1")
    a("s_lshl_b32 s70, s61, 1")
    a("s_add_u32 s70, s70, s69")
    a("s_lshl_b32 s6, s70, 2")
    a("s_add_u32 s6, s6, s3")
    a(f"s_mul_i32 s65, s6, {16*3584}")
    a("s_lshl_b32 s64, s6, 5")
    a("s_lshl_b32 s6, s66, 7")
    a("s_add_u32 s65, s65, s6")
    a("s_mov_b32 m0, s67")
    a("s_waitcnt lgkmcnt(0)")
    srd(48, 22, 0x400000)
    srd(52, 16, 8192)
    XF, BF, AC = 64, 128, 80
    for i in range(4):
        a(f"buffer_load_dwordx4 v{1+i}, s[48:51], s62 offen offset:{i*1024} {wpol} lds")
    a(f"buffer_load_dwordx4 v[{XF}:{XF+3}], v18, s[52:55], s63 offen")
    a("s_mov_b32 m0, s68")
    srd(56, 28, 512 * 3584)
    a("s_cmp_ge_u32 s66, 28")
    a("s_cbranch_scc1 L_now1a")
    a(f"buffer_load_dwordx4 v16, s[56:59], s65 offen {wpol} lds")
    a(f"buffer_load_dwordx4 v17, s[56:59], s65 offen offset:1024 {wpol} lds")
    a(f"buffer_load_dwordx2 v[{XF+4}:{XF+5}], v19, s[52:55], s64 offen")
    a("L_now1a:")
    a("s_load_dword s4, s[42:43], 0")
    a(f"s_mov_b32 s95, {E1:#x}")
    a("s_load_dword s94, s[42:43], s95")
    a("s_barrier")
    srd(44, 42, 0x10000000)
    a("v_lshrrev_b32 v16, 2, v7")
    a("v_and_b32 v9, 3, v0")
    a("v_lshl_add_u32 v17, v6, 3, v16")
    a("v_lshlrev_b32 v11, 7, v17")
    a("v_lshl_add_u32 v11, v9, 3, v11")
    a("v_add_u32 v3, s67, v11")
    a("v_lshl_add_u32 v17, v6, 2, v16")
    a("v_lshlrev_b32 v2, 7, v17")
    a("v_lshl_add_u32 v2, v9, 3, v2")
    a("v_add_u32 v2, s68, v2")
    a("v_mov_b32 v20, 1")
    a("v_xor_b32 v1, v6, v8")
    a("v_lshlrev_b32 v1, 4, v1")
    a("v_lshl_add_u32 v1, v8, 8, v1")
    a("v_add_u32 v1, s67, v1")
    a("v_xor_b32 v19, 64, v1")
    a("v_and_b32 v16, 1, v6")
    a("s_lshl_b32 s6, s3, 1")
    a("v_add_u32 v16, s6, v16")
    a("v_xor_b32 v17, v16, v7")
    a("v_lshlrev_b32 v17, 4, v17")
    a("v_lshl_add_u32 v16, v16, 8, v17")
    a("v_bfe_u32 v17, v0, 3, 2")
    a("s_lshl_b32 s6, s3, 2")
    a("v_add_u32 v17, s6, v17")
    a("v_xor_b32 v17, v17, v8")
    a("v_lshlrev_b32 v17, 4, v17")
    a("v_lshl_add_u32 v18, v8, 8, v17")
    a("v_add_u32 v18, 2048, v18")
    a("s_mov_b32 s6, 0")
    a("s_mov_b32 s7, -1")
    a("v_cndmask_b32 v16, v16, v18, s[6:7]")
    a(f"v_add_u32 v16, {WQ_L:#x}, v16")
    a("v_and_b32 v17, 1, v6")
    a(f"v_mul_u32_u24 v17, {32*QSTR}, v17")
    a("v_lshl_add_u32 v17, v7, 4, v17")
    a("s_lshl_b32 s63, s3, 6")
    a("s_lshr_b32 s8, s60, 1")
    a("s_add_u32 s63, s63, s8")
    a(f"s_mul_i32 s63, s63, {QSTR}")
    a("s_lshl_b32 s8, s61, 9")
    a("s_add_u32 s63, s63, s8")
    a("s_lshl_b32 s8, s69, 8")
    a("s_add_u32 s63, s63, s8")
    a(f"s_add_u32 s63, s63, {QP:#x}")
    a("v_add_u32 v17, s63, v17")
    a(f"s_mul_i32 s64, s66, {HSTR}")
    a("s_lshl_b32 s8, s70, 9")
    a("s_add_u32 s64, s64, s8")
    a("s_lshl_b32 s8, s3, 12")
    a("s_add_u32 s64, s64, s8")
    a(f"s_add_u32 s64, s64, {HP-512:#x}")
    a("v_add_u32 v18, s64, v5")
    a("v_cndmask_b32 v4, v17, v18, s[6:7]")
    a("s_cmp_lt_u32 s66, 28")
    a("s_cselect_b32 s9, -1, 0")
    tagcalc()
    a("s_and_b32 s91, s91, 7")
    a("s_or_b32 s91, s91, s5")
    a("v_mov_b32 v113, s91")
    a("v_mov_b32 v115, s91")
    a("s_waitcnt vmcnt(0)")
    for aa in range(4):
        for eh in range(2):
            r = BF + 4 * aa + 2 * eh
            a(f"ds_read_b64_tr_b16 v[{r}:{r+1}], v3 offset:{eh*512 + aa*32}")
    for aa in range(4):
        r = BF + 16 + 2 * aa
        a(f"ds_read_b64_tr_b16 v[{r}:{r+1}], v2 offset:{aa*32}")
    for aa in range(4):
        a(f"s_waitcnt lgkmcnt({10-2*aa})")
        a(f"v_mfma_f32_16x16x32_bf16 v[{AC+4*aa}:{AC+4*aa+3}], v[{BF+4*aa}:{BF+4*aa+3}], v[{XF}:{XF+3}], 0")
    for aa in range(4):
        a(f"s_waitcnt lgkmcnt({3-aa})")
        a(f"v_mfma_f32_16x16x16_bf16 v[{AC+16+4*aa}:{AC+16+4*aa+3}], v[{BF+16+2*aa}:{BF+16+2*aa+1}], v[{XF+4}:{XF+5}], 0")
    a("s_mov_b32 exec_lo, 0x00ff00ff")
    a("s_mov_b32 exec_hi, 0x00ff00ff")
    for part in range(2):
        for aa in range(4):
            r = AC + 16 * part + 4 * aa
            a(f"ds_write_b128 v{1 if aa % 2 == 0 else 19}, v[{r}:{r+3}] offset:{part*2048 + (aa>>1)*128}")
    a("s_mov_b64 exec, 1")
    a("s_waitcnt lgkmcnt(0)")
    a("ds_add_u32 v10, v20")
    a("s_mov_b64 exec, -1")
    cnt_wait(0, "L_s1", 10, 21, 65)
    for j in range(4):
        a(f"ds_read_b128 v[{32+4*j}:{35+4*j}], v16 offset:{j*4096}")
    a("s_waitcnt lgkmcnt(2)")
    for e in range(4): a(f"v_add_f32 v{32+e}, v{32+e}, v{36+e}")
    a("s_waitcnt lgkmcnt(0)")
    for e in range(4): a(f"v_add_f32 v{40+e}, v{40+e}, v{44+e}")
    for e in range(4): a(f"v_add_f32 v{32+e}, v{32+e}, v{40+e}")
    a("v_cvt_pk_bf16_f32 v112, v32, v33")
    a("v_cvt_pk_bf16_f32 v114, v34, v35")
    a("v_mov_b32 v116, v4")
    a("s_mov_b32 s92, 0")
    a("s_mov_b32 exec_hi, s9")
    a("buffer_store_dwordx4 v[112:115], v116, s[44:47], 0 offen")
    a("s_mov_b64 exec, -1")
    stamp(1)
    a("s_branch L_helper2")

    a("L_stream:")
    a("v_lshlrev_b32 v1, 2, v6")
    a("v_xor_b32 v1, v1, v7")
    a("v_xor_b32 v2, 1, v1")
    a("v_xor_b32 v3, 2, v1")
    a("v_xor_b32 v4, 3, v1")
    a("v_lshlrev_b32 v8, 8, v6")
    for i in range(4):
        a(f"v_lshl_add_u32 v{1+i}, v{1+i}, 4, v8")
    TS = 16384
    if ilv == 1:
        a("s_lshr_b32 s7, s11, 2")
        a("s_lshl_b32 s7, s7, 20")
        a("s_and_b32 s6, s11, 3")
        a("s_lshl_b32 s6, s6, 14")
        a("s_add_u32 s7, s7, s6")
        TS = 65536
    else:
        a("s_lshl_b32 s7, s11, 18")
    for r in range(4):
        a(f"s_add_u32 s6, s3, {r if rot else 0}")
        a("s_and_b32 s6, s6, 3")
        a("s_lshl_b32 s6, s6, 12")
        a(f"s_add_u32 s{12+r}, s7, s6")
    a("s_mov_b32 s60, s12")
    a("s_mov_b32 s61, s12")
    a("s_lshl_b32 s62, s3, 15")
    a("s_waitcnt lgkmcnt(0)")
    if st2: stamp(3)
    srd(48, 18, 0x4000000)
    srd(52, 20, 0x4000000)
    a("s_load_dword s4, s[42:43], 0")
    a(f"s_mov_b32 s95, {E1:#x}")
    a("s_load_dword s94, s[42:43], s95")
    if touch == 1:
        a("s_load_dword s88, s[20:21], s60")
        a("s_and_b32 s6, s2, 7")
        a("s_lshl_b32 s6, s6, 19")
        a("s_load_dword s89, s[24:25], s6")
        a("s_load_dword s90, s[32:33], 0")
        a("s_load_dword s91, s[30:31], 0")
        a("s_load_dword s92, s[34:35], 0")
        a("s_load_dword s93, s[36:37], 0")
        a(f"s_mov_b32 s6, {OG:#x}")
        a("s_load_dword s94, s[42:43], s6")
        a("s_load_dword s95, s[38:39], 0")
    if not early: a("s_barrier")
    if st2: stamp(4)

    nissued = [0]
    pos = {}
    covered = [0]
    Dcur = [D1]
    lblc = [0]
    def setmode():
        if Dhi:
            a("s_bitcmp1_b32 s2, 2")
            a("s_cselect_b64 vcc, -1, 0")
    def throttle():
        D = Dcur[0]
        if D0 and nissued[0] < n0: D = D0
        if Dhi and nissued[0] < nhi:
            if nissued[0] - covered[0] > Dhi - 1:
                a(f"s_waitcnt vmcnt({Dhi-1})")
                covered[0] = nissued[0] - (Dhi - 1)
            if nissued[0] >= D:
                lblc[0] += 1
                a(f"s_cbranch_vccnz L_t{lblc[0]}")
                a(f"s_waitcnt vmcnt({D-1})")
                a(f"L_t{lblc[0]}:")
            return
        if D >= 63: return
        if nissued[0] - covered[0] > D - 1:
            a(f"s_waitcnt vmcnt({D-1})")
            covered[0] = nissued[0] - (D - 1)
    def issueK(tt):
        a(f"s_add_u32 m0, s62, {(tt & 7) * 4096}")
        for i in range(4):
            throttle()
            a(f"buffer_load_dwordx4 v{1+i}, s[48:51], s60 offen offset:{i*1024} {kvpol} lds")
            nissued[0] += 1
        pos[("k", tt)] = nissued[0]
        if tt < 15: a(f"s_add_u32 s60, s{12+((tt+1)&3)}, {(tt+1)*TS}")
    def vreg(tt, i):
        return 64 + 4 * (4 * (tt % 12) + i)
    def issueV(tt):
        for i in range(4):
            r = vreg(tt, i)
            throttle()
            a(f"buffer_load_dwordx4 v[{r}:{r+3}], v5, s[52:55], s61 offen offset:{i*1024} {kvpol}")
            nissued[0] += 1
            pos[("v", tt, i)] = nissued[0]
        pos[("v", tt)] = nissued[0]
        if tt < 15: a(f"s_add_u32 s61, s{12+((tt+1)&3)}, {(tt+1)*TS}")
    def waitfor(key):
        if pos[key] <= covered[0]: return
        n = min(nissued[0] - pos[key], 63)
        a(f"s_waitcnt vmcnt({n})")
        covered[0] = nissued[0] - n

    setmode()
    if D0 and D0 < 4: a("s_barrier")
    issueK(0)
    if k01:
        Dsv = Dcur[0]; Dcur[0] = 63
        issueK(1)
        Dcur[0] = Dsv
    if early and not (D0 and D0 < 4): a("s_barrier")
    if sprio: a(f"s_setprio {sprio}")
    srd(44, 42, 0x10000000)
    a("v_and_b32 v8, 3, v7")
    a("v_lshlrev_b32 v8, 10, v8")
    a("v_lshrrev_b32 v9, 2, v7")
    a("v_lshl_add_u32 v8, v9, 8, v8")
    a("v_add_u32 v8, s62, v8")
    a("v_xor_b32 v9, v6, v7")
    a("v_and_b32 v44, 3, v7")
    a("v_lshlrev_b32 v44, 8, v44")
    a("v_lshl_add_u32 v44, v6, 4, v44")
    a(f"v_add_u32 v44, {Q_L:#x}, v44")
    a("v_xor_b32 v45, 4, v9")
    a("v_xor_b32 v46, 8, v9")
    a("v_xor_b32 v47, 12, v9")
    a("v_lshl_add_u32 v6, v9, 4, v8")
    a("v_lshl_add_u32 v7, v45, 4, v8")
    a("v_lshl_add_u32 v9, v47, 4, v8")
    a("v_lshl_add_u32 v8, v46, 4, v8")
    a("s_mov_b32 s64, 0x00f000f0"); a("s_mov_b32 s65, 0x00f000f0")
    a("s_mov_b32 s66, 0x0f000f00"); a("s_mov_b32 s67, 0x0f000f00")
    a("s_mov_b32 s70, 0xf000f000"); a("s_mov_b32 s71, 0xf000f000")
    MASK = {1: "s[64:65]", 2: "s[66:67]", 3: "s[70:71]"}
    a("s_mov_b32 s8, 0x05040100")
    a("s_mov_b32 s9, 0x07060302")
    a(f"s_mov_b32 s10, {f32(CSC)}")
    a(f"v_mov_b32 v45, {C_L:#x}")
    a("v_mov_b32 v46, 1")
    srd(56, 34, 1024)
    a("s_and_b32 s6, s11, 31")
    a("s_lshr_b32 s6, s6, 1")
    a("s_lshl_b32 s6, s6, 5")
    a("s_and_b32 s7, s11, 1")
    a("s_lshl_b32 s7, s7, 3")
    a("s_add_u32 s69, s6, s7")
    a("s_lshl_b32 s68, s69, 1")
    a("v_and_b32 v12, 7, v0")
    a("v_lshlrev_b32 v12, 1, v12")
    if not latetag: tagcalc()
    seqno = [1]
    def tick():
        if seqno[0] == qtrig:
            cnt_add(16, 45, 46)
        seqno[0] += 1
    for tt in range(1, 8):
        if not (k01 and tt == 1): issueK(tt)
        tick()
        if st2 and tt == 1: stamp(7)
        if st2 and tt == 3: stamp(2)
    a("buffer_load_ushort v10, v12, s[56:59], s68 offen")
    a("buffer_load_ushort v11, v12, s[56:59], s68 offen offset:32")
    nissued[0] += 2
    QFR, KT, DT, SD = 12, 28, 44, 48
    OA, AT, PT = 12, 44, 56
    done = set()
    chunks = []
    def add(fn, need=None, tag=None, earliest=0):
        chunks.append((fn, need, tag, earliest))
    def c_q():
        if latetag: tagcalc()
        stamp(1)
        cnt_wait(4, "L_wq", 45, 46, 63)
        stamp(2)
        for j in range(4):
            a(f"ds_read_b128 v[{QFR+4*j}:{QFR+4*j+3}], v44 offset:{64*j}")
        Dcur[0] = D2
    add(c_q, earliest=nissued[0] + 4 * npre - qlead)
    def selfn(tt):
        G = tt >> 1; t = G & 3; st = 2 * (G >> 2) + (tt & 1)
        if t != 0:
            for r in range(4):
                a(f"v_cndmask_b32 v{SD+4*st+r}, v{SD+4*st+r}, v{DT+r}, {MASK[t]}")
    for tt in range(16):
        def ca(tt=tt):
            for j in range(4):
                a(f"ds_read_b128 v[{KT+4*j}:{KT+4*j+3}], v{6+j} offset:{(tt & 7)*4096}")
            if tt > 0: selfn(tt - 1)
        def cb(tt=tt):
            G = tt >> 1; t = G & 3; st = 2 * (G >> 2) + (tt & 1)
            dst = SD + 4 * st if t == 0 else DT
            for j in range(4):
                a(f"s_waitcnt lgkmcnt({3-j})")
                c = "0" if j == 0 else f"v[{dst}:{dst+3}]"
                a(f"v_mfma_f32_16x16x32_bf16 v[{dst}:{dst+3}], v[{KT+4*j}:{KT+4*j+3}], v[{QFR+4*j}:{QFR+4*j+3}], {c}")
        add(ca, need=("k", tt))
        add(cb, tag=("S", tt))
    def m1():
        selfn(15)
        a(f"v_max3_f32 v44, v{SD}, v{SD+1}, v{SD+2}")
        a(f"v_max3_f32 v45, v{SD+3}, v{SD+4}, v{SD+5}")
        a(f"v_max3_f32 v46, v{SD+6}, v{SD+7}, v{SD+8}")
        a(f"v_max3_f32 v47, v{SD+9}, v{SD+10}, v{SD+11}")
        a(f"v_max3_f32 v44, v44, v{SD+12}, v{SD+13}")
        a(f"v_max3_f32 v45, v45, v{SD+14}, v{SD+15}")
        a(f"v_max3_f32 v44, v44, v46, v47")
        a(f"v_max_f32 v44, v44, v45")
    def m2():
        xlane("v_max_f32", 44, 45)
        a("v_mul_f32 v44, s10, v44")
        a("v_and_b32 v46, 3, v0")
        a("v_lshlrev_b32 v46, 4, v46")
        a("s_lshl_b32 s6, s3, 2")
        a(f"s_add_u32 s6, s6, {M_L:#x}")
        a("v_add_u32 v47, s6, v46")
    def m3(h):
        for i in range(8 * h, 8 * h + 8):
            a(f"v_fma_f32 v{SD+i}, v{SD+i}, s10, -v44")
        for i in range(8 * h, 8 * h + 8):
            a(f"v_exp_f32 v{SD+i}, v{SD+i}")
    def m4():
        a(f"v_add_f32 v28, v{SD}, v{SD+1}")
        a(f"v_add_f32 v29, v{SD+2}, v{SD+3}")
        a(f"v_add_f32 v30, v{SD+4}, v{SD+5}")
        a(f"v_add_f32 v31, v{SD+6}, v{SD+7}")
        for k in range(2):
            for q in range(4):
                a(f"v_add_f32 v{28+q}, v{28+q}, v{SD+8+4*k+q}")
        a("v_add_f32 v28, v28, v29")
        a("v_add_f32 v30, v30, v31")
        a("v_add_f32 v28, v28, v30")
    def m5():
        xlane("v_add_f32", 28, 29)
        a(f"v_mov_b32 v1, {C_L:#x}")
        a("v_mov_b32 v2, 1")
        a("s_mov_b64 exec, 15")
        a("ds_write_b32 v47, v44")
        a(f"ds_write_b32 v47, v28 offset:{L_L-M_L}")
        a("s_mov_b64 exec, 1")
        a("ds_add_u32 v1, v2 offset:8")
        a("s_mov_b64 exec, -1")
        for i in range(8):
            a(f"v_cvt_pk_bf16_f32 v{SD+i}, v{SD+2*i}, v{SD+2*i+1}")
        a("s_waitcnt lgkmcnt(0)")
        stamp(3)
    add(m1); add(m2); add(lambda: m3(0)); add(lambda: m3(1)); add(m4); add(m5)
    def pvsrc(G):
        return SD + 4 * (G >> 2) if (G & 3) == 0 else AT
    def pvhead(G):
        t = G & 3
        if t != 0:
            for i in range(4):
                a(f"v_mov_b32_dpp v{AT+i}, v{SD+4*(G>>2)+i} row_shl:{4*t} row_mask:0xf bank_mask:0xf bound_ctrl:0")
    def Vr(G, e, p):
        return vreg(2 * G if e < 4 else 2 * G + 1, e & 3) + p
    def pvc(G, p):
        if p == 0: pvhead(G)
        src = pvsrc(G)
        for h in range(2):
            sel = "s8" if h == 0 else "s9"
            for q in range(4):
                a(f"v_perm_b32 v{PT+4*h+q}, v{Vr(G, 2*q+1, p)}, v{Vr(G, 2*q, p)}, {sel}")
        for h in range(2):
            dd = 2 * p + h
            c = "0" if G == 0 else f"v[{OA+4*dd}:{OA+4*dd+3}]"
            a(f"v_mfma_f32_16x16x32_bf16 v[{OA+4*dd}:{OA+4*dd+3}], v[{src}:{src+3}], v[{PT+4*h}:{PT+4*h+3}], {c}")
    for G in range(7):
        for p in range(4):
            add(lambda G=G, p=p: pvc(G, p), need=("v", 2 * G + 1), tag=("PV", G) if p == 3 else None)
    def PVlast():
        G = 7
        pvhead(G)
        src = pvsrc(G)
        TB = vreg(4, 0)
        for q in range(4):
            key = ("v", 14 if q < 2 else 15, (2 * q + 1) & 3)
            waitfor(key)
            for dd in range(8):
                p, sel = dd >> 1, ("s8" if (dd & 1) == 0 else "s9")
                a(f"v_perm_b32 v{TB+4*dd+q}, v{Vr(G, 2*q+1, p)}, v{Vr(G, 2*q, p)}, {sel}")
        for dd in range(8):
            a(f"v_mfma_f32_16x16x32_bf16 v[{OA+4*dd}:{OA+4*dd+3}], v[{src}:{src+3}], v[{TB+4*dd}:{TB+4*dd+3}], v[{OA+4*dd}:{OA+4*dd+3}]")
    ci = [0]
    def emit_chunk():
        fn, need, tag, e = chunks[ci[0]]
        ci[0] += 1
        if need is not None: waitfor(need)
        fn()
        if tag: done.add(tag)
    def chunk_ready():
        if ci[0] >= len(chunks): return False
        fn, need, tag, e = chunks[ci[0]]
        if nissued[0] < e: return False
        if need is not None and (need not in pos or pos[need] > covered[0]): return False
        return True
    seq = [("v", t) for t in range(npre)] + [("k", t) for t in range(8, 16)] + [("v", t) for t in range(npre, 16)]
    for kind, tt in seq:
        req = ("S", tt - 8) if kind == "k" else (("PV", (tt - 12) // 2) if tt >= 12 else None)
        while req is not None and req not in done:
            emit_chunk()
        if kind == "k": a(f"s_add_u32 m0, s62, {(tt & 7) * 4096}")
        for i in range(4):
            throttle()
            if kind == "k":
                a(f"buffer_load_dwordx4 v{1+i}, s[48:51], s60 offen offset:{i*1024} {kvpol} lds")
            else:
                r = vreg(tt, i)
                a(f"buffer_load_dwordx4 v[{r}:{r+3}], v5, s[52:55], s61 offen offset:{i*1024} {kvpol}")
            nissued[0] += 1
            pos[(kind, tt, i)] = nissued[0]
            if i == 3:
                pos[(kind, tt)] = nissued[0]
                sr = "s60" if kind == "k" else "s61"
                if tt < 15: a(f"s_add_u32 {sr}, s{12+((tt+1)&3)}, {(tt+1)*TS}")
                if kind == "v" and tt < npre: tick()
                if kind == "v" and tt == trig:
                    a(f"v_mov_b32 v1, {C_L:#x}")
                    a("v_mov_b32 v2, 1")
                    cnt_add(12, 1, 2)
            for _ in range(cpl):
                if chunk_ready(): emit_chunk()
    def factors():
        a(f"v_mov_b32 v1, {C_L:#x}")
        cnt_wait(8, "L_wml", 1, 2, 63, target=6)
        a("s_lshl_b32 s6, s3, 4")
        a(f"s_add_u32 s6, s6, {M_L:#x}")
        a("v_lshrrev_b32 v3, 5, v0")
        a("v_lshl_add_u32 v1, v3, 3, s6")
        a("ds_read_b64 v[6:7], v1")
        a("s_lshl_b32 s6, s3, 2")
        a(f"s_add_u32 s7, s6, {G_L+16:#x}")
        a("v_mov_b32 v1, s7")
        a("ds_read_b32 v8, v1")
        a(f"v_mov_b32 v1, {G_L:#x}")
        a("ds_read_b32 v4, v1")
        a(f"ds_read_b32 v9, v1 offset:{C_L+24-G_L}")
        a("v_and_b32 v2, 1, v0")
        a("v_lshlrev_b32 v2, 10, v2")
        a("v_lshl_add_u32 v2, v3, 16, v2")
        a("v_bfe_u32 v3, v0, 1, 4")
        a("v_lshl_add_u32 v2, v3, 4, v2")
        a("v_add_u32 v2, s6, v2")
        a("v_add_u32 v3, s62, v5")
        a("s_waitcnt lgkmcnt(0)")
        a("v_readfirstlane_b32 s92, v9")
        a("v_sub_f32 v6, v6, v8")
        a("v_sub_f32 v7, v7, v8")
        a("v_exp_f32 v6, v6")
        a("v_exp_f32 v7, v7")
        a("v_sub_f32 v9, 1.0, v4")
        a("v_mul_f32 v6, v6, v4")
        a("v_mul_f32 v7, v7, v4")
        a("v_lshlrev_b32 v10, 16, v10")
        a("v_lshlrev_b32 v11, 16, v11")
        a("v_mul_f32 v10, v10, v9")
        a("v_mul_f32 v11, v11, v9")
        a("s_and_b32 s6, s11, 0x1c")
        a("s_add_u32 s6, s6, s3")
        a("s_lshl_b32 s63, s6, 14")
        a("s_lshr_b32 s6, s11, 5")
        a("s_lshl_b32 s6, s6, 11")
        a("s_add_u32 s63, s63, s6")
        a("s_and_b32 s6, s11, 3")
        a("s_lshl_b32 s6, s6, 9")
        a("s_add_u32 s63, s63, s6")
        a(f"s_add_u32 s63, s63, {OG:#x}")
        a(f"v_mov_b32 v1, {C_L:#x}")
        a("v_mov_b32 v4, 1")
    stamp(4)
    while chunk_ready(): emit_chunk()
    assert ("PV", 2) in done
    factors()
    while ci[0] < len(chunks): emit_chunk()
    PVlast()
    a("s_mov_b64 exec, 0xffff")
    for dd in range(8):
        a(f"ds_write_b128 v3, v[{OA+4*dd}:{OA+4*dd+3}] offset:{dd*256}")
    a("s_mov_b64 exec, 1")
    a("ds_add_u32 v1, v4 offset:20")
    a("s_mov_b64 exec, -1")
    a("v_mov_b32 v49, s5")
    a("v_mov_b32 v51, s5")
    a(f"s_mov_b32 s60, {spin_max*4}")
    a(f"s_setprio {wprio}")
    a("s_branch L_wo")
    a("L_wo_s:")
    if wsleep: a(f"s_sleep {wsleep}")
    a("L_wo:")
    a("ds_read_b32 v44, v1 offset:20")
    a("ds_read2st64_b32 v[52:53], v2 offset0:0 offset1:1")
    a("ds_read2st64_b32 v[54:55], v2 offset0:2 offset1:3")
    a("ds_read2st64_b32 v[56:57], v2 offset0:128 offset1:129")
    a("ds_read2st64_b32 v[58:59], v2 offset0:130 offset1:131")
    a("s_waitcnt lgkmcnt(4)")
    a("v_cmp_gt_u32 vcc, 4, v44")
    a("s_sub_u32 s60, s60, 1")
    a("s_cbranch_scc1 L_wo_go")
    a("s_cbranch_vccnz L_wo_s")
    a("L_wo_go:")
    a("s_setprio 3")
    a("s_waitcnt lgkmcnt(2)")
    for k in range(4):
        a(f"v_mul_f32 v{52+k}, v{52+k}, v6")
    a("s_waitcnt lgkmcnt(0)")
    for k in range(4):
        a(f"v_fma_f32 v{52+k}, v{56+k}, v7, v{52+k}")
    for k in range(4):
        a(f"v_mov_b32 v{56+k}, v{52+k}")
    for k in range(4):
        a(f"v_permlane32_swap_b32 v{52+k}, v{56+k}")
    for k in range(4):
        a(f"v_add_f32 v{52+k}, v{52+k}, v{56+k}")
    a("v_cvt_pk_bf16_f32 v48, v52, v53")
    a("v_cvt_pk_bf16_f32 v50, v54, v55")
    a("s_mov_b64 exec, 0xffffffff")
    a("s_cmp_lg_u32 s92, 0")
    a("s_cbranch_scc1 L_o_slow")
    a("buffer_store_dwordx4 v[48:51], v5, s[44:47], s63 offen")
    a("L_o_done:")
    a("s_setprio 0")
    a("s_mov_b64 exec, -1")
    stamp(5)
    a("s_cmp_lg_u32 s3, 0")
    a("s_cbranch_scc1 L_end")
    srd(48, 38, 8192)
    a("s_lshr_b32 s6, s11, 5")
    a("s_lshl_b32 s60, s11, 12")
    a(f"s_add_u32 s60, s60, {PG:#x}")
    a("s_lshl_b32 s6, s6, 9")
    a("s_add_u32 s6, s6, s69")
    a("s_lshl_b32 s61, s6, 1")
    a("v_lshlrev_b32 v2, 1, v0")
    if fwait:
        cnt_wait(28, "L_fw", 1, 44, 62, sleep=2, target=fwait)
    a(f"s_mov_b32 s62, {spin_max}")
    a("L_fin_poll:")
    if fsleep: a(f"s_sleep {fsleep}")
    for t in range(4):
        a(f"buffer_load_dwordx4 v[{12+4*t}:{15+4*t}], v5, s[44:47], s60 offen offset:{t*1024} {pld}")
    a("s_waitcnt vmcnt(2)")
    a("v_xor_b32 v28, s5, v13")
    a("v_xor_b32 v29, s5, v15")
    a("v_xor_b32 v30, s5, v17")
    a("v_xor_b32 v31, s5, v19")
    a("v_add_f32 v12, v12, v16")
    a("v_add_f32 v14, v14, v18")
    a("v_or3_b32 v28, v28, v29, v30")
    a("s_waitcnt vmcnt(0)")
    a("v_xor_b32 v29, s5, v21")
    a("v_xor_b32 v30, s5, v23")
    a("v_xor_b32 v32, s5, v25")
    a("v_xor_b32 v33, s5, v27")
    a("v_add_f32 v20, v20, v24")
    a("v_add_f32 v22, v22, v26")
    a("v_or3_b32 v28, v28, v31, v29")
    a("v_or3_b32 v30, v30, v32, v33")
    a("v_add_f32 v12, v12, v20")
    a("v_add_f32 v14, v14, v22")
    a("v_or_b32 v28, v28, v30")
    a("v_cmp_ne_u32 vcc, 0, v28")
    a("s_sub_u32 s62, s62, 1")
    a("s_cbranch_scc1 L_fin_go")
    a("s_cbranch_vccnz L_fin_poll")
    a("L_fin_go:")
    prs = ((12, 13), (14, 15))
    for r, tmp in prs: a(f"v_add_f32_dpp v{r}, v{r}, v{r} row_ror:8 row_mask:0xf bank_mask:0xf")
    for r, tmp in prs: a(f"v_mov_b32 v{tmp}, v{r}")
    for r, tmp in prs: a(f"v_permlane16_swap_b32 v{r}, v{tmp}")
    for r, tmp in prs: a(f"v_add_f32 v{r}, v{r}, v{tmp}")
    for r, tmp in prs: a(f"v_mov_b32 v{tmp}, v{r}")
    for r, tmp in prs: a(f"v_permlane32_swap_b32 v{r}, v{tmp}")
    a("v_add_f32 v12, v12, v13")
    a("v_add_f32 v14, v14, v15")
    a("v_add_f32 v12, v12, v10")
    a("v_add_f32 v14, v14, v11")
    a("v_cvt_pk_bf16_f32 v12, v12, v14")
    a("s_mov_b64 exec, 0xff")
    a(f"buffer_store_short v12, v2, s[48:51], s61 offen {outpol}")
    a(f"buffer_store_short_d16_hi v12, v2, s[48:51], s61 offen offset:32 {outpol}")
    a("s_cmp_lg_u32 s2, 0")
    a("s_cbranch_scc1 L_fin_done")
    a("s_mov_b64 exec, 1")
    a("v_mov_b32 v3, s4")
    a("v_mov_b32 v4, 0")
    a("v_mov_b32 v6, s94")
    a("buffer_store_dword v3, v4, s[44:47], 0 offen sc1")
    a("buffer_store_dword v6, v4, s[44:47], s95 offen sc1")
    a("L_fin_done:")
    a("s_mov_b64 exec, -1")
    if pad:
        if padwg >= 0:
            a(f"s_cmp_lg_u32 s2, {padwg}")
            a("s_cbranch_scc1 L_end")
        a("L_pad:")
        a("s_memrealtime s[74:75]")
        a("s_waitcnt lgkmcnt(0)")
        a("s_sub_u32 s76, s74, s72")
        a(f"s_cmp_lt_u32 s76, {pad*100}")
        a("s_cbranch_scc1 L_pad")
    stamp(6, True)
    stamp_store(0)
    a("s_endpgm")

    a("L_o_slow:")
    for _ in range(slowmark): a("s_sleep 127")
    a("buffer_store_dwordx4 v[48:51], v5, s[44:47], s63 offen sc1")
    a("s_branch L_o_done")

    a("L_helper2:")
    if touch == 2:
        a("s_cmp_lg_u32 s3, 2")
        a("s_cbranch_scc1 L_notouch")
        a("s_lshl_b32 s6, s11, 18")
        a("s_load_dword s88, s[20:21], s6")
        a("s_and_b32 s6, s2, 7")
        a("s_lshl_b32 s6, s6, 19")
        a("s_load_dword s89, s[24:25], s6")
        a("s_load_dword s90, s[32:33], 0")
        a("s_load_dword s91, s[30:31], 0")
        a("s_load_dword s92, s[34:35], 0")
        a(f"s_mov_b32 s6, {OG:#x}")
        a("s_load_dword s94, s[42:43], s6")
        a("s_load_dword s95, s[38:39], 0")
        a("s_waitcnt lgkmcnt(0)")
        a("L_notouch:")
    a("s_cmp_lg_u32 s3, 3")
    a("s_cbranch_scc1 L_nogate")
    srd(48, 36, 1024)
    a("s_lshr_b32 s60, s11, 5")
    a("s_lshl_b32 s62, s60, 10")
    a("buffer_load_dwordx4 v[32:35], v5, s[52:55], s62 offen")
    a("buffer_load_dwordx4 v[36:39], v5, s[48:51], 0 offen")
    a("v_mov_b32 v40, 0")
    a(f"v_mov_b32 v2, {G_L:#x}")
    a("s_waitcnt vmcnt(0)")
    for i in range(4):
        a(f"v_dot2_f32_bf16 v40, v{32+i}, v{36+i}, v40")
    a("v_add_f32_dpp v40, v40, v40 quad_perm:[1,0,3,2] row_mask:0xf bank_mask:0xf")
    a("v_add_f32_dpp v40, v40, v40 quad_perm:[2,3,0,1] row_mask:0xf bank_mask:0xf")
    xlane("v_add_f32", 40, 41)
    a(f"v_mul_f32 v40, {f32(-LOG2E)}, v40")
    a("v_exp_f32 v40, v40")
    a("v_add_f32 v40, 1.0, v40")
    a("v_rcp_f32 v40, v40")
    a("s_mov_b64 exec, 1")
    a("ds_write_b32 v2, v40")
    a("s_waitcnt lgkmcnt(0)")
    a("ds_add_u32 v10, v20 offset:8")
    a("s_and_b32 s6, s11, 31")
    a("s_cmp_lg_u32 s6, 0")
    a("s_cbranch_scc1 L_gate_done")
    a("v_sub_f32 v42, 1.0, v40")
    a("v_mov_b32 v43, s5")
    a("v_mov_b32 v44, 0")
    a("s_lshl_b32 s6, s60, 3")
    a(f"s_add_u32 s6, s6, {GG:#x}")
    a("buffer_store_dwordx2 v[42:43], v44, s[44:47], s6 offen sc1")
    a("L_gate_done:")
    a("s_mov_b64 exec, -1")
    a("L_nogate:")
    a("s_and_b32 s62, s11, 0xfc")
    a("s_add_u32 s62, s62, s3")
    a(f"s_mul_i32 s62, s62, {QSTR}")
    a(f"s_add_u32 s62, s62, {QP:#x}")
    a("s_lshl_b32 s6, s3, 8")
    a(f"s_add_u32 s6, s6, {Q_L:#x}")
    a("v_and_b32 v2, 31, v0")
    a("v_lshl_add_u32 v2, v2, 3, s6")
    cnt_wait(16, "L_qt", 10, 21, 65, sleep=4, target=1)
    a(f"s_mov_b32 s65, {spin_max}")
    a(f"s_mov_b32 s93, {qfail}")
    def republish(lbl):
        a("s_cmp_lg_u32 s92, 0")
        a(f"s_cbranch_scc1 {lbl}")
        a("s_mov_b32 s92, 1")
        a("s_mov_b32 exec_hi, s9")
        a("buffer_store_dwordx4 v[112:115], v116, s[44:47], 0 offen sc1")
        a("s_mov_b64 exec, 1")
        a("ds_write_b32 v10, v20 offset:24")
        a("s_mov_b64 exec, -1")
        a(f"{lbl}:")
    a("L_qp:")
    a("buffer_load_dwordx4 v[32:35], v5, s[44:47], s62 offen sc1")
    a("buffer_load_dwordx4 v[36:39], v5, s[44:47], s62 offen offset:1024 sc1")
    a("s_waitcnt vmcnt(0)")
    for k in range(4):
        a(f"v_xor_b32 v{33+2*k}, s91, v{33+2*k}")
    a("v_or3_b32 v33, v33, v35, v37")
    a("v_or_b32 v33, v33, v39")
    a("v_cmp_lt_u32 vcc, 7, v33")
    a("s_cbranch_vccz L_qp_go")
    if qsleep: a(f"s_sleep {qsleep}")
    a("s_sub_u32 s93, s93, 1")
    a("s_cbranch_scc0 L_qp")
    a("s_mov_b32 s93, 0")
    republish("L_rp1")
    a("s_sub_u32 s65, s65, 1")
    a("s_cbranch_scc0 L_qp")
    a("L_qp_go:")
    a("v_cmp_ne_u32 vcc, 0, v33")
    if not force_slow: a("s_cbranch_vccz L_rp2")
    republish("L_rp2")
    def unpack_sum(nk):
        for k in range(nk):
            for h in range(2):
                src = 32 + 4 * k + 2 * h
                if k == 0:
                    a(f"v_lshlrev_b32 v{12+2*h}, 16, v{src}")
                    a(f"v_and_b32 v{13+2*h}, 0xffff0000, v{src}")
                else:
                    a(f"v_lshlrev_b32 v{src+1}, 16, v{src}")
                    a(f"v_and_b32 v{src}, 0xffff0000, v{src}")
                    a(f"v_add_f32 v{12+2*h}, v{12+2*h}, v{src+1}")
                    a(f"v_add_f32 v{13+2*h}, v{13+2*h}, v{src}")
        for e in range(4): a(f"v_mov_b32 v{16+e}, v{12+e}")
        for e in range(4): a(f"v_permlane32_swap_b32 v{12+e}, v{16+e}")
        for e in range(4): a(f"v_add_f32 v{12+e}, v{12+e}, v{16+e}")
    unpack_sum(2)
    a("v_cvt_pk_bf16_f32 v12, v12, v13")
    a("v_cvt_pk_bf16_f32 v13, v14, v15")
    a("ds_write_b64 v2, v[12:13]")
    a("s_waitcnt lgkmcnt(0)")
    cnt_add(4, 10, 20)
    a(f"s_setprio {hprio}")
    a(f"s_mov_b32 s65, {spin_max*4}")
    a("L_qa:")
    a("ds_read_b32 v21, v10 offset:4")
    a("ds_read_b32 v22, v10 offset:24")
    a("s_waitcnt lgkmcnt(0)")
    a("v_cmp_ne_u32 vcc, 0, v22")
    a("s_cbranch_vccz L_rp3")
    republish("L_rp3")
    a("v_cmp_gt_u32 vcc, 4, v21")
    a("s_cbranch_vccz L_qa_go")
    a("s_sleep 2")
    a("s_sub_u32 s65, s65, 1")
    a("s_cbranch_scc0 L_qa")
    a("L_qa_go:")
    stamp(2)
    a("s_lshr_b32 s60, s2, 5")
    a("s_and_b32 s61, s2, 7")
    a("s_lshl_b32 s61, s61, 2")
    a("s_bfe_u32 s6, s2, 0x20003")
    a("s_add_u32 s61, s61, s6")
    srd(48, 24, 0x400000)
    srd(56, 32, 1792 * 1024)
    srd(52, 30, 3584)
    a("s_lshl_b32 s64, s60, 7")
    a("s_lshl_b32 s62, s61, 17")
    a("s_add_u32 s62, s62, s64")
    a("s_lshl_b32 s6, s3, 15")
    a("s_add_u32 s62, s62, s6")
    a("s_lshl_b32 s66, s61, 16")
    a("s_add_u32 s66, s66, s64")
    a("s_lshl_b32 s6, s3, 14")
    a("s_add_u32 s66, s66, s6")
    a(f"s_mov_b32 s90, {WO_L:#x}")
    a("v_lshrrev_b32 v24, 3, v0")
    a("v_and_b32 v12, 2, v24")
    a("v_xor_b32 v12, v12, v8")
    a("v_lshlrev_b32 v24, 10, v24")
    a("v_lshl_add_u32 v24, v12, 4, v24")
    a("v_xor_b32 v25, 64, v24")
    a(f"v_add_u32 v26, {2*(8192-1024)}, v24")
    a(f"v_add_u32 v27, {3*(8192-1024)}, v25")
    a(f"v_add_u32 v25, {8192-1024}, v25")
    a("v_bfe_u32 v12, v0, 3, 2")
    a("v_lshlrev_b32 v12, 5, v12")
    a(f"v_add3_u32 v120, v11, v12, s90")
    a("v_xor_b32 v121, 32, v120")
    a("v_xor_b32 v122, 64, v120")
    a("v_xor_b32 v123, 96, v120")
    a("v_bfe_u32 v12, v7, 2, 1")
    a("v_mul_u32_u24 v4, 144, v12")
    a("v_lshl_add_u32 v4, v6, 4, v4")
    a("s_mul_i32 s6, s3, 288")
    a(f"s_add_u32 s6, s6, {HA_L:#x}")
    a("v_add_u32 v4, s6, v4")
    a("v_bfe_u32 v12, v0, 3, 2")
    a("v_lshlrev_b32 v53, 3, v12")
    a("v_mul_u32_u24 v1, 144, v8")
    a("s_lshl_b32 s6, s3, 5")
    a(f"s_add_u32 s6, s6, {HA_L:#x}")
    a("v_add3_u32 v1, v1, v53, s6")
    a("v_lshlrev_b32 v52, 3, v8")
    a("v_and_b32 v12, 1, v6")
    a("v_lshlrev_b32 v11, 10, v12")
    a("s_lshl_b32 s69, s3, 11")
    a("s_lshl_b32 s6, s61, 5")
    a("s_add_u32 s69, s69, s6")
    a(f"s_add_u32 s69, s69, {LG:#x}")
    a("s_lshl_b32 s70, s61, 14")
    a("s_lshl_b32 s6, s3, 12")
    a("s_add_u32 s70, s70, s6")
    a(f"s_mul_i32 s63, s61, {HSTR}")
    a("s_add_u32 s63, s63, s6")
    a(f"s_add_u32 s63, s63, {HP:#x}")
    a(f"s_add_u32 s70, s70, {OG:#x}")
    a("s_lshl_b32 s6, s3, 15")
    a(f"s_add_u32 s6, s6, {AS_OFF:#x}")
    a("v_lshrrev_b32 v13, 5, v0")
    a("v_and_b32 v14, 31, v0")
    a("v_mul_u32_u24 v13, 272, v13")
    a("v_lshl_add_u32 v13, v14, 3, v13")
    a("v_add_u32 v2, s6, v13")
    a("v_mul_u32_u24 v13, 272, v8")
    a("v_lshl_add_u32 v13, v6, 4, v13")
    a("v_add_u32 v58, s6, v13")
    a("v_lshlrev_b32 v59, 17, v12")
    a("v_lshrrev_b32 v12, 3, v7")
    a("v_lshl_add_u32 v59, v12, 12, v59")
    a("v_lshl_add_u32 v59, v8, 4, v59")
    a("s_lshl_b32 s71, s3, 18")
    a("s_lshl_b32 s6, s60, 14")
    a("s_add_u32 s71, s71, s6")
    a("s_lshl_b32 s6, s61, 7")
    a("s_add_u32 s71, s71, s6")
    a(f"s_add_u32 s71, s71, {PG:#x}")
    a("s_add_u32 s8, s71, 8192")
    if no_h: a("s_branch L_nohact")
    a("s_cmp_ge_u32 s61, 28")
    a("s_cbranch_scc1 L_nohact")
    a("s_lshl_b32 s6, s61, 7")
    a("s_lshl_b32 s7, s3, 5")
    a("s_add_u32 s6, s6, s7")
    a("buffer_load_dwordx2 v[54:55], v53, s[52:55], s6 offen")
    a(f"s_mov_b32 s64, {GG:#x}")
    a(f"s_mov_b32 s65, {spin_max}")
    a("L_hp:")
    for k in range(4):
        a(f"buffer_load_dwordx4 v[{32+4*k}:{35+4*k}], v5, s[44:47], s63 offen offset:{k*1024} sc1")
    if nogg:
        a("v_mov_b32 v56, 0.5"); a("v_mov_b32 v57, s5")
    else:
        a("buffer_load_dwordx2 v[56:57], v52, s[44:47], s64 offen sc1")
    a("s_waitcnt vmcnt(0)")
    for k in range(8):
        a(f"v_xor_b32 v{33+2*k}, s5, v{33+2*k}")
    a("v_xor_b32 v48, s5, v57")
    a("v_or3_b32 v33, v33, v35, v37")
    a("v_or3_b32 v39, v39, v41, v43")
    a("v_or3_b32 v45, v45, v47, v48")
    a("v_or3_b32 v33, v33, v39, v45")
    a("v_cmp_lt_u32 vcc, 7, v33")
    a("s_cbranch_vccz L_hp_go")
    a("s_sleep 16")
    a("s_sub_u32 s65, s65, 1")
    a("s_cbranch_scc0 L_hp")
    a("L_hp_go:")
    unpack_sum(4)
    a("v_lshlrev_b32 v16, 16, v54")
    a("v_and_b32 v17, 0xffff0000, v54")
    a("v_lshlrev_b32 v18, 16, v55")
    a("v_and_b32 v19, 0xffff0000, v55")
    for e in range(4): a(f"v_add_f32 v{12+e}, v{12+e}, v{16+e}")
    for e in range(4): a(f"v_max_f32 v{12+e}, 0, v{12+e}")
    for e in range(4): a(f"v_mul_f32 v{16+e}, v{12+e}, v56")
    for e in range(4): a(f"v_mul_f32 v{12+e}, v{12+e}, v{16+e}")
    a("v_cvt_pk_bf16_f32 v12, v12, v13")
    a("v_cvt_pk_bf16_f32 v13, v14, v15")
    a("ds_write_b64 v1, v[12:13]")
    a("L_nohact:")
    a("s_cmp_lg_u32 s3, 0")
    a("s_cbranch_scc1 L_nolse")
    cnt_wait(8, "L_hml", 10, 21, 65, sleep=8, target=5)
    a("v_lshlrev_b32 v12, 4, v9")
    a(f"v_add_u32 v12, {M_L:#x}, v12")
    a("ds_read_b128 v[16:19], v12")
    a(f"ds_read_b128 v[32:35], v12 offset:{L_L-M_L}")
    a("s_and_b32 s6, s11, 0xfc")
    a("s_lshl_b32 s6, s6, 5")
    a("s_and_b32 s7, s11, 3")
    a("s_lshl_b32 s7, s7, 3")
    a("s_add_u32 s6, s6, s7")
    a(f"s_add_u32 s6, s6, {LG:#x}")
    a("v_lshlrev_b32 v13, 5, v9")
    a("s_waitcnt lgkmcnt(0)")
    a("v_max3_f32 v14, v16, v17, v18")
    a("v_max_f32 v14, v14, v19")
    for w in range(4): a(f"v_sub_f32 v{16+w}, v{16+w}, v14")
    for w in range(4): a(f"v_exp_f32 v{16+w}, v{16+w}")
    a("v_mul_f32 v36, v16, v32")
    for w in range(1, 4): a(f"v_fma_f32 v36, v{16+w}, v{32+w}, v36")
    a("v_log_f32 v36, v36")
    a("v_mov_b32 v15, s5")
    a("v_add_f32 v14, v14, v36")
    a("s_mov_b64 exec, 15")
    a("s_cmp_lg_u32 s92, 0")
    a("s_cbranch_scc1 L_lse_slow")
    a("buffer_store_dwordx2 v[14:15], v13, s[44:47], s6 offen")
    a("s_branch L_lse_done")
    a("L_lse_slow:")
    a("buffer_store_dwordx2 v[14:15], v13, s[44:47], s6 offen sc1")
    a("L_lse_done:")
    a("s_mov_b64 exec, -1")
    a("s_sub_u32 s6, s6, s7")
    a(f"s_mov_b32 s65, {spin_max}")
    a("L_lp:")
    a("s_sleep 8")
    a("buffer_load_dwordx4 v[28:31], v13, s[44:47], s6 offen sc1")
    a("buffer_load_dwordx4 v[32:35], v13, s[44:47], s6 offen offset:16 sc1")
    a("s_waitcnt vmcnt(0)")
    for k in range(4):
        a(f"v_xor_b32 v{29+2*k}, s5, v{29+2*k}")
    a("v_or3_b32 v29, v29, v31, v33")
    a("v_or_b32 v29, v29, v35")
    a("v_cmp_ne_u32 vcc, 0, v29")
    a("s_sub_u32 s65, s65, 1")
    a("s_cbranch_scc1 L_lp_go")
    a("s_cbranch_vccnz L_lp")
    a("L_lp_go:")
    a("v_max3_f32 v44, v28, v30, v32")
    a("v_max_f32 v44, v44, v34")
    for k in range(4):
        a(f"v_sub_f32 v{48+k}, v{28+2*k}, v44")
    for k in range(4):
        a(f"v_exp_f32 v{48+k}, v{48+k}")
    a("v_add_f32 v48, v48, v49")
    a("v_add_f32 v50, v50, v51")
    a("v_add_f32 v48, v48, v50")
    a("v_log_f32 v48, v48")
    a("v_lshlrev_b32 v12, 2, v9")
    a(f"v_add_u32 v12, {G_L+16:#x}, v12")
    a("v_add_f32 v48, v48, v44")
    a("s_mov_b64 exec, 15")
    a("ds_write_b32 v12, v48")
    a("s_mov_b64 exec, 1")
    a("ds_add_u32 v10, v20 offset:8")
    a("s_mov_b64 exec, -1")
    a("L_nolse:")
    cnt_wait(12, "L_trig", 10, 21, 65, sleep=2, target=ttarget)
    a(f"s_setprio {tprio}")
    a("s_mov_b32 m0, s67")
    a("s_nop 0")
    for i in range(4):
        a(f"buffer_load_dwordx4 v{24+i}, s[48:51], s62 offen offset:{i*1024} {lpol} lds")
    a("s_mov_b32 m0, s68")
    a("s_nop 0")
    for i in range(2):
        a(f"buffer_load_dwordx4 v{24+i}, s[56:59], s66 offen offset:{i*1024} {lpol} lds")
    for k in range(1, pf + 1):
        a(f"s_add_u32 s6, s60, {k}")
        a("s_and_b32 s6, s6, 7")
        a("s_sub_u32 s6, s6, s60")
        a("s_lshl_b32 s6, s6, 7")
        a("s_add_u32 s7, s6, s66")
        a("s_add_u32 s6, s6, s62")
        for i in range(4):
            a(f"buffer_load_dwordx4 v[{224+4*i}:{227+4*i}], v{24+i}, s[48:51], s6 offen offset:{i*1024} {lpol}")
        for i in range(2):
            a(f"buffer_load_dwordx4 v[{240+4*i}:{243+4*i}], v{24+i}, s[56:59], s7 offen offset:{i*1024} {lpol}")
    for k in range(4):
        a(f"v_mov_b32 v{65+2*k}, s5")
    a("v_add_u32 v9, 1088, v2")
    a("v_mov_b32 v36, 1")
    stamp(3)
    WOF, W2F, AF, ACC = 128, 192, 72, 96
    for k in range(4):
        a(f"v_mov_b32 v{60+k}, 0")
    a(f"s_waitcnt vmcnt({6*pf})")
    cnt_add(0, 10, 36)
    def p2_loads():
        for k in range(4):
            a(f"buffer_load_dwordx4 v[{12+4*k}:{15+4*k}], v5, s[44:47], s70 offen offset:{k*1024} sc1")
    cnt_wait(0, "L_s2", 10, 37, 65, sleep=1, target=8)
    stamp(6)
    for j in range(4):
        if j == p2pos: p2_loads()
        for aa in range(4):
            for eh in range(2):
                r = WOF + 16 * j + 4 * aa + 2 * eh
                a(f"ds_read_b64_tr_b16 v[{r}:{r+1}], v{120+aa} offset:{j*4096 + eh*512}")
        a("s_waitcnt lgkmcnt(6)")
    if p2pos == 4: p2_loads()
    a("s_cmp_ge_u32 s61, 28")
    a("s_cbranch_scc1 L_nomlp")
    for j in range(2):
        for aa in range(4):
            for eh in range(2):
                r = W2F + 16 * j + 4 * aa + 2 * eh
                a(f"ds_read_b64_tr_b16 v[{r}:{r+1}], v{120+aa} offset:{W2_L-WO_L + j*4096 + eh*512}")
        a("s_waitcnt lgkmcnt(4)")
    a("ds_read_b128 v[88:91], v4")
    a("ds_read_b128 v[92:95], v4 offset:64")
    a("s_waitcnt lgkmcnt(0)")
    for j in range(2):
        for aa in range(4):
            c = "0" if j == 0 else f"v[{ACC+4*aa}:{ACC+4*aa+3}]"
            a(f"v_mfma_f32_16x16x32_bf16 v[{ACC+4*aa}:{ACC+4*aa+3}], v[{88+4*j}:{91+4*j}], v[{W2F+16*j+4*aa}:{W2F+16*j+4*aa+3}], {c}")
    for aa in range(4):
        a(f"v_mov_b32 v{60+aa}, v{ACC+4*aa}")
    a("L_nomlp:")
    a(f"s_mov_b32 s64, {spin_max}")
    stamp(4)
    if not sel:
        a("s_branch L_p2_body")
        a("L_p2_poll:")
        if p2sleep: a(f"s_sleep {p2sleep}")
        p2_loads()
        a("L_p2_body:")
        for k in range(4):
            a(f"s_waitcnt vmcnt({3-k})")
            va = "v2" if k < 2 else "v9"
            o = (k & 1) * 136
            a(f"ds_write2_b32 {va}, v{12+4*k}, v{14+4*k} offset0:{o} offset1:{o+1}")
            a(f"v_xor_b32 v{28+2*k}, s5, v{13+4*k}")
            a(f"v_xor_b32 v{29+2*k}, s5, v{15+4*k}")
        a("v_or3_b32 v28, v28, v29, v30")
        a("v_or3_b32 v31, v31, v32, v33")
        a("v_or3_b32 v28, v28, v34, v35")
        a("v_or_b32 v28, v28, v31")
        a("v_cmp_ne_u32 vcc, 0, v28")
        a("s_sub_u32 s64, s64, 1")
        a("s_waitcnt lgkmcnt(0)")
        a("s_cbranch_scc1 L_p2_go")
        a("s_cbranch_vccnz L_p2_poll")
    else:
        for k in range(4):
            a(f"s_waitcnt vmcnt({3-k})")
            a(f"s_branch L_pk{k}_chk")
            a(f"L_pk{k}:")
            if p2sleep: a(f"s_sleep {p2sleep}")
            for kk in range(k, min(k + 2, 4)):
                a(f"buffer_load_dwordx4 v[{12+4*kk}:{15+4*kk}], v5, s[44:47], s70 offen offset:{kk*1024} sc1")
            a("s_waitcnt vmcnt(0)")
            a(f"L_pk{k}_chk:")
            a(f"v_xor_b32 v28, s5, v{13+4*k}")
            a(f"v_xor_b32 v29, s5, v{15+4*k}")
            a("v_or_b32 v28, v28, v29")
            a("v_cmp_ne_u32 vcc, 0, v28")
            a("s_sub_u32 s64, s64, 1")
            a(f"s_cbranch_scc1 L_pk{k}_go")
            a(f"s_cbranch_vccnz L_pk{k}")
            a(f"L_pk{k}_go:")
            va = "v2" if k < 2 else "v9"
            o = (k & 1) * 136
            a(f"ds_write2_b32 {va}, v{12+4*k}, v{14+4*k} offset0:{o} offset1:{o+1}")
            a(f"s_mov_b32 s64, {spin_max}")
        a("s_waitcnt lgkmcnt(0)")
    a("L_p2_go:")
    if fwait: cnt_add(28, 10, 36)
    for j in range(4):
        a(f"ds_read_b128 v[{AF+4*j}:{AF+4*j+3}], v58 offset:{j*64}")
    for j in range(4):
        a(f"s_waitcnt lgkmcnt({3-j})")
        for aa in range(4):
            c = "0" if j == 0 else f"v[{ACC+4*aa}:{ACC+4*aa+3}]"
            a(f"v_mfma_f32_16x16x32_bf16 v[{ACC+4*aa}:{ACC+4*aa+3}], v[{AF+4*j}:{AF+4*j+3}], v[{WOF+16*j+4*aa}:{WOF+16*j+4*aa+3}], {c}")
    a("s_mov_b64 exec, 0xffffffff")
    for aa in range(4):
        a(f"v_add_f32 v{60+aa}, v{60+aa}, v{ACC+4*aa}")
        a(f"v_add_f32 v{48+aa}, v{ACC+4*aa+1}, v{ACC+4*aa+2}")
        a(f"v_add_f32 v{60+aa}, v{60+aa}, v{ACC+4*aa+3}")
        a(f"v_add_f32 v{64+2*aa}, v{60+aa}, v{48+aa}")
        if aa == 1: a(f"buffer_store_dwordx4 v[64:67], v59, s[44:47], s71 offen {pst}")
    a(f"buffer_store_dwordx4 v[68:71], v59, s[44:47], s8 offen {pst}")
    a("s_mov_b64 exec, -1")
    stamp(5)
    if stamps and stamps != "min":
        a("s_add_u32 s3, s3, 1")
        stamp_store("s3")
    a("L_end:")
    a("s_endpgm")
    a.raw('.section .rodata,"a"')
    a.raw(".p2align 6")
    a.raw(f".amdhsa_kernel {NAME}_kernel")
    a.raw("  .amdhsa_next_free_vgpr 256")
    a.raw("  .amdhsa_next_free_sgpr 96")
    a.raw("  .amdhsa_accum_offset 256")
    a.raw("  .amdhsa_group_segment_fixed_size 0")
    a.raw("  .amdhsa_kernarg_size 112")
    a.raw("  .amdhsa_user_sgpr_count 2")
    a.raw("  .amdhsa_user_sgpr_kernarg_segment_ptr 1")
    a.raw("  .amdhsa_system_sgpr_workgroup_id_x 1")
    a.raw(".end_amdhsa_kernel")
    return a.text()

if __name__ == "__main__":
    out = sys.argv[1]
    kw = json.loads(sys.argv[2]) if len(sys.argv) > 2 else {}
    open(out, "w").write(gen(**kw))
```
